```python
import torch

def _softmax(x, axis=-1):
    return torch.softmax(x, dim=axis)
def _gelu(x):
    return torch.nn.functional.gelu(x, approximate="tanh")
def _silu(x):
    return torch.nn.functional.silu(x)
def _sigmoid(x):
    return torch.sigmoid(x)
def _layernorm(x, axis=-1, eps=1e-5):
    m = x.mean(dim=axis, keepdim=True)
    v = x.var(dim=axis, keepdim=True, unbiased=False)
    return (x - m) / torch.sqrt(v + eps)
def _scatter_add(tgt, idx, src, axis=0):
    return tgt.clone().index_add_(axis, idx, src)
def _segment_sum(src, seg, n):
    out = torch.zeros((n,) + src.shape[1:], dtype=src.dtype)
    return out.index_add_(0, seg, src)
def _pad(x, pw):
    flat = tuple(v for pair in reversed(pw) for v in pair)
    return torch.nn.functional.pad(x, flat)

kernel_name = 'recurrent_scan__ssm_conv_s4d__dense_activation_gelu__prompt'

def setup_inputs():

    _w = (lambda a: (lambda t: t.to(torch.bfloat16) if t.is_floating_point() else t)(torch.as_tensor(a)))
    def _A_setup():
        Bsz, L, D, N = 1, 2048, 512, 128
        return {
            "u": _w((lambda *s: torch.randn(*s, dtype=torch.bfloat16) * 0.05)(Bsz, L, D)),
            "log_A_real": _w((lambda *s: torch.randn(*s, dtype=torch.bfloat16) * 6.4)(D, N) * 0.5),
            "A_imag": _w((lambda *s: torch.randn(*s, dtype=torch.bfloat16) * 0.2)(D, N) * 3.14),
            "C_real": _w((lambda *s: torch.randn(*s, dtype=torch.bfloat16) * 0.4)(D, N) / N ** 0.5),
            "C_imag": _w((lambda *s: torch.randn(*s, dtype=torch.bfloat16) * 0.4)(D, N) / N ** 0.5),
            "log_dt": _w((lambda *s: torch.randn(*s, dtype=torch.bfloat16) * 0.2)(D) * 0.5 - 4.0),
            "D_skip": _w((lambda *s: torch.randn(*s, dtype=torch.bfloat16) * 0.2)(D)),
        }
    _A_in = _A_setup()

    def _B_setup():
        B, S, D, F = 1, 2048, 512, 1792
        return {
            "x": _w((lambda *s: torch.randn(*s, dtype=torch.bfloat16) * 0.05)(B, S, D)),
            "w1": _w((lambda *s: torch.randn(*s, dtype=torch.bfloat16) * 0.8)(D, F) * (D ** -0.5)),
            "b1": _w((lambda *s: torch.randn(*s, dtype=torch.bfloat16) * 0.1)(F) * 0.01),
            "w2": _w((lambda *s: torch.randn(*s, dtype=torch.bfloat16) * 0.1)(F, D) * (F ** -0.5)),
            "b2": _w((lambda *s: torch.randn(*s, dtype=torch.bfloat16) * 0.1)(D) * 0.01),
        }
    _B_in = _B_setup()

    return {
        "A_u": _A_in["u"],
        "A_log_A_real": _A_in["log_A_real"],
        "A_A_imag": _A_in["A_imag"],
        "A_C_real": _A_in["C_real"],
        "A_C_imag": _A_in["C_imag"],
        "A_log_dt": _A_in["log_dt"],
        "A_D_skip": _A_in["D_skip"],
        "B_x": _B_in["x"],
        "B_w1": _B_in["w1"],
        "B_b1": _B_in["b1"],
        "B_w2": _B_in["w2"],
        "B_b2": _B_in["b2"],
    }

def reference(A_u, A_log_A_real, A_A_imag, A_C_real, A_C_imag, A_log_dt, A_D_skip, B_x, B_w1, B_b1, B_w2, B_b2):
    def _A_ref(u, log_A_real, A_imag, C_real, C_imag, log_dt, D_skip):
        L = u.shape[1]
        dt = torch.exp(log_dt)
        A = -torch.exp(log_A_real) + 1j * A_imag
        C = (C_real + 1j * C_imag) * dt[:, None]
        pos = (lambda x, dt: x.to(dt))(torch.arange(L), log_dt.dtype)
        P = torch.exp((A * dt[:, None])[:, :, None] * pos[None, None, :])
        K = 2.0 * torch.einsum("dn,dnl->dl", C, P).real
        L2 = 2 * L
        u_t = (lambda x, *d: x.permute(*d))(u, 0, 2, 1)
        Kf = (lambda x, *a, **k: torch.fft.rfft(x.float(), *a, **k))(K, L2)
        Uf = (lambda x, *a, **k: torch.fft.rfft(x.float(), *a, **k))(u_t, L2)
        y = (lambda x, *a, **k: torch.fft.irfft(x, *a, **k).to(torch.bfloat16))(Uf * Kf[None, :, :], L2)[:, :, :L]
        y = (lambda x, *d: x.permute(*d))(y, 0, 2, 1)
        return y + u * D_skip[None, None, :]

    def _B_ref(x, w1, b1, w2, b2):
        h = torch.einsum("bsd,df->bsf", x, w1) + b1
        h = _gelu(h)
        return torch.einsum("bsf,fd->bsd", h, w2) + b2

    x = A_u
    xn = _layernorm(x, axis=-1)
    s = _A_ref(xn, A_log_A_real, A_A_imag, A_C_real, A_C_imag, A_log_dt, A_D_skip)
    g = _silu(_B_ref(xn, B_w1, B_b1, B_w2, B_b2))
    return x + s * g
```

```python
import struct, sys

OUT = sys.argv[1] if len(sys.argv) > 1 else "recurrent_scan__ssm_conv_s4d__dense_activation_gelu__prompt.s"

L = []
def e(s=""):
    L.append("    " + s if s and not s.endswith(":") else s)
def lab(s):
    L.append(s + ":")
def f2u(x):
    return "0x%08x" % struct.unpack("<I", struct.pack("<f", x))[0]

XNF_OFF = 0x0;        XNF_SZ = 0x200000
XNT_OFF = 0x200000;   XNT_PITCH = 4224; XNT_SZ = 512 * XNT_PITCH
W1F_OFF = 0x500000;   W1F_SZ = 1792 * 1024
W2F_OFF = 0x700000;   W2F_SZ = 1792 * 1024
KP_OFF  = 0x900000;   KP_PITCH = 5120; KP_SZ = 512 * KP_PITCH
HF_OFF  = 0xC00000;   HF_SZ = 128 * 56 * 1024
ST_OFF  = 0x1400000;  ST_SZ = 512 * 4096

ARG = dict(u=0, lar=8, aim=16, cr=24, ci=32, ldt=40, dsk=48, bx=56, w1=64, b1=72, w2=80, b2=88, out=96, dbg=104, ws=112)

LOG2E = 1.4426950408889634
LOG2E_HI = struct.unpack("<f", struct.pack("<f", LOG2E))[0]
LOG2E_LO = LOG2E - LOG2E_HI
LN2 = 0.6931471805599453
INV2PI = 0.15915494309189535

def srd(dst, ptr, size, off=0):
    if off:
        e(f"s_add_u32 s{dst}, s{ptr}, 0x{off:x}")
        e(f"s_addc_u32 s{dst+1}, s{ptr+1}, 0")
    else:
        e(f"s_mov_b32 s{dst}, s{ptr}")
        e(f"s_mov_b32 s{dst+1}, s{ptr+1}")
    e(f"s_mov_b32 s{dst+2}, 0x{size:x}")
    e(f"s_mov_b32 s{dst+3}, 0x00020000")

def kernel_begin(name):
    L.append(f".globl {name}")
    L.append(".p2align 8")
    L.append(f".type {name},@function")
    lab(name)

def kd(name, vgpr, sgpr, accum):
    return f""".p2align 6
.amdhsa_kernel {name}
  .amdhsa_next_free_vgpr {vgpr}
  .amdhsa_next_free_sgpr {sgpr}
  .amdhsa_accum_offset {accum}
  .amdhsa_group_segment_fixed_size 0
  .amdhsa_kernarg_size 120
  .amdhsa_user_sgpr_count 2
  .amdhsa_user_sgpr_kernarg_segment_ptr 1
  .amdhsa_system_sgpr_workgroup_id_x 1
.end_amdhsa_kernel
"""

def bf16r(dst, src, tmp=None):
    e(f"v_cvt_pk_bf16_f32 v{dst}, v{src}, v{src}")
    e(f"v_lshlrev_b32 v{dst}, 16, v{dst}")

def exp_acc(dst, x, t1, t2):
    e(f"v_mul_f32 v{t1}, s40, v{x}")
    e(f"v_fma_f32 v{t2}, v{x}, s40, -v{t1}")
    e(f"v_fmac_f32 v{t2}, s41, v{x}")
    e(f"v_exp_f32 v{dst}, v{t1}")
    e(f"v_mul_f32 v{t2}, s42, v{t2}")
    e(f"v_fmac_f32 v{dst}, v{dst}, v{t2}")

def gen_p1():
    kernel_begin("p1_kernel")
    e("s_cmp_ge_u32 s2, 768")
    e("s_cbranch_scc1 P1_END")
    e("s_cmp_ge_u32 s2, 640")
    e("s_cbranch_scc1 P1_REPACK")
    e("s_cmp_ge_u32 s2, 512")
    e("s_cbranch_scc1 P1_LN")
    e("s_load_dwordx8 s[8:15], s[0:1], 8")
    e("s_load_dwordx2 s[16:17], s[0:1], 40")
    e("s_load_dwordx2 s[18:19], s[0:1], 112")
    e(f"s_mov_b32 s40, {f2u(LOG2E_HI)}")
    e(f"s_mov_b32 s41, {f2u(LOG2E_LO)}")
    e(f"s_mov_b32 s42, {f2u(LN2)}")
    e(f"s_mov_b32 s43, {f2u(INV2PI)}")
    e("v_and_b32 v1, 127, v0")
    e("s_lshl_b32 s3, s2, 8")
    e("v_lshl_add_u32 v2, v1, 1, s3")
    e("s_lshl_b32 s4, s2, 1")
    e("v_mov_b32 v3, s4")
    e("s_waitcnt lgkmcnt(0)")
    e("global_load_ushort v4, v2, s[8:9]")
    e("global_load_ushort v5, v2, s[10:11]")
    e("global_load_ushort v6, v2, s[12:13]")
    e("global_load_ushort v7, v2, s[14:15]")
    e("global_load_ushort v8, v3, s[16:17]")
    srd(20, 18, KP_SZ, KP_OFF)
    e("v_and_b32 v10, 15, v0")
    e("v_bfe_u32 v11, v0, 4, 2")
    e("v_lshrrev_b32 v12, 6, v0")
    e("v_lshlrev_b32 v13, 3, v10")
    e("v_cvt_f32_u32 v60, v13")
    e("v_lshrrev_b32 v13, 3, v10")
    e("v_and_b32 v14, 7, v10")
    e("v_lshl_add_u32 v13, v13, 7, v14")
    e("v_cvt_f32_u32 v61, v13")
    e("v_lshrrev_b32 v13, 2, v10")
    e("v_and_b32 v14, 3, v10")
    e("v_lshlrev_b32 v14, 1, v14")
    e("v_lshl_add_u32 v13, v13, 7, v14")
    e("v_add_u32 v13, 256, v13")
    e("v_subrev_u32 v14, 8, v10")
    e("v_lshrrev_b32 v14, 1, v14")
    e("v_and_b32 v15, 1, v10")
    e("v_lshlrev_b32 v15, 2, v15")
    e("v_lshl_add_u32 v14, v14, 7, v15")
    e("v_add_u32 v14, 512, v14")
    e("v_cmp_gt_u32 vcc, 8, v10")
    e("s_nop 1")
    e("v_cndmask_b32 v13, v14, v13, vcc")
    e("v_cvt_f32_u32 v62, v13")
    e("v_lshlrev_b32 v13, 7, v10")
    e("v_add_u32 v13, 1024, v13")
    e("v_cvt_f32_u32 v63, v13")
    e("v_lshl_add_u32 v13, v12, 5, v11")
    e("v_lshlrev_b32 v64, 4, v13")
    e("v_mul_u32_u24 v13, 3072, v12")
    e("v_lshl_add_u32 v13, v10, 6, v13")
    e("v_lshl_add_u32 v65, v11, 4, v13")
    for i in range(8):
        d = 70 + i
        e(f"v_lshlrev_b32 v13, 3, v0")
        if i:
            e(f"v_add_u32 v13, {i}, v13")
        e("v_cvt_f32_u32 v13, v13")
        e("v_cvt_pk_bf16_f32 v13, v13, v13")
        e("v_lshlrev_b32 v13, 16, v13")
        e("v_cvt_u32_f32 v14, v13")
        e("v_lshrrev_b32 v13, 23, v13")
        e("v_subrev_u32 v13, 134, v13")
        e("v_max_i32 v13, 0, v13")
        e("v_min_i32 v13, 3, v13")
        e("v_lshrrev_b32 v15, 7, v14")
        e("v_and_b32 v16, 7, v14")
        e("v_lshl_add_u32 v15, v15, 3, v16")
        e("v_lshrrev_b32 v15, v13, v15")
        e("v_lshl_add_u32 v15, v13, 3, v15")
        e("v_bfe_u32 v16, v14, 3, 4")
        e("v_lshrrev_b32 v17, 4, v15")
        e("v_and_b32 v15, 15, v15")
        e("v_lshl_add_u32 v16, v17, 4, v16")
        e("v_lshl_add_u32 v15, v16, 4, v15")
        e(f"v_lshlrev_b32 v{d}, 1, v15")
    e("s_waitcnt vmcnt(0)")
    for r in (4, 5, 6, 7, 8):
        e(f"v_lshlrev_b32 v{r}, 16, v{r}")
    exp_acc(9, 8, 13, 14)
    bf16r(9, 9)
    exp_acc(15, 4, 13, 14)
    bf16r(15, 15)
    e("v_mul_f32 v15, v15, v9")
    e("v_mul_f32 v20, s40, v15")
    e("v_sub_f32 v20, 0, v20")
    e("v_mul_f32 v21, v5, v9")
    e("v_mul_f32 v21, s43, v21")
    e("v_mul_f32 v22, v6, v9")
    e("v_add_f32 v22, v22, v22")
    e("v_mul_f32 v23, v7, v9")
    e("v_add_f32 v23, v23, v23")
    e("v_lshlrev_b32 v13, 4, v1")
    e("ds_write_b128 v13, v[20:23]")
    e("s_waitcnt lgkmcnt(0)")
    e("s_barrier")
    for s in range(8):
        e(f"ds_read_b128 v[{80+4*s}:{83+4*s}], v64 offset:{64*s}")
    for i in range(12):
        e(f"v_mov_b32 v{24+i}, 0")
    for s in range(8):
        P = 80 + 4 * s
        e(f"s_waitcnt lgkmcnt({7-s})")
        for T in range(4):
            pos = 61 + T if T < 3 else 60
            e(f"v_mul_f32 v{40+T}, v{P}, v{pos}")
            e(f"v_mul_f32 v{44+T}, v{P+1}, v{pos}")
        for T in range(4):
            e(f"v_exp_f32 v{48+T}, v{40+T}")
            e(f"v_fract_f32 v{44+T}, v{44+T}")
        for T in range(4):
            e(f"v_sin_f32 v{52+T}, v{44+T}")
            e(f"v_cos_f32 v{56+T}, v{44+T}")
        for T in range(3):
            e(f"v_mul_f32 v{112+2*T}, v{48+T}, v{56+T}")
            e(f"v_mul_f32 v{113+2*T}, v{48+T}, v{52+T}")
        e(f"v_mul_f32 v40, v{P+2}, v59")
        e(f"v_mul_f32 v41, v{P+2}, v55")
        e(f"v_fma_f32 v40, -v{P+3}, v55, v40")
        e(f"v_fmac_f32 v41, v{P+3}, v59")
        e(f"v_mul_f32 v36, v51, v40")
        e(f"v_mul_f32 v37, -v51, v41")
        e("s_nop 1")
        for T in range(3):
            a = 24 + 4 * T
            e(f"v_mfma_f32_16x16x4_f32 v[{a}:{a+3}], v{112+2*T}, v36, v[{a}:{a+3}]")
        for T in range(3):
            a = 24 + 4 * T
            e(f"v_mfma_f32_16x16x4_f32 v[{a}:{a+3}], v{113+2*T}, v37, v[{a}:{a+3}]")
    e("s_nop 7")
    e("s_nop 3")
    for T in range(3):
        a = 24 + 4 * T
        e(f"ds_write_b128 v65, v[{a}:{a+3}] offset:{2048 + 1024*T}")
    e("s_waitcnt lgkmcnt(0)")
    e("s_barrier")
    e("v_cmp_gt_u32 vcc, 192, v0")
    e("s_and_saveexec_b64 s[30:31], vcc")
    e("s_cbranch_execz P1_K_SKIP")
    e("v_lshlrev_b32 v13, 4, v0")
    for w in range(4):
        e(f"ds_read_b128 v[{40+4*w}:{43+4*w}], v13 offset:{2048+3072*w}")
    e("s_waitcnt lgkmcnt(0)")
    for j in range(4):
        e(f"v_add_f32 v{40+j}, v{40+j}, v{44+j}")
        e(f"v_add_f32 v{48+j}, v{48+j}, v{52+j}")
    for j in range(4):
        e(f"v_add_f32 v{40+j}, v{40+j}, v{48+j}")
    e("v_cvt_pk_bf16_f32 v44, v40, v41")
    e("v_cvt_pk_bf16_f32 v45, v42, v43")
    e("v_lshlrev_b32 v13, 3, v0")
    e("ds_write_b64 v13, v[44:45] offset:14336")
    lab("P1_K_SKIP")
    e("s_mov_b64 exec, s[30:31]")
    e("s_waitcnt lgkmcnt(0)")
    e("s_barrier")
    for i in range(8):
        e(f"ds_read_u16 v{40+i}, v{70+i} offset:14336")
    e("v_lshrrev_b32 v13, 2, v0")
    e("v_lshlrev_b32 v13, 5, v13")
    e("v_bfe_u32 v14, v0, 1, 1")
    e("v_mul_u32_u24 v14, 2560, v14")
    e("v_and_b32 v15, 1, v0")
    e("v_lshl_add_u32 v13, v15, 4, v13")
    e("v_add3_u32 v13, v13, v14, 64")
    e("v_add_u32 v13, 448, v13")
    e(f"s_mul_i32 s5, s2, {KP_PITCH}")
    e("s_waitcnt lgkmcnt(0)")
    for j in range(4):
        e(f"v_lshl_or_b32 v{48+j}, v{41+2*j}, 16, v{40+2*j}")
    e("buffer_store_dwordx4 v[48:51], v13, s[20:23], s5 offen")
    e("v_cmp_gt_u32 vcc, 64, v0")
    e("s_and_saveexec_b64 s[30:31], vcc")
    e("s_cbranch_execz P1_END")
    e("v_lshrrev_b32 v13, 5, v0")
    e("v_mul_u32_u24 v13, 2560, v13")
    e("v_and_b32 v14, 31, v0")
    e("v_lshl_add_u32 v13, v14, 4, v13")
    for j in range(4):
        e(f"v_mov_b32 v{52+j}, 0")
    e("buffer_store_dwordx4 v[52:55], v13, s[20:23], s5 offen")
    e("s_endpgm")

    lab("P1_LN")
    e("s_load_dwordx2 s[8:9], s[0:1], 0")
    e("s_load_dwordx2 s[18:19], s[0:1], 112")
    e("s_sub_u32 s3, s2, 512")
    e("v_and_b32 v1, 63, v0")
    e("v_lshrrev_b32 v2, 6, v0")
    e("v_lshlrev_b32 v3, 12, v2")
    e("v_lshl_add_u32 v3, v1, 4, v3")
    e("s_lshl_b32 s4, s3, 14")
    e("s_waitcnt lgkmcnt(0)")
    srd(12, 8, 0x200000)
    srd(20, 18, XNF_SZ, XNF_OFF)
    srd(24, 18, XNT_SZ, XNT_OFF)
    for i in range(4):
        e(f"buffer_load_dwordx4 v[{8+4*i}:{11+4*i}], v3, s[12:15], s4 offen offset:{1024*i}")
    e("s_mov_b32 s40, 0xffff0000")
    e(f"s_mov_b32 s41, {f2u(1.0/512)}")
    e(f"s_mov_b32 s42, {f2u(1e-5)}")
    e("s_waitcnt vmcnt(0)")
    for i in range(4):
        for j in range(4):
            e(f"v_lshlrev_b32 v{32+8*i+2*j}, 16, v{8+4*i+j}")
            e(f"v_and_b32 v{33+8*i+2*j}, s40, v{8+4*i+j}")
    def wave_sum(regs, sbase):
        for ctl in ("quad_perm:[1,0,3,2]", "quad_perm:[2,3,0,1]", "row_half_mirror", "row_mirror"):
            for r in regs:
                e(f"v_add_f32_dpp v{r}, v{r}, v{r} {ctl} row_mask:0xf bank_mask:0xf")
        e("s_nop 1")
        for k, r in enumerate(regs):
            for q in range(4):
                e(f"v_readlane_b32 s{sbase+4*k+q}, v{r}, {16*q}")
        e("s_nop 1")
        for k, r in enumerate(regs):
            e(f"v_mov_b32 v{r}, s{sbase+4*k}")
        for q in range(1, 4):
            for k, r in enumerate(regs):
                e(f"v_add_f32 v{r}, s{sbase+4*k+q}, v{r}")
    for i in range(4):
        b = 32 + 8 * i
        e(f"v_add_f32 v{64+i}, v{b}, v{b+1}")
    for j in range(2, 8):
        for i in range(4):
            e(f"v_add_f32 v{64+i}, v{64+i}, v{32+8*i+j}")
    wave_sum([64, 65, 66, 67], 44)
    for i in range(4):
        e(f"v_mul_f32 v{64+i}, s41, v{64+i}")
    for j in range(8):
        for i in range(4):
            e(f"v_sub_f32 v{72+i}, v{32+8*i+j}, v{64+i}")
        for i in range(4):
            if j == 0:
                e(f"v_mul_f32 v{68+i}, v{72+i}, v{72+i}")
            else:
                e(f"v_fmac_f32 v{68+i}, v{72+i}, v{72+i}")
    e("s_nop 1")
    wave_sum([68, 69, 70, 71], 44)
    for i in range(4):
        e(f"v_mul_f32 v{68+i}, s41, v{68+i}")
    for i in range(4):
        bf16r(64 + i, 64 + i)
        bf16r(68 + i, 68 + i)
    for i in range(4):
        e(f"v_add_f32 v{68+i}, s42, v{68+i}")
    for i in range(4):
        bf16r(68 + i, 68 + i)
    for i in range(4):
        e(f"v_sqrt_f32 v{68+i}, v{68+i}")
    e("s_nop 0")
    for i in range(4):
        bf16r(68 + i, 68 + i)
    for i in range(4):
        e(f"v_rcp_f32 v{72+i}, v{68+i}")
    e("s_nop 0")
    for i in range(4):
        e(f"v_fma_f32 v{76+i}, -v{68+i}, v{72+i}, 1.0")
    for i in range(4):
        e(f"v_fmac_f32 v{72+i}, v{72+i}, v{76+i}")
    for i in range(4):
        b = 32 + 8 * i
        for j in range(8):
            e(f"v_sub_f32 v{b+j}, v{b+j}, v{64+i}")
        for j in range(4):
            e(f"v_cvt_pk_bf16_f32 v{8+4*i+j}, v{b+2*j}, v{b+2*j+1}")
        for j in range(4):
            e(f"v_lshlrev_b32 v{b+2*j}, 16, v{8+4*i+j}")
            e(f"v_and_b32 v{b+2*j+1}, s40, v{8+4*i+j}")
        for j in range(8):
            e(f"v_mul_f32 v{b+j}, v{b+j}, v{72+i}")
        for j in range(4):
            e(f"v_cvt_pk_bf16_f32 v{8+4*i+j}, v{b+2*j}, v{b+2*j+1}")
    e("v_lshrrev_b32 v4, 2, v1")
    e("v_lshlrev_b32 v4, 10, v4")
    e("v_and_b32 v5, 3, v1")
    e("v_lshl_add_u32 v4, v5, 8, v4")
    e("v_lshl_add_u32 v4, v2, 6, v4")
    for i in range(4):
        e(f"buffer_store_dwordx4 v[{8+4*i}:{11+4*i}], v4, s[20:23], s4 offen offset:{16*i}")
    LP = 1056
    e(f"v_mul_u32_u24 v5, {4*LP}, v2")
    e("v_lshl_add_u32 v5, v1, 4, v5")
    for i in range(4):
        e(f"ds_write_b128 v5, v[{8+4*i}:{11+4*i}] offset:{LP*i}")
    e("s_waitcnt lgkmcnt(0)")
    e("s_barrier")
    e("v_bfe_u32 v6, v1, 4, 1")
    e("v_bfe_u32 v7, v1, 5, 1")
    e("v_bfe_u32 v24, v1, 2, 2")
    e("v_and_b32 v25, 3, v1")
    e("v_and_b32 v26, 15, v1")
    e("v_lshl_add_u32 v27, v6, 3, v24")
    e("v_sub_u32 v27, 11, v27")
    e(f"v_mul_u32_u24 v27, {LP}, v27")
    e("v_lshl_add_u32 v27, v2, 8, v27")
    e("v_lshl_add_u32 v27, v7, 5, v27")
    e("v_lshl_add_u32 v27, v25, 3, v27")
    e("v_lshlrev_b32 v28, 7, v2")
    e("v_lshl_add_u32 v28, v7, 4, v28")
    e("v_add_u32 v28, v28, v26")
    e(f"v_mul_u32_u24 v28, {XNT_PITCH}, v28")
    e("v_lshl_add_u32 v28, v6, 4, v28")
    e("s_lshl_b32 s5, s3, 5")
    e("s_sub_u32 s5, 4064, s5")
    for it in range(4):
        e(f"ds_read_b64_tr_b16 v[{32+4*it}:{33+4*it}], v27 offset:{4*LP + 64*it}")
        e(f"ds_read_b64_tr_b16 v[{34+4*it}:{35+4*it}], v27 offset:{64*it}")
    for it in range(4):
        e(f"s_waitcnt lgkmcnt({6-2*it})")
        e(f"buffer_store_dwordx4 v[{32+4*it}:{35+4*it}], v28, s[24:27], s5 offen")
        if it < 3:
            e(f"s_add_u32 s5, s5, {32*XNT_PITCH}")
    e("v_cmp_gt_u32 vcc, 32, v0")
    e("s_and_saveexec_b64 s[30:31], vcc")
    e("s_cbranch_execz P1_END")
    e("v_lshrrev_b32 v4, 3, v0")
    e(f"v_mul_u32_u24 v4, {XNT_PITCH}, v4")
    e("v_and_b32 v5, 7, v0")
    e("v_lshl_add_u32 v4, v5, 4, v4")
    e(f"s_mul_i32 s5, s3, {4*XNT_PITCH}")
    e("s_add_u32 s5, s5, 4096")
    for j in range(4):
        e(f"v_mov_b32 v{52+j}, 0")
    e("buffer_store_dwordx4 v[52:55], v4, s[24:27], s5 offen")
    e("s_endpgm")

    lab("P1_REPACK")
    e("s_load_dwordx2 s[8:9], s[0:1], 64")
    e("s_load_dwordx2 s[10:11], s[0:1], 80")
    e("s_load_dwordx2 s[18:19], s[0:1], 112")
    e("v_and_b32 v1, 63, v0")
    e("v_readfirstlane_b32 s4, v0")
    e("v_and_b32 v2, 15, v1")
    e("v_lshrrev_b32 v3, 4, v1")
    e("v_lshlrev_b32 v6, 4, v1")
    e("s_lshr_b32 s4, s4, 6")
    e("s_sub_u32 s3, s2, 640")
    e("s_cmp_ge_u32 s3, 64")
    e("s_cbranch_scc1 P1_RP2")
    e("s_lshl_b32 s3, s3, 2")
    e("s_add_u32 s3, s3, s4")
    e("s_lshr_b32 s5, s3, 4")
    e("s_and_b32 s6, s3, 15")
    e("s_waitcnt lgkmcnt(0)")
    srd(12, 8, 512 * 1792 * 2)
    srd(20, 18, W1F_SZ, W1F_OFF)
    e(f"v_mul_u32_u24 v4, {8*3584}, v3")
    e("v_lshl_add_u32 v4, v2, 1, v4")
    e(f"s_mul_i32 s7, s6, {32*3584}")
    e(f"s_mul_i32 s16, s5, {7*32}")
    e("s_add_u32 s7, s7, s16")
    for ee in range(8):
        e(f"s_add_u32 s{32+ee}, s7, {ee*3584}")
    for i in range(7):
        for ee in range(8):
            e(f"buffer_load_ushort v{8+8*i+ee}, v4, s[12:15], s{32+ee} offen offset:{32*i}")
    e("s_mul_i32 s7, s3, 7168")
    for i in range(7):
        e(f"s_waitcnt vmcnt({8*(6-i) + i})")
        for j in range(4):
            e(f"v_lshl_or_b32 v{64+4*i+j}, v{9+8*i+2*j}, 16, v{8+8*i+2*j}")
        if i == 4:
            e("s_add_u32 s7, s7, 4096")
        e(f"buffer_store_dwordx4 v[{64+4*i}:{67+4*i}], v6, s[20:23], s7 offen offset:{1024*(i%4)}")
    e("s_endpgm")
    lab("P1_RP2")
    e("s_sub_u32 s3, s3, 64")
    e("s_lshl_b32 s3, s3, 2")
    e("s_add_u32 s3, s3, s4")
    e("s_lshr_b32 s5, s3, 3")
    e("s_and_b32 s6, s3, 7")
    e("s_mul_i32 s6, s6, 7")
    e("s_waitcnt lgkmcnt(0)")
    srd(12, 10, 512 * 1792 * 2)
    srd(20, 18, W2F_SZ, W2F_OFF)
    e("v_lshlrev_b32 v4, 12, v3")
    e("v_lshl_add_u32 v4, v2, 1, v4")
    e("s_lshl_b32 s7, s6, 15")
    e("s_lshl_b32 s16, s5, 5")
    e("s_add_u32 s7, s7, s16")
    for i in range(7):
        for hi in range(2):
            e(f"s_add_u32 s{32+2*i+hi}, s7, {i*32768 + hi*16384}")
    for i in range(7):
        for ee in range(8):
            e(f"buffer_load_ushort v{8+8*i+ee}, v4, s[12:15], s{32+2*i+(ee>>2)} offen offset:{1024*(ee&3)}")
    e("s_lshr_b32 s16, s5, 2")
    e("s_mul_i32 s16, s16, 56")
    e("s_add_u32 s16, s16, s6")
    e("s_lshl_b32 s16, s16, 2")
    e("s_and_b32 s17, s5, 3")
    e("s_add_u32 s16, s16, s17")
    e("s_lshl_b32 s7, s16, 10")
    for i in range(7):
        e(f"s_waitcnt vmcnt({8*(6-i) + i})")
        for j in range(4):
            e(f"v_lshl_or_b32 v{64+4*i+j}, v{9+8*i+2*j}, 16, v{8+8*i+2*j}")
        e(f"buffer_store_dwordx4 v[{64+4*i}:{67+4*i}], v6, s[20:23], s7 offen")
        if i < 6:
            e("s_add_u32 s7, s7, 4096")
    lab("P1_END")
    e("s_endpgm")

GC1 = 2 * 0.7978845608028654 * LOG2E
GC2 = GC1 * 0.044715

def gen_p2():
    kernel_begin("p2_kernel")
    e("s_cmp_ge_u32 s2, 512")
    e("s_cbranch_scc1 P2_END")
    e("s_cmp_ge_u32 s2, 256")
    e("s_cbranch_scc1 P2_CONV")
    e("s_load_dwordx2 s[8:9], s[0:1], 72")
    e("s_load_dwordx2 s[18:19], s[0:1], 112")
    e("v_and_b32 v1, 63, v0")
    e("v_readfirstlane_b32 s4, v0")
    e("v_lshlrev_b32 v2, 4, v1")
    e("s_and_b32 s5, s2, 7")
    e("s_lshr_b32 s6, s2, 3")
    e("s_lshr_b32 s4, s4, 6")
    e("s_lshr_b32 s7, s5, 1")
    e("s_lshl_b32 s7, s7, 2")
    e("s_lshr_b32 s16, s6, 3")
    e("s_add_u32 s7, s7, s16")
    e("s_and_b32 s16, s5, 1")
    e("s_lshl_b32 s16, s16, 3")
    e("s_and_b32 s17, s6, 7")
    e("s_add_u32 s16, s16, s17")
    e("s_waitcnt lgkmcnt(0)")
    srd(12, 8, 1792 * 2)
    srd(20, 18, W1F_SZ, W1F_OFF)
    srd(24, 18, XNF_SZ, XNF_OFF)
    srd(28, 18, HF_SZ, HF_OFF)
    e("s_lshl_b32 s32, s16, 4")
    e("s_add_u32 s32, s32, s4")
    e("s_mul_i32 s32, s32, 7168")
    e("s_mul_i32 s33, s4, 7168")
    e("s_lshl_b32 s34, s7, 3")
    e("s_lshl_b32 s35, s4, 1")
    e("s_add_u32 s34, s34, s35")
    e("s_lshl_b32 s35, s34, 14")
    e("s_add_u32 s36, s35, 16384")
    BREG = [64, 96]
    AREG = [128, 156]
    def issue_stage(s):
        buf = s & 1
        e(f"s_add_u32 s37, s32, {s*4*7168}")
        e(f"s_add_u32 s38, s33, {buf*28672}")
        e("s_mov_b32 m0, s38")
        e("s_add_u32 s39, s37, 4096")
        for i in range(4):
            e(f"buffer_load_dwordx4 v2, s[20:23], s37 offen offset:{1024*i} lds")
        e("s_add_u32 s38, s38, 4096")
        e("s_mov_b32 m0, s38")
        e("s_nop 0")
        for i in range(3):
            e(f"buffer_load_dwordx4 v2, s[20:23], s39 offen offset:{1024*i} lds")
        e(f"s_add_u32 s37, s35, {s*4096}")
        e(f"s_add_u32 s39, s36, {s*4096}")
        for j in range(2):
            for k in range(4):
                r = BREG[buf] + 16 * j + 4 * k
                e(f"buffer_load_dwordx4 v[{r}:{r+3}], v2, s[24:27], s{37 if j == 0 else 39} offen offset:{1024*k}")
    issue_stage(0)
    issue_stage(1)
    e("v_lshrrev_b32 v3, 4, v1")
    e("v_lshlrev_b32 v3, 3, v3")
    e("s_mul_i32 s40, s16, 224")
    for i in range(7):
        e(f"buffer_load_dwordx2 v[{184+2*i}:{185+2*i}], v3, s[12:15], s40 offen offset:{32*i}")
    for i in range(56):
        e(f"v_mov_b32 v{4+i}, 0")
    def lds_a(buf, ksl, dst):
        for i in range(7):
            e(f"ds_read_b128 v[{dst+4*i}:{dst+4*i+3}], v2 offset:{buf*28672 + (ksl*7+i)*1024}")
    def compute_stage(s):
        buf = s & 1
        lds_a(buf, 0, AREG[0])
        for ksl in range(4):
            if ksl < 3:
                lds_a(buf, ksl + 1, AREG[(ksl + 1) & 1])
                e("s_waitcnt lgkmcnt(7)")
            else:
                e("s_waitcnt lgkmcnt(0)")
            A = AREG[ksl & 1]
            for i in range(7):
                for j in range(2):
                    a = 4 + 8 * i + 4 * j
                    b = BREG[buf] + 16 * j + 4 * ksl
                    e(f"v_mfma_f32_16x16x32_bf16 v[{a}:{a+3}], v[{A+4*i}:{A+4*i+3}], v[{b}:{b+3}], v[{a}:{a+3}]")
    e("s_waitcnt vmcnt(22)")
    e("s_barrier")
    compute_stage(0)
    e("s_waitcnt vmcnt(0)")
    e("s_barrier")
    issue_stage(2)
    compute_stage(1)
    e("s_waitcnt vmcnt(0)")
    e("s_barrier")
    issue_stage(3)
    compute_stage(2)
    e("s_waitcnt vmcnt(0)")
    e("s_barrier")
    compute_stage(3)
    e("s_mov_b32 s40, 0xffff0000")
    e(f"s_mov_b32 s41, {f2u(-GC1)}")
    e(f"s_mov_b32 s42, {f2u(-GC2)}")
    e("s_lshr_b32 s43, s34, 2")
    e("s_mul_i32 s43, s43, 56")
    e("s_and_b32 s44, s34, 3")
    e("s_mul_i32 s45, s16, 7")
    e("s_nop 4")
    for i in range(7):
        e(f"v_lshlrev_b32 v200, 16, v{184+2*i}")
        e(f"v_and_b32 v201, s40, v{184+2*i}")
        e(f"v_lshlrev_b32 v202, 16, v{185+2*i}")
        e(f"v_and_b32 v203, s40, v{185+2*i}")
        e(f"s_add_u32 s46, s45, {i}")
        e("s_lshr_b32 s47, s46, 1")
        e("s_add_u32 s47, s47, s43")
        e("s_lshl_b32 s47, s47, 2")
        e("s_add_u32 s47, s47, s44")
        e("s_lshl_b32 s47, s47, 10")
        e("s_and_b32 s46, s46, 1")
        e("s_lshl_b32 s46, s46, 3")
        e("s_add_u32 s47, s47, s46")
        for j in range(2):
            a = 4 + 8 * i + 4 * j
            T = 204 + 12 * j
            e(f"v_cvt_pk_bf16_f32 v{T}, v{a}, v{a+1}")
            e(f"v_cvt_pk_bf16_f32 v{T+1}, v{a+2}, v{a+3}")
            e(f"v_lshlrev_b32 v{a}, 16, v{T}")
            e(f"v_and_b32 v{a+1}, s40, v{T}")
            e(f"v_lshlrev_b32 v{a+2}, 16, v{T+1}")
            e(f"v_and_b32 v{a+3}, s40, v{T+1}")
            for r in range(4):
                e(f"v_add_f32 v{a+r}, v{a+r}, v{200+r}")
            e(f"v_cvt_pk_bf16_f32 v{T}, v{a}, v{a+1}")
            e(f"v_cvt_pk_bf16_f32 v{T+1}, v{a+2}, v{a+3}")
            e(f"v_lshlrev_b32 v{a}, 16, v{T}")
            e(f"v_and_b32 v{a+1}, s40, v{T}")
            e(f"v_lshlrev_b32 v{a+2}, 16, v{T+1}")
            e(f"v_and_b32 v{a+3}, s40, v{T+1}")
            for r in range(4):
                e(f"v_mul_f32 v{T+r}, v{a+r}, v{a+r}")
            for r in range(4):
                e(f"v_mov_b32 v{T+4+r}, s41")
            for r in range(4):
                e(f"v_fmac_f32 v{T+4+r}, s42, v{T+r}")
            for r in range(4):
                e(f"v_mul_f32 v{T+r}, v{a+r}, v{T+4+r}")
            for r in range(4):
                e(f"v_exp_f32 v{T+r}, v{T+r}")
            e("s_nop 0")
            for r in range(4):
                e(f"v_add_f32 v{T+r}, 1.0, v{T+r}")
            for r in range(4):
                e(f"v_rcp_f32 v{T+r}, v{T+r}")
            e("s_nop 0")
            for r in range(4):
                e(f"v_mul_f32 v{T+r}, v{a+r}, v{T+r}")
            e(f"v_cvt_pk_bf16_f32 v{T+8}, v{T}, v{T+1}")
            e(f"v_cvt_pk_bf16_f32 v{T+9}, v{T+2}, v{T+3}")
            e(f"buffer_store_dwordx2 v[{T+8}:{T+9}], v2, s[28:31], s47 offen offset:{1024*j}")
    e("s_endpgm")

    lab("P2_CONV")
    CH = 38400
    CS = 4160
    KB = 8 * CS
    e("s_load_dwordx2 s[8:9], s[0:1], 48")
    e("s_load_dwordx2 s[18:19], s[0:1], 112")
    e("v_and_b32 v1, 63, v0")
    e("v_readfirstlane_b32 s4, v0")
    e("v_lshlrev_b32 v2, 4, v1")
    e("s_sub_u32 s3, s2, 256")
    e("s_lshr_b32 s4, s4, 6")
    e("s_lshr_b32 s5, s4, 1")
    e("s_and_b32 s6, s4, 1")
    e("s_lshl_b32 s7, s3, 1")
    e("s_add_u32 s7, s7, s5")
    e(f"s_mul_i32 s16, s5, {CH}")
    e("s_waitcnt lgkmcnt(0)")
    srd(12, 8, 1024)
    srd(20, 18, XNT_SZ, XNT_OFF)
    srd(24, 18, KP_SZ, KP_OFF)
    srd(28, 18, ST_SZ, ST_OFF)
    e(f"s_mul_i32 s32, s7, {XNT_PITCH}")
    e("s_lshl_b32 s33, s6, 3")
    e("s_add_u32 s32, s32, s33")
    e(f"s_mul_i32 s33, s6, {4*CS}")
    e("s_add_u32 s33, s33, s16")
    for i in range(4):
        e(f"s_add_u32 s34, s33, {i*CS}")
        e("s_mov_b32 m0, s34")
        e(f"s_add_u32 s35, s32, {2*i}")
        for k in range(4):
            e(f"buffer_load_dwordx4 v2, s[20:23], s35 offen offset:{1024*k} lds")
    e(f"s_mul_i32 s35, s7, {KP_PITCH}")
    e("s_lshl_b32 s36, s6, 11")
    e("s_add_u32 s35, s35, s36")
    e("s_add_u32 s34, s16, s36")
    e(f"s_add_u32 s34, s34, {KB}")
    e("s_mov_b32 m0, s34")
    e("s_nop 0")
    for k in range(3):
        e(f"buffer_load_dwordx4 v2, s[24:27], s35 offen offset:{1024*k} lds")
    e("s_lshl_b32 s36, s7, 1")
    e("v_mov_b32 v3, s36")
    e("buffer_load_ushort v4, v3, s[12:15], 0 offen")
    e("v_lshrrev_b32 v5, 2, v1")
    e(f"v_mul_u32_u24 v5, {CS}, v5")
    e("v_and_b32 v6, 3, v1")
    e("v_lshl_add_u32 v5, v6, 4, v5")
    e("v_add_u32 v5, s33, v5")
    for j in range(4):
        e(f"v_mov_b32 v{8+j}, 0")
    e("v_cmp_gt_u32 vcc, 16, v1")
    e("s_and_saveexec_b64 s[38:39], vcc")
    e("ds_write_b128 v5, v[8:11] offset:4096")
    e("s_mov_b64 exec, s[38:39]")
    e("v_and_b32 v6, 15, v1")
    e("v_lshrrev_b32 v7, 4, v1")
    e("v_sub_u32 v5, 7, v6")
    e("v_and_b32 v5, 7, v5")
    e(f"v_mul_u32_u24 v5, {CS}, v5")
    e("v_lshrrev_b32 v8, 3, v6")
    e("v_sub_u32 v8, v7, v8")
    e("v_lshl_add_u32 v5, v8, 4, v5")
    e("s_lshl_b32 s36, s6, 6")
    e("s_sub_u32 s36, s16, s36")
    e("s_add_u32 s36, s36, 80")
    e("v_add_u32 v12, s36, v5")
    e("v_lshrrev_b32 v5, 1, v7")
    e("v_mul_u32_u24 v5, 2560, v5")
    e("v_lshl_add_u32 v5, v6, 5, v5")
    e("v_and_b32 v8, 1, v7")
    e("v_lshl_add_u32 v5, v8, 4, v5")
    e("s_lshl_b32 s36, s6, 5")
    e("s_sub_u32 s36, s16, s36")
    e(f"s_add_u32 s36, s36, {KB+32}")
    e("v_add_u32 v13, s36, v5")
    ACC = 16
    for i in range(32):
        e(f"v_mov_b32 v{ACC+i}, 0")
    e("s_waitcnt vmcnt(0) lgkmcnt(0)")
    e("s_barrier")
    NB = 3
    FR = [48 + 24 * b for b in range(NB)]
    def nI(pp):
        return 4 - (2 * pp) // 16
    def issue(pp):
        R = FR[pp % NB]
        cnt = 0
        for h in range(2):
            q0 = 4 * pp + h
            e(f"ds_read_b128 v[{R+4*h}:{R+4*h+3}], v12 offset:{32*(125-q0)}")
            cnt += 1
        for I in range(4 - nI(pp), 4):
            e(f"ds_read_b128 v[{R+8+4*I}:{R+11+4*I}], v13 offset:{32*(16*I-2*pp+15)}")
            cnt += 1
        return cnt
    cnts = {}
    for pp in range(NB - 1):
        cnts[pp] = issue(pp)
    for pp in range(32):
        if pp + NB - 1 < 32:
            cnts[pp + NB - 1] = issue(pp + NB - 1)
        pend = sum(cnts[k] for k in range(pp + 1, min(32, pp + NB)))
        e(f"s_waitcnt lgkmcnt({pend})")
        R = FR[pp % NB]
        for I in range(4 - nI(pp), 4):
            for h in range(2):
                a = ACC + 8 * I + 4 * h
                e(f"v_mfma_f32_16x16x32_bf16 v[{a}:{a+3}], v[{R+4*h}:{R+4*h+3}], v[{R+8+4*I}:{R+11+4*I}], v[{a}:{a+3}]")
    e("s_nop 7")
    e("s_barrier")
    e("s_lshl_b32 s36, s6, 12")
    e("s_add_u32 s36, s36, s16")
    e(f"s_add_u32 s36, s36, {CS}")
    e("v_add_u32 v14, s36, v2")
    e("s_xor_b32 s37, s6, 1")
    e("s_lshl_b32 s36, s37, 12")
    e("s_add_u32 s36, s36, s16")
    e(f"s_add_u32 s36, s36, {CS}")
    e("v_add_u32 v15, s36, v2")
    e("s_cmp_eq_u32 s6, 0")
    e("s_cbranch_scc1 P2_C_P0")
    for t in range(4):
        e(f"ds_write_b128 v14, v[{ACC+4*t}:{ACC+4*t+3}] offset:{1024*t}")
    for i in range(16):
        e(f"v_mov_b32 v{48+i}, v{ACC+16+i}")
    e("s_branch P2_C_J")
    lab("P2_C_P0")
    for t in range(4):
        e(f"ds_write_b128 v14, v[{ACC+16+4*t}:{ACC+16+4*t+3}] offset:{1024*t}")
    for i in range(16):
        e(f"v_mov_b32 v{48+i}, v{ACC+i}")
    lab("P2_C_J")
    e("s_waitcnt lgkmcnt(0)")
    e("s_barrier")
    for t in range(4):
        e(f"ds_read_b128 v[{64+4*t}:{67+4*t}], v15 offset:{1024*t}")
    e("v_lshlrev_b32 v5, 6, v6")
    e("v_lshl_add_u32 v5, v7, 3, v5")
    e("s_lshl_b32 s36, s6, 11")
    e("s_sub_u32 s36, s16, s36")
    e(f"s_add_u32 s36, s36, {4088-1024-32}")
    e("v_sub_u32 v8, s36, v5")
    for t in range(4):
        Il, h = t >> 1, t & 1
        e(f"ds_read_b64 v[{80+2*t}:{81+2*t}], v8 offset:{1024*(1-Il) + 32*(1-h)}")
    e("s_lshl_b32 s36, s7, 12")
    e("s_lshl_b32 s37, s6, 11")
    e("s_add_u32 s36, s36, s37")
    e("s_mov_b32 s40, 0xffff0000")
    e("v_lshlrev_b32 v4, 16, v4")
    e("s_waitcnt lgkmcnt(0)")
    for t in range(4):
        Il, h = t >> 1, t & 1
        a = 48 + 4 * t
        for r in range(4):
            e(f"v_add_f32 v{a+r}, v{a+r}, v{64+4*t+r}")
        e(f"v_cvt_pk_bf16_f32 v88, v{a}, v{a+1}")
        e(f"v_cvt_pk_bf16_f32 v89, v{a+2}, v{a+3}")
        e(f"v_lshlrev_b32 v{a}, 16, v88")
        e(f"v_and_b32 v{a+1}, s40, v88")
        e(f"v_lshlrev_b32 v{a+2}, 16, v89")
        e(f"v_and_b32 v{a+3}, s40, v89")
        U = 80 + 2 * t
        e(f"v_and_b32 v90, s40, v{U+1}")
        e(f"v_lshlrev_b32 v91, 16, v{U+1}")
        e(f"v_and_b32 v92, s40, v{U}")
        e(f"v_lshlrev_b32 v93, 16, v{U}")
        for r in range(4):
            e(f"v_mul_f32 v{90+r}, v{90+r}, v4")
        e("v_cvt_pk_bf16_f32 v88, v90, v91")
        e("v_cvt_pk_bf16_f32 v89, v92, v93")
        e("v_lshlrev_b32 v90, 16, v88")
        e("v_and_b32 v91, s40, v88")
        e("v_lshlrev_b32 v92, 16, v89")
        e("v_and_b32 v93, s40, v89")
        for r in range(4):
            e(f"v_add_f32 v{a+r}, v{a+r}, v{90+r}")
        e(f"v_cvt_pk_bf16_f32 v{96+2*t}, v{a}, v{a+1}")
        e(f"v_cvt_pk_bf16_f32 v{97+2*t}, v{a+2}, v{a+3}")
        e(f"buffer_store_dwordx2 v[{96+2*t}:{97+2*t}], v5, s[28:31], s36 offen offset:{1024*Il+32*h}")
    lab("P2_END")
    e("s_endpgm")

def gen_p3():
    kernel_begin("p3_kernel")
    e("s_cmp_ge_u32 s2, 256")
    e("s_cbranch_scc1 P3_END")
    e("s_load_dwordx2 s[8:9], s[0:1], 0")
    e("s_load_dwordx4 s[40:43], s[0:1], 88")
    e("s_load_dwordx2 s[18:19], s[0:1], 112")
    e("v_and_b32 v1, 63, v0")
    e("v_readfirstlane_b32 s4, v0")
    e("v_lshlrev_b32 v2, 4, v1")
    e("s_and_b32 s5, s2, 7")
    e("s_lshr_b32 s6, s2, 3")
    e("s_lshr_b32 s4, s4, 6")
    e("s_lshl_b32 s7, s5, 2")
    e("s_lshr_b32 s16, s6, 3")
    e("s_add_u32 s7, s7, s16")
    e("s_and_b32 s16, s6, 7")
    e("s_waitcnt lgkmcnt(0)")
    srd(12, 8, 0x200000)
    srd(20, 18, W2F_SZ, W2F_OFF)
    srd(24, 18, HF_SZ, HF_OFF)
    srd(28, 18, ST_SZ, ST_OFF)
    srd(44, 40, 1024)
    srd(48, 42, 0x200000)
    e("s_mul_i32 s34, s4, 14")
    e("s_mul_i32 s32, s16, 56")
    e("s_add_u32 s32, s32, s34")
    e("s_lshl_b32 s32, s32, 12")
    e("s_mul_i32 s33, s7, 56")
    e("s_add_u32 s33, s33, s34")
    e("s_lshl_b32 s33, s33, 12")
    D = 6
    FR = [32 + 32 * b for b in range(D)]
    def issue(k):
        R = FR[k % D]
        e(f"s_add_u32 s34, s32, {k*4096}")
        e(f"s_add_u32 s35, s33, {k*4096}")
        for i in range(4):
            e(f"buffer_load_dwordx4 v[{R+4*i}:{R+4*i+3}], v2, s[20:23], s34 offen offset:{1024*i}")
        for j in range(4):
            e(f"buffer_load_dwordx4 v[{R+16+4*j}:{R+19+4*j}], v2, s[24:27], s35 offen offset:{1024*j}")
    for k in range(D - 1):
        issue(k)
    for i in range(64):
        e(f"v_accvgpr_write_b32 a{i}, 0")
    for k in range(14):
        if k + D - 1 < 14:
            issue(k + D - 1)
        pend = 8 * (min(14, k + D) - (k + 1))
        e(f"s_waitcnt vmcnt({pend})")
        R = FR[k % D]
        for i in range(4):
            for j in range(4):
                a = 16 * j + 4 * i
                e(f"v_mfma_f32_16x16x32_bf16 a[{a}:{a+3}], v[{R+4*i}:{R+4*i+3}], v[{R+16+4*j}:{R+19+4*j}], a[{a}:{a+3}]")
    e("v_and_b32 v4, 15, v1")
    e("v_lshrrev_b32 v5, 4, v1")
    e("s_lshl_b32 s34, s7, 6")
    e("s_lshl_b32 s35, s4, 4")
    e("s_add_u32 s34, s34, s35")
    e("v_add_u32 v6, s34, v4")
    e("v_lshlrev_b32 v7, 10, v6")
    e("v_lshl_add_u32 v7, v5, 3, v7")
    e("s_lshl_b32 s35, s16, 7")
    for i in range(4):
        e(f"buffer_load_dwordx2 v[{32+2*i}:{33+2*i}], v7, s[12:15], s35 offen offset:{32*i}")
    e("v_lshlrev_b32 v8, 3, v5")
    for i in range(4):
        e(f"buffer_load_dwordx2 v[{40+2*i}:{41+2*i}], v8, s[44:47], s35 offen offset:{32*i}")
    e("v_lshlrev_b32 v9, 14, v5")
    e("v_lshl_add_u32 v9, v6, 1, v9")
    e("s_lshl_b32 s36, s16, 18")
    for i in range(4):
        for r in range(4):
            e(f"s_add_u32 s37, s36, {(16*i + r)*4096}")
            e(f"buffer_load_ushort v{48+4*i+r}, v9, s[28:31], s37 offen")
    e("s_nop 7")
    e("s_lshl_b32 s36, s4, 14")
    e("v_add_u32 v10, s36, v2")
    for j in range(4):
        for i in range(4):
            a = 16 * j + 4 * i
            e(f"ds_write_b128 v10, a[{a}:{a+3}] offset:{(4*j+i)*1024}")
    e("s_waitcnt lgkmcnt(0)")
    e("s_barrier")
    e("s_lshl_b32 s36, s4, 12")
    e("v_add_u32 v10, s36, v2")
    for ww in range(4):
        for i in range(4):
            r = 64 + 16 * ww + 4 * i
            e(f"ds_read_b128 v[{r}:{r+3}], v10 offset:{ww*16384 + i*1024}")
    e("s_mov_b32 s40, 0xffff0000")
    e(f"s_mov_b32 s41, {f2u(-LOG2E)}")
    e("s_waitcnt lgkmcnt(0)")
    for q in range(16):
        e(f"v_add_f32 v{64+q}, v{64+q}, v{80+q}")
        e(f"v_add_f32 v{96+q}, v{96+q}, v{112+q}")
    for q in range(16):
        e(f"v_add_f32 v{64+q}, v{64+q}, v{96+q}")
    e("s_waitcnt vmcnt(0)")
    def rnd4(a, T):
        e(f"v_cvt_pk_bf16_f32 v{T}, v{a}, v{a+1}")
        e(f"v_cvt_pk_bf16_f32 v{T+1}, v{a+2}, v{a+3}")
        e(f"v_lshlrev_b32 v{a}, 16, v{T}")
        e(f"v_and_b32 v{a+1}, s40, v{T}")
        e(f"v_lshlrev_b32 v{a+2}, 16, v{T+1}")
        e(f"v_and_b32 v{a+3}, s40, v{T+1}")
    def unp4(dst, src):
        e(f"v_lshlrev_b32 v{dst}, 16, v{src}")
        e(f"v_and_b32 v{dst+1}, s40, v{src}")
        e(f"v_lshlrev_b32 v{dst+2}, 16, v{src+1}")
        e(f"v_and_b32 v{dst+3}, s40, v{src+1}")
    for i in range(4):
        a = 64 + 4 * i
        rnd4(a, 12)
        unp4(16, 40 + 2 * i)
        for r in range(4):
            e(f"v_add_f32 v{a+r}, v{a+r}, v{16+r}")
        rnd4(a, 12)
        for r in range(4):
            e(f"v_mul_f32 v{16+r}, s41, v{a+r}")
        for r in range(4):
            e(f"v_exp_f32 v{16+r}, v{16+r}")
        e("s_nop 0")
        for r in range(4):
            e(f"v_add_f32 v{16+r}, 1.0, v{16+r}")
        for r in range(4):
            e(f"v_rcp_f32 v{16+r}, v{16+r}")
        e("s_nop 0")
        for r in range(4):
            e(f"v_mul_f32 v{a+r}, v{a+r}, v{16+r}")
        rnd4(a, 12)
        for r in range(4):
            e(f"v_lshlrev_b32 v{16+r}, 16, v{48+4*i+r}")
        for r in range(4):
            e(f"v_mul_f32 v{a+r}, v{a+r}, v{16+r}")
        rnd4(a, 12)
        unp4(16, 32 + 2 * i)
        for r in range(4):
            e(f"v_add_f32 v{a+r}, v{a+r}, v{16+r}")
        e(f"v_cvt_pk_bf16_f32 v{20+2*i}, v{a}, v{a+1}")
        e(f"v_cvt_pk_bf16_f32 v{21+2*i}, v{a+2}, v{a+3}")
        e(f"buffer_store_dwordx2 v[{20+2*i}:{21+2*i}], v7, s[48:51], s35 offen offset:{32*i}")
    lab("P3_END")
    e("s_endpgm")

HEADER = """; S4D conv + FFN fused op, 3 launches (generated by gen/gen.py)
; @launch kernel=p1_kernel grid=(768,1,1) block=(256,1,1) lds=16896
; @launch kernel=p2_kernel grid=(512,1,1) block=(256,1,1) lds=76800
; @launch kernel=p3_kernel grid=(256,1,1) block=(256,1,1) lds=65536
.amdgcn_target "amdgcn-amd-amdhsa--gfx950"
.text
"""

gen_p1()
gen_p2()
gen_p3()
txt = HEADER + "\n".join(L) + "\n" + '.section .rodata,"a"\n'
txt += kd("p1_kernel", 120, 64, 120)
txt += kd("p2_kernel", 232, 64, 232)
txt += kd("p3_kernel", 320, 64, 256)
open(OUT, "w").write(txt)
print("wrote", OUT, len(txt))
```

```python
import struct, sys, os

OUT = sys.argv[1] if len(sys.argv) > 1 else "recurrent_scan__ssm_conv_s4d__dense_activation_gelu__prompt.s"
SPLIT = os.environ.get("SPLIT", "") != ""
STAMP = os.environ.get("STAMP", "") != ""
DUMPK = os.environ.get("DUMPK", "") != ""

L = []
def e(s=""):
    L.append("    " + s)
def lab(s):
    L.append(s + ":")
def f2u(x):
    return "0x%08x" % struct.unpack("<I", struct.pack("<f", x))[0]

XNF_OFF = 0x0;        XNF_SZ = 0x200000
XNB_OFF = 0x200000;   XNB_SZ = 0x200000
W2F_OFF = 0x400000;   W2F_SZ = 8 * 16 * 14336
HF_OFF  = 0x600000;   HF_SZ = 32 * 16 * 14336
ST_OFF  = 0xD80000;   ST_SZ = 512 * 4096
FL_OFF  = 0xF80000;   FL_SZ = 4096
KP_OFF  = 0x1000000;  KP_SZ = 512 * 5120
DBG_OFF = 0x1800000

LOG2E = 1.4426950408889634
LOG2E_HI = struct.unpack("<f", struct.pack("<f", LOG2E))[0]
LOG2E_LO = LOG2E - LOG2E_HI
LN2 = 0.6931471805599453
INV2PI = 0.15915494309189535
GC1 = 2 * 0.7978845608028654 * LOG2E
GC2 = GC1 * 0.044715
SPIN_MAX = 1 << 20

P_X, P_LAR, P_AIM, P_CR, P_CI, P_LDT, P_DSK = 4, 6, 8, 10, 12, 14, 16
P_W1, P_B1, P_W2, P_B2, P_OUT, P_DBG, P_WS = 20, 22, 24, 26, 28, 30, 32

def srd(dst, ptr, size, off=0):
    if off:
        e(f"s_add_u32 s{dst}, s{ptr}, 0x{off:x}")
        e(f"s_addc_u32 s{dst+1}, s{ptr+1}, 0")
    else:
        e(f"s_mov_b32 s{dst}, s{ptr}")
        e(f"s_mov_b32 s{dst+1}, s{ptr+1}")
    e(f"s_mov_b32 s{dst+2}, 0x{size:x}")
    e(f"s_mov_b32 s{dst+3}, 0x00020000")

_st = [0]
def stamp(reset=False):
    if not STAMP: return
    if reset:
        _st[0] = 0
        e("s_memrealtime s[78:79]")
    k = _st[0]; _st[0] += 1
    assert k < 20
    e("s_memtime s[100:101]")
    e("s_waitcnt lgkmcnt(0)")
    e(f"s_mov_b32 s{80+k}, s100")
def stamp_flush():
    if not STAMP: return
    stamp()
    e("s_mov_b64 exec, 1")
    e("s_memrealtime s[100:101]")
    srd(36, P_WS, 0x80000, DBG_OFF)
    e("v_readfirstlane_b32 s40, v0")
    e("s_lshr_b32 s40, s40, 6")
    e("s_lshl_b32 s41, s2, 2")
    e("s_add_u32 s40, s40, s41")
    e("s_lshl_b32 s40, s40, 7")
    e("v_mov_b32 v1, 0")
    e("s_waitcnt lgkmcnt(0)")
    e("v_mov_b32 v2, s100")
    e("v_mov_b32 v3, s78")
    e(f"v_mov_b32 v4, {_st[0]}")
    e("buffer_store_dwordx3 v[2:4], v1, s[36:39], s40 offen")
    for k in range(_st[0]):
        e(f"v_mov_b32 v5, s{80+k}")
        e(f"buffer_store_dword v5, v1, s[36:39], s40 offen offset:{16+4*k}")
        e("s_nop 1")
    e("s_mov_b64 exec, -1")

def kernel_begin(name):
    L.append(f".globl {name}")
    L.append(".p2align 8")
    L.append(f".type {name},@function")
    lab(name)

def kd(name, vgpr, sgpr, accum):
    return f""".p2align 6
.amdhsa_kernel {name}
  .amdhsa_next_free_vgpr {vgpr}
  .amdhsa_next_free_sgpr {sgpr}
  .amdhsa_accum_offset {accum}
  .amdhsa_group_segment_fixed_size 0
  .amdhsa_kernarg_size 120
  .amdhsa_user_sgpr_count 2
  .amdhsa_user_sgpr_kernarg_segment_ptr 1
  .amdhsa_system_sgpr_workgroup_id_x 1
.end_amdhsa_kernel
"""

def cmul(d, x, y, t):
    e(f"v_pk_mul_f32 v[{t}:{t+1}], v[{x}:{x+1}], v[{y}:{y+1}] op_sel:[0,0] op_sel_hi:[0,1]")
    e(f"v_pk_fma_f32 v[{d}:{d+1}], v[{x}:{x+1}], v[{y}:{y+1}], v[{t}:{t+1}] op_sel:[1,1,0] op_sel_hi:[1,0,1] neg_lo:[1,0,0]")

_uid = [0]
def poll(srd_r, voff, soff, expect, nlanes, vt, tag):
    _uid[0] += 1
    lb = f"POLL_{tag}_{_uid[0]}"
    e(f"s_mov_b32 s76, {SPIN_MAX}")
    if nlanes < 64:
        e(f"s_mov_b32 s74, 0x{(1 << nlanes) - 1:x}")
        e("s_mov_b32 s75, 0")
    else:
        e("s_mov_b64 s[74:75], -1")
    e(f"s_mov_b32 s77, 0x{expect:x}")
    lab(lb)
    e(f"buffer_load_dword v{vt}, v{voff}, s[{srd_r}:{srd_r+3}], {soff} offen sc1")
    e("s_waitcnt vmcnt(0)")
    e(f"v_cmp_ne_u32 vcc, s77, v{vt}")
    e("s_and_b64 vcc, vcc, s[74:75]")
    e(f"s_cbranch_scc0 {lb}_D")
    e("s_sleep 1")
    e("s_sub_u32 s76, s76, 1")
    e("s_cmp_lg_u32 s76, 0")
    e(f"s_cbranch_scc1 {lb}")
    lab(lb + "_D")

def dpp_reduce(regs, op):
    steps = ["quad_perm:[1,0,3,2] row_mask:0xf bank_mask:0xf", "quad_perm:[2,3,0,1] row_mask:0xf bank_mask:0xf",
             "row_half_mirror row_mask:0xf bank_mask:0xf", "row_mirror row_mask:0xf bank_mask:0xf",
             "row_bcast:15 row_mask:0xa bank_mask:0xf", "row_bcast:31 row_mask:0xc bank_mask:0xf"]
    for st in steps:
        e(f"s_nop {1 if len(regs) < 2 else 0}" if len(regs) < 3 else "s_nop 0")
        for r in regs:
            e(f"{op}_dpp v{r}, v{r}, v{r} {st}")
    e("s_nop 0")

def gen_G(px, ln, g1, g2, waits):
    stamp(True)
    e("s_and_b32 s61, s2, 7")
    e("s_lshr_b32 s62, s2, 3")
    e("s_lshr_b32 s63, s61, 1")
    e("s_lshl_b32 s63, s63, 2")
    e("s_lshr_b32 s67, s62, 3")
    e("s_add_u32 s63, s63, s67")
    e("s_and_b32 s64, s61, 1")
    e("s_lshl_b32 s64, s64, 3")
    e("s_and_b32 s66, s62, 7")
    e("s_add_u32 s64, s64, s66")
    e("s_lshl_b32 s65, s61, 2")
    e("s_add_u32 s65, s65, s67")
    e("s_waitcnt lgkmcnt(0)")
    srd(36, P_X, 0x200000)
    srd(40, P_W1, 512 * 1792 * 2)
    srd(44, P_WS, XNF_SZ, XNF_OFF)
    srd(48, P_WS, XNB_SZ, XNB_OFF)
    srd(52, P_WS, FL_SZ, FL_OFF)
    srd(56, P_DBG, 256)
    nvm = 0
    if ln:
        e("s_lshl_b32 s67, s2, 13")
        e("s_lshl_b32 s68, s60, 11")
        e("s_add_u32 s67, s67, s68")
        e("buffer_load_dwordx4 v[64:67], v2, s[36:39], s67 offen")
        e("buffer_load_dwordx4 v[68:71], v2, s[36:39], s67 offen offset:1024")
    SB = 14336
    def dma(s, buf):
        e(f"s_add_u32 s68, s61, {s*64*3584}")
        for q in range(4):
            e(f"s_add_u32 s70, s62, {buf*SB + q*1024}")
            e("s_mov_b32 m0, s70")
            if q == 3:
                e("s_mov_b32 exec_hi, 0")
            else:
                e("s_nop 0")
            e(f"buffer_load_dwordx4 v{60+q}, s[40:43], s68 offen lds")
        e("s_mov_b64 exec, -1")
    if g1:
        e("s_mul_i32 s70, s60, 224")
        e("s_mov_b32 s72, 4682")
        for q in range(4):
            e(f"v_add_u32 v{60+q}, s70, v1")
            if q:
                e(f"v_add_u32 v{60+q}, {64*q}, v{60+q}")
            e(f"v_mul_lo_u32 v230, v{60+q}, s72")
            e("v_lshrrev_b32 v230, 16, v230")
            e("v_mul_u32_u24 v231, 14, v230")
            e(f"v_sub_u32 v231, v{60+q}, v231")
            e("v_mul_u32_u24 v230, 3584, v230")
            e(f"v_lshl_add_u32 v{60+q}, v231, 4, v230")
        e("s_mul_i32 s61, s64, 224")
        e("s_mul_i32 s62, s60, 3584")
        for s in range(4):
            dma(s, s)
        nvm += 16
        srd(36, P_B1, 1792 * 2)
        e("v_lshrrev_b32 v230, 4, v1")
        e("v_lshlrev_b32 v230, 3, v230")
        for i in range(7):
            e(f"buffer_load_dwordx2 v[{216+2*i}:{217+2*i}], v230, s[36:39], s61 offen offset:{32*i}")
        nvm += 7
    e("s_mov_b32 s72, 0xffff0000")
    if ln:
        LT = 4 * SB; LP = 1040; T2 = LT + 8 * LP
        e(f"s_mov_b32 s73, {f2u(1.0/512)}")
        stamp()
        e(f"s_waitcnt vmcnt({nvm})")
        stamp()
        for i in range(2):
            for j in range(4):
                e(f"v_lshlrev_b32 v{72+8*i+2*j}, 16, v{64+4*i+j}")
                e(f"v_and_b32 v{73+8*i+2*j}, s72, v{64+4*i+j}")
        for i in range(2):
            b = 72 + 8 * i; t = 88 + 4 * i
            e(f"v_pk_add_f32 v[{t}:{t+1}], v[{b}:{b+1}], v[{b+2}:{b+3}]")
            e(f"v_pk_add_f32 v[{t+2}:{t+3}], v[{b+4}:{b+5}], v[{b+6}:{b+7}]")
        for i in range(2):
            t = 88 + 4 * i
            e(f"v_pk_add_f32 v[{t}:{t+1}], v[{t}:{t+1}], v[{t+2}:{t+3}]")
        for i in range(2):
            t = 88 + 4 * i
            e(f"v_add_f32 v{t}, v{t}, v{t+1}")
        dpp_reduce([88, 92], "v_add_f32")
        e("v_readlane_b32 s70, v88, 63")
        e("v_readlane_b32 s71, v92, 63")
        e("v_mov_b32 v90, s73")
        e("s_nop 0")
        e("v_mul_f32 v89, s70, v90")
        e("v_mul_f32 v93, s71, v90")
        for i in range(2):
            b = 72 + 8 * i; m = 88 + 4 * i; d = 96 + 8 * i
            for j in range(4):
                e(f"v_pk_add_f32 v[{d+2*j}:{d+2*j+1}], v[{b+2*j}:{b+2*j+1}], v[{m}:{m+1}] op_sel:[0,1] op_sel_hi:[1,1] neg_lo:[0,1] neg_hi:[0,1]")
        for i in range(2):
            d = 96 + 8 * i; t = 112 + 2 * i
            e(f"v_pk_mul_f32 v[{t}:{t+1}], v[{d}:{d+1}], v[{d}:{d+1}]")
        for j in range(1, 4):
            for i in range(2):
                d = 96 + 8 * i; t = 112 + 2 * i
                e(f"v_pk_fma_f32 v[{t}:{t+1}], v[{d+2*j}:{d+2*j+1}], v[{d+2*j}:{d+2*j+1}], v[{t}:{t+1}]")
        e("v_add_f32 v112, v112, v113")
        e("v_add_f32 v114, v114, v115")
        dpp_reduce([112, 114], "v_add_f32")
        e("v_readlane_b32 s70, v112, 63")
        e("v_readlane_b32 s71, v114, 63")
        e(f"s_mov_b32 s73, {f2u(1e-5)}")
        e("v_cvt_pk_bf16_f32 v116, v89, v93")
        e("v_mul_f32 v112, s70, v90")
        e("v_mul_f32 v113, s71, v90")
        e("v_lshlrev_b32 v89, 16, v116")
        e("v_and_b32 v93, s72, v116")
        def rnd2(a, b):
            e(f"v_cvt_pk_bf16_f32 v116, v{a}, v{b}")
            e(f"v_lshlrev_b32 v{a}, 16, v116")
            e(f"v_and_b32 v{b}, s72, v116")
        rnd2(112, 113)
        e("v_add_f32 v112, s73, v112")
        e("v_add_f32 v113, s73, v113")
        rnd2(112, 113)
        e("v_sqrt_f32 v112, v112")
        e("v_sqrt_f32 v113, v113")
        e("s_nop 0")
        rnd2(112, 113)
        e("v_rcp_f32 v91, v112")
        e("v_rcp_f32 v95, v113")
        e("s_nop 0")
        e("v_fma_f32 v114, -v112, v91, 1.0")
        e("v_fma_f32 v115, -v113, v95, 1.0")
        e("v_fmac_f32 v91, v91, v114")
        e("v_fmac_f32 v95, v95, v115")
        for i in range(2):
            b = 72 + 8 * i; m = 88 + 4 * i; d = 96 + 8 * i; P = 64 + 4 * i; H = 120 + 4 * i
            for j in range(4):
                e(f"v_pk_add_f32 v[{d+2*j}:{d+2*j+1}], v[{b+2*j}:{b+2*j+1}], v[{m}:{m+1}] op_sel:[0,1] op_sel_hi:[1,1] neg_lo:[0,1] neg_hi:[0,1]")
            for j in range(4):
                e(f"v_cvt_pk_bf16_f32 v{P+j}, v{d+2*j}, v{d+2*j+1}")
            for j in range(4):
                e(f"v_lshlrev_b32 v{d+2*j}, 16, v{P+j}")
                e(f"v_and_b32 v{d+2*j+1}, s72, v{P+j}")
            for j in range(4):
                e(f"v_pk_mul_f32 v[{d+2*j}:{d+2*j+1}], v[{d+2*j}:{d+2*j+1}], v[{m+2}:{m+3}] op_sel:[0,1] op_sel_hi:[1,1]")
            for j in range(4):
                e(f"v_cvt_pk_bf16_f32 v{P+j}, v{d+2*j}, v{d+2*j+1}")
            for j in range(4):
                e(f"v_lshlrev_b32 v{d+2*j}, 16, v{P+j}")
                e(f"v_and_b32 v{d+2*j+1}, s72, v{P+j}")
            for j in range(4):
                e(f"v_cvt_pk_f16_f32 v{H+j}, v{d+2*j}, v{d+2*j+1}")
        e(f"s_mul_i32 s70, s60, {2*LP}")
        e(f"s_add_u32 s70, s70, {LT}")
        e("v_add_u32 v230, s70, v2")
        for i in range(2):
            e(f"ds_write_b128 v230, v[{64+4*i}:{67+4*i}] offset:{LP*i}")
            e(f"ds_write_b128 v230, v[{120+4*i}:{123+4*i}] offset:{T2 - LT + LP*i}")
        stamp()
        e("s_waitcnt lgkmcnt(0)")
        e("s_barrier")
        e("s_cmp_ge_u32 s60, 2")
        e(f"s_cbranch_scc1 {px}_LNB")
        e("v_and_b32 v230, 7, v1")
        e("v_lshrrev_b32 v231, 5, v1")
        e("v_bfe_u32 v232, v1, 3, 2")
        e(f"v_mul_u32_u24 v233, {LP}, v230")
        e("v_lshl_add_u32 v233, v231, 6, v233")
        e("v_lshl_add_u32 v233, v232, 3, v233")
        e("s_lshl_b32 s70, s60, 9")
        e("v_add_u32 v233, s70, v233")
        e("v_lshlrev_b32 v234, 10, v231")
        e("v_lshl_add_u32 v234, v232, 8, v234")
        e("v_lshl_add_u32 v234, v230, 4, v234")
        for q in range(4):
            e(f"ds_read_b64 v[{64+4*q}:{65+4*q}], v233 offset:{LT + 128*q}")
            e(f"ds_read_b64 v[{66+4*q}:{67+4*q}], v233 offset:{LT + 128*q + 32}")
        e("s_lshr_b32 s70, s2, 1")
        e("s_lshl_b32 s70, s70, 14")
        e("s_and_b32 s71, s2, 1")
        e("s_lshl_b32 s71, s71, 7")
        e("s_add_u32 s70, s70, s71")
        e("s_lshl_b32 s71, s60, 13")
        e("s_add_u32 s70, s70, s71")
        for q in range(4):
            e(f"s_waitcnt lgkmcnt({6-2*q})")
            if q == 2:
                e("s_add_u32 s70, s70, 4096")
            e(f"buffer_store_dwordx4 v[{64+4*q}:{67+4*q}], v234, s[44:47], s70 offen offset:{2048*(q&1)} sc1")
        e("s_cmp_eq_u32 s60, 0")
        e(f"s_cbranch_scc0 {px}_LNJ")
        e("v_lshlrev_b32 v230, 10, v1")
        e("v_mov_b32 v231, 0")
        e("s_lshl_b32 s70, s2, 2")
        e("s_mov_b64 exec, 7")
        e("buffer_store_dword v231, v230, s[52:55], s70 offen sc1")
        e("s_mov_b64 exec, -1")
        e(f"s_branch {px}_LNJ")
        lab(f"{px}_LNB")
        e("v_lshrrev_b32 v230, 4, v1")
        e("v_bfe_u32 v231, v1, 2, 2")
        e("v_and_b32 v232, 3, v1")
        e("v_sub_u32 v231, 3, v231")
        e(f"v_mul_u32_u24 v233, {LP}, v231")
        e("v_lshl_add_u32 v233, v230, 5, v233")
        e("v_lshl_add_u32 v233, v232, 3, v233")
        e("s_sub_u32 s71, s60, 2")
        e("s_lshl_b32 s70, s71, 9")
        e(f"s_add_u32 s70, s70, {T2}")
        e("v_add_u32 v233, s70, v233")
        for q in range(4):
            e(f"ds_read_b64_tr_b16 v[{64+4*q}:{65+4*q}], v233 offset:{4*LP + 128*q}")
            e(f"ds_read_b64_tr_b16 v[{66+4*q}:{67+4*q}], v233 offset:{128*q}")
        e("s_lshl_b32 s70, s2, 13")
        e("s_lshl_b32 s71, s71, 12")
        e("s_add_u32 s70, s70, s71")
        for q in range(4):
            e(f"s_waitcnt lgkmcnt({6-2*q})")
            e(f"buffer_store_dwordx4 v[{64+4*q}:{67+4*q}], v2, s[48:51], s70 offen offset:{1024*q} sc1")
        lab(f"{px}_LNJ")
        stamp()
        e("s_waitcnt vmcnt(0)")
        e("s_barrier")
        stamp()
        e("s_cmp_eq_u32 s60, 0")
        e(f"s_cbranch_scc0 {px}_LNF")
        e("v_mov_b32 v230, s2")
        e("v_mov_b32 v231, 1")
        e("s_mov_b64 exec, 1")
        e("buffer_store_byte v231, v230, s[56:59], 0 offen sc1")
        e("s_mov_b64 exec, -1")
        lab(f"{px}_LNF")
    if g1:
        dma(4, 4)
        e(f"s_waitcnt vmcnt({4 + (1 if ln else 0)})")
        for i in range(7):
            for j in range(2):
                a = 4 + 8 * i + 4 * j
                e(f"v_lshlrev_b32 v{a}, 16, v{216+2*i}")
                e(f"v_and_b32 v{a+1}, s72, v{216+2*i}")
                e(f"v_lshlrev_b32 v{a+2}, 16, v{217+2*i}")
                e(f"v_and_b32 v{a+3}, s72, v{217+2*i}")
        e("v_lshrrev_b32 v230, 2, v1")
        e("v_mul_u32_u24 v3, 224, v230")
        e("v_and_b32 v230, 3, v1")
        e("v_lshl_add_u32 v3, v230, 3, v3")
        e("v_add_u32 v248, 0x8000, v3")
        if waits:
            e("s_cmp_eq_u32 s60, 0")
            e(f"s_cbranch_scc0 {px}_W1")
            e("v_and_b32 v230, 3, v1")
            e("v_lshlrev_b32 v230, 2, v230")
            e("s_lshl_b32 s70, s63, 4")
            poll(56, 230, "s70", 0x01010101, 4, 231, px)
            lab(f"{px}_W1")
            e("s_barrier")
        stamp()
        e("s_lshl_b32 s67, s63, 3")
        e("s_lshl_b32 s70, s60, 1")
        e("s_add_u32 s67, s67, s70")
        e("s_lshl_b32 s73, s67, 14")
        def bload(s):
            R = 64 + 16 * (s % 6)
            e(f"s_add_u32 s70, s73, {s*2048}")
            e(f"s_add_u32 s74, s73, {s*2048 + 16384}")
            for j in range(2):
                for k in range(2):
                    r = R + 8 * j + 4 * k
                    e(f"buffer_load_dwordx4 v[{r}:{r+3}], v2, s[44:47], s{70 if j == 0 else 74} offen offset:{1024*k} sc1")
        for s in range(6):
            bload(s)
        AR = [160, 188]
        def lds_a(buf, ksl, dst):
            for i in range(7):
                for e2 in range(2):
                    off = buf*SB + (32*ksl+16*e2)*224 + 32*i
                    if off >= 0x8000:
                        e(f"ds_read_b64_tr_b16 v[{dst+4*i+2*e2}:{dst+4*i+2*e2+1}], v248 offset:{off - 0x8000}")
                    else:
                        e(f"ds_read_b64_tr_b16 v[{dst+4*i+2*e2}:{dst+4*i+2*e2+1}], v3 offset:{off}")
        vmw = [20, 16, 20, 24, 24, 16, 8, 0]
        for s in range(8):
            e(f"s_waitcnt vmcnt({vmw[s]})")
            e("s_barrier")
            if s in (0, 4): stamp()
            buf = s % 5
            lds_a(buf, 0, AR[0])
            lds_a(buf, 1, AR[1])
            if 1 <= s <= 3:
                dma(s + 4, (s + 4) % 5)
            if 1 <= s <= 2:
                bload(s + 5)
            R = 64 + 16 * (s % 6)
            for ksl in range(2):
                e(f"s_waitcnt lgkmcnt({14 if ksl == 0 else 0})")
                A = AR[ksl]
                for i in range(7):
                    for j in range(2):
                        a = 4 + 8 * i + 4 * j
                        b = R + 8 * j + 4 * ksl
                        e(f"v_mfma_f32_16x16x32_bf16 v[{a}:{a+3}], v[{A+4*i}:{A+4*i+3}], v[{b}:{b+3}], v[{a}:{a+3}]")
        stamp()
    srd(36, P_WS, W2F_SZ, W2F_OFF)
    srd(40, P_WS, HF_SZ, HF_OFF)
    NA, NB = 6, 5
    AREG = [68 + 16 * k for k in range(NA)]
    BREG = [164 + 16 * k for k in range(NB)]
    ops = []
    def g2load(kind, k):
        fbl, q = k >> 2, k & 3
        R = (AREG[k % NA] if kind == "A" else BREG[k % NB])
        sr = 36 if kind == "A" else 40
        base = 68 if kind == "A" else 69
        e(f"s_add_u32 s70, s{base}, {fbl*14336 + q*4096}")
        for i in range(4):
            if q < 3:
                e(f"buffer_load_dwordx4 v[{R+4*i}:{R+4*i+3}], v2, s[{sr}:{sr+3}], s70 offen offset:{1024*i} sc1")
            else:
                e(f"buffer_load_dwordx2 v[{R+4*i}:{R+4*i+1}], v244, s[{sr}:{sr+3}], s70 offen offset:{512*i} sc1")
            ops.append((kind, k))
    e("v_lshlrev_b32 v244, 3, v1")
    if g2:
        e("s_lshl_b32 s70, s66, 4")
        e("s_lshl_b32 s71, s60, 2")
        e("s_add_u32 s70, s70, s71")
        e("s_mul_i32 s68, s70, 14336")
        e("s_lshl_b32 s70, s65, 4")
        e("s_add_u32 s70, s70, s71")
        e("s_mul_i32 s69, s70, 14336")
        if waits:
            e("v_lshlrev_b32 v245, 2, v1")
            poll(56, 245, "0", 0x01010101, 64, 246, px)
            e("s_lshl_b32 s70, s66, 7")
            e("s_add_u32 s70, s70, 2048")
            poll(52, 245, "s70", 1, 32, 246, px)
        for k in range(NA):
            g2load("A", k)
    if g1:
        e(f"s_mov_b32 s74, {f2u(-GC2)}")
        e(f"s_mov_b32 s75, {f2u(-GC2)}")
        e(f"v_mov_b32 v246, {f2u(-GC1)}")
        e(f"v_mov_b32 v247, {f2u(-GC1)}")
        e("s_lshr_b32 s70, s67, 2")
        e("s_lshl_b32 s70, s70, 4")
        e("s_add_u32 s70, s70, s64")
        e("s_mul_i32 s70, s70, 14336")
        e("s_and_b32 s71, s67, 3")
        e("s_lshl_b32 s73, s71, 9")
        e("s_add_u32 s73, s73, s70")
        e("s_add_u32 s73, s73, 12288")
        e("s_lshl_b32 s71, s71, 10")
        e("s_add_u32 s70, s70, s71")
        def gelu_pairs(pairs, outs):
            T = [164 + 2 * k for k in range(len(pairs))]
            for a, t in zip(pairs, T):
                e(f"v_pk_mul_f32 v[{t}:{t+1}], v[{a}:{a+1}], v[{a}:{a+1}]")
            for a, t in zip(pairs, T):
                e(f"v_pk_fma_f32 v[{t}:{t+1}], v[{t}:{t+1}], s[74:75], v[246:247]")
            for a, t in zip(pairs, T):
                e(f"v_pk_mul_f32 v[{t}:{t+1}], v[{a}:{a+1}], v[{t}:{t+1}]")
            for t in T:
                e(f"v_exp_f32 v{t}, v{t}")
                e(f"v_exp_f32 v{t+1}, v{t+1}")
            e("s_nop 0")
            for t in T:
                e(f"v_pk_add_f32 v[{t}:{t+1}], v[{t}:{t+1}], 1.0 op_sel_hi:[1,0]")
            for t in T:
                e(f"v_rcp_f32 v{t}, v{t}")
                e(f"v_rcp_f32 v{t+1}, v{t+1}")
            e("s_nop 0")
            for a, t in zip(pairs, T):
                e(f"v_pk_mul_f32 v[{t}:{t+1}], v[{a}:{a+1}], v[{t}:{t+1}]")
            for t, o in zip(T, outs):
                e(f"v_cvt_pk_bf16_f32 v{o}, v{t}, v{t+1}")
        e("s_nop 3")
        cnt = 0
        for q in range(3):
            for j in range(2):
                a0 = 4 + 8 * (2 * q) + 4 * j; a1 = 4 + 8 * (2 * q + 1) + 4 * j
                O = 176 + 4 * (cnt % 8); cnt += 1
                gelu_pairs([a0, a0 + 2, a1, a1 + 2], [O, O + 1, O + 2, O + 3])
                e(f"buffer_store_dwordx4 v[{O}:{O+3}], v2, s[40:43], s70 offen offset:{1024*j} sc1")
            if q < 2:
                e("s_add_u32 s70, s70, 4096")
        a0 = 4 + 48; a1 = 4 + 48 + 4
        O = 176 + 4 * (cnt % 8)
        gelu_pairs([a0, a0 + 2, a1, a1 + 2], [O, O + 1, O + 2, O + 3])
        e(f"buffer_store_dwordx2 v[{O}:{O+1}], v244, s[40:43], s73 offen sc1")
        e(f"buffer_store_dwordx2 v[{O+2}:{O+3}], v244, s[40:43], s73 offen offset:512 sc1")
        stamp()
        e("s_waitcnt vmcnt(0)")
        e("s_barrier")
        stamp()
        e("s_cmp_eq_u32 s60, 0")
        e(f"s_cbranch_scc0 {px}_HF")
        e("s_lshl_b32 s70, s63, 4")
        e("s_add_u32 s70, s70, s64")
        e("s_lshl_b32 s70, s70, 2")
        e("v_mov_b32 v230, 0")
        e("v_mov_b32 v231, 1")
        e("s_mov_b64 exec, 1")
        e("buffer_store_dword v231, v230, s[52:55], s70 offen sc1")
        e("s_mov_b64 exec, -1")
        lab(f"{px}_HF")
        ops.clear()
    if g2:
        if waits:
            e("s_lshr_b32 s70, s65, 1")
            e("s_lshl_b32 s70, s70, 6")
            poll(52, 245, "s70", 1, 16, 246, px)
            ops.clear()
        stamp()
        for k in range(NB):
            g2load("B", k)
        for i in range(64):
            e(f"v_mov_b32 v{4+i}, 0")
        for k in range(16):
            last = max(i for i, o in enumerate(ops) if o in (("A", k), ("B", k)))
            e(f"s_waitcnt vmcnt({len(ops) - 1 - last})")
            if k in (0, 8): stamp()
            q = k & 3
            A = AREG[k % NA]; B = BREG[k % NB]
            for i in range(4):
                for j in range(4):
                    a = 4 + 16 * j + 4 * i
                    if q < 3:
                        e(f"v_mfma_f32_16x16x32_bf16 v[{a}:{a+3}], v[{A+4*i}:{A+4*i+3}], v[{B+4*j}:{B+4*j+3}], v[{a}:{a+3}]")
                    else:
                        e(f"v_mfma_f32_16x16x16_bf16 v[{a}:{a+3}], v[{A+4*i}:{A+4*i+1}], v[{B+4*j}:{B+4*j+1}], v[{a}:{a+3}]")
            if k + NA < 16:
                g2load("A", k + NA)
            if k + NB < 16:
                g2load("B", k + NB)
        stamp()
        srd(36, P_X, 0x200000)
        srd(40, P_B2, 1024)
        srd(44, P_WS, ST_SZ, ST_OFF)
        srd(48, P_OUT, 0x200000)
        if waits:
            e("s_lshl_b32 s70, s66, 7")
            e("s_add_u32 s70, s70, 1024")
            poll(52, 245, "s70", 1, 32, 246, px)
        e("v_and_b32 v230, 15, v1")
        e("v_lshrrev_b32 v231, 4, v1")
        e("s_lshl_b32 s70, s65, 6")
        e("s_lshl_b32 s71, s60, 4")
        e("s_add_u32 s70, s70, s71")
        e("v_add_u32 v232, s70, v230")
        e("v_lshlrev_b32 v233, 10, v232")
        e("v_lshl_add_u32 v233, v231, 3, v233")
        e("s_lshl_b32 s73, s66, 7")
        for i in range(4):
            e(f"buffer_load_dwordx2 v[{132+2*i}:{133+2*i}], v233, s[36:39], s73 offen offset:{32*i}")
        e("v_lshlrev_b32 v234, 3, v231")
        for i in range(4):
            e(f"buffer_load_dwordx2 v[{140+2*i}:{141+2*i}], v234, s[40:43], s73 offen offset:{32*i}")
        e("v_lshlrev_b32 v235, 14, v231")
        e("v_lshl_add_u32 v235, v232, 1, v235")
        e("s_lshl_b32 s70, s66, 18")
        for i in range(4):
            for r in range(4):
                e(f"s_add_u32 s71, s70, {(16*i + r)*4096}")
                e(f"buffer_load_ushort v{148+4*i+r}, v235, s[44:47], s71 offen sc1")
        e("s_lshl_b32 s70, s60, 14")
        e("v_add_u32 v236, s70, v2")
        for j in range(4):
            for i in range(4):
                a = 4 + 16 * j + 4 * i
                e(f"ds_write_b128 v236, v[{a}:{a+3}] offset:{(4*j+i)*1024}")
        e("s_waitcnt lgkmcnt(0)")
        e("s_barrier")
        e("s_lshl_b32 s70, s60, 12")
        e("v_add_u32 v236, s70, v2")
        for ww in range(4):
            for i in range(4):
                r = 68 + 16 * ww + 4 * i
                e(f"ds_read_b128 v[{r}:{r+3}], v236 offset:{ww*16384 + i*1024}")
        e(f"s_mov_b32 s74, {f2u(-LOG2E)}")
        e("s_waitcnt lgkmcnt(0)")
        for q in range(8):
            e(f"v_pk_add_f32 v[{68+2*q}:{69+2*q}], v[{68+2*q}:{69+2*q}], v[{84+2*q}:{85+2*q}]")
            e(f"v_pk_add_f32 v[{100+2*q}:{101+2*q}], v[{100+2*q}:{101+2*q}], v[{116+2*q}:{117+2*q}]")
        for q in range(8):
            e(f"v_pk_add_f32 v[{68+2*q}:{69+2*q}], v[{68+2*q}:{69+2*q}], v[{100+2*q}:{101+2*q}]")
        stamp()
        e("s_waitcnt vmcnt(0)")
        def rnd4(a, T):
            e(f"v_cvt_pk_bf16_f32 v{T}, v{a}, v{a+1}")
            e(f"v_cvt_pk_bf16_f32 v{T+1}, v{a+2}, v{a+3}")
            e(f"v_lshlrev_b32 v{a}, 16, v{T}")
            e(f"v_and_b32 v{a+1}, s72, v{T}")
            e(f"v_lshlrev_b32 v{a+2}, 16, v{T+1}")
            e(f"v_and_b32 v{a+3}, s72, v{T+1}")
        def unp4(dst, src):
            e(f"v_lshlrev_b32 v{dst}, 16, v{src}")
            e(f"v_and_b32 v{dst+1}, s72, v{src}")
            e(f"v_lshlrev_b32 v{dst+2}, 16, v{src+1}")
            e(f"v_and_b32 v{dst+3}, s72, v{src+1}")
        for i in range(4):
            a = 68 + 4 * i
            rnd4(a, 12)
            unp4(16, 140 + 2 * i)
            for r in range(4):
                e(f"v_add_f32 v{a+r}, v{a+r}, v{16+r}")
            rnd4(a, 12)
            for r in range(4):
                e(f"v_mul_f32 v{16+r}, s74, v{a+r}")
            for r in range(4):
                e(f"v_exp_f32 v{16+r}, v{16+r}")
            e("s_nop 0")
            for r in range(4):
                e(f"v_add_f32 v{16+r}, 1.0, v{16+r}")
            for r in range(4):
                e(f"v_rcp_f32 v{16+r}, v{16+r}")
            e("s_nop 0")
            for r in range(4):
                e(f"v_mul_f32 v{a+r}, v{a+r}, v{16+r}")
            rnd4(a, 12)
            for r in range(4):
                e(f"v_lshlrev_b32 v{16+r}, 16, v{148+4*i+r}")
            for r in range(4):
                e(f"v_mul_f32 v{a+r}, v{a+r}, v{16+r}")
            rnd4(a, 12)
            unp4(16, 132 + 2 * i)
            for r in range(4):
                e(f"v_add_f32 v{a+r}, v{a+r}, v{16+r}")
            e(f"v_cvt_pk_bf16_f32 v{20+2*i}, v{a}, v{a+1}")
            e(f"v_cvt_pk_bf16_f32 v{21+2*i}, v{a+2}, v{a+3}")
            e(f"buffer_store_dwordx2 v[{20+2*i}:{21+2*i}], v233, s[48:51], s73 offen offset:{32*i}")
    if STAMP:
        stamp()
        e("s_waitcnt vmcnt(0)")
    stamp_flush()
    e("s_endpgm")

def gen_C(px, rep, kc, waits):
    CH = 38400; CS = 4160; KB = 8 * CS
    stamp(True)
    e("s_sub_u32 s61, s2, 256")
    e("s_and_b32 s62, s61, 7")
    e("s_lshr_b32 s61, s61, 3")
    e("s_lshl_b32 s62, s62, 5")
    e("s_add_u32 s61, s61, s62")
    e("s_lshr_b32 s62, s60, 1")
    e("s_and_b32 s63, s60, 1")
    e("s_lshl_b32 s64, s61, 1")
    e("s_add_u32 s64, s64, s62")
    e(f"s_mul_i32 s65, s62, {CH}")
    e("v_and_b32 v6, 15, v1")
    e("v_lshrrev_b32 v7, 4, v1")
    e("s_waitcnt lgkmcnt(0)")
    srd(36, P_W2, 512 * 1792 * 2)
    srd(40, P_WS, W2F_SZ, W2F_OFF)
    srd(44, P_WS, XNB_SZ, XNB_OFF)
    srd(48, P_WS, ST_SZ, ST_OFF)
    srd(52, P_WS, FL_SZ, FL_OFF)
    srd(56, P_DBG, 256)
    e("s_mov_b32 s72, 0xffff0000")
    if kc:
        e("s_lshl_b32 s66, s64, 8")
        e("s_lshl_b32 s67, s63, 7")
        e("s_add_u32 s66, s66, s67")
        e("v_lshl_add_u32 v8, v1, 1, s66")
        e("s_lshl_b32 s67, s64, 1")
        e("v_mov_b32 v9, s67")
        e(f"global_load_ushort v10, v8, s[{P_LAR}:{P_LAR+1}]")
        e(f"global_load_ushort v11, v8, s[{P_AIM}:{P_AIM+1}]")
        e(f"global_load_ushort v12, v8, s[{P_CR}:{P_CR+1}]")
        e(f"global_load_ushort v13, v8, s[{P_CI}:{P_CI+1}]")
        e(f"global_load_ushort v14, v9, s[{P_LDT}:{P_LDT+1}]")
        e(f"global_load_ushort v15, v9, s[{P_DSK}:{P_DSK+1}]")
    if rep:
        e("s_lshr_b32 s66, s64, 4")
        e("s_and_b32 s67, s64, 15")
        e("v_lshlrev_b32 v16, 12, v7")
        e("v_lshl_add_u32 v16, v6, 1, v16")
        e(f"s_mul_i32 s68, s67, {112*1024}")
        e("s_lshl_b32 s69, s66, 5")
        e("s_add_u32 s68, s68, s69")
        e("s_lshl_b32 s69, s63, 16")
        e("s_add_u32 s68, s68, s69")
        for k in range(4):
            e(f"s_add_u32 s{73}, s68, {k*16384}")
            for el in range(4):
                e(f"buffer_load_ushort v{200+4*k+el}, v16, s[36:39], s73 offen offset:{1024*el}")
    if kc:
        for i in range(8):
            d = 230 + i
            e("v_lshlrev_b32 v17, 3, v0")
            if i:
                e(f"v_add_u32 v17, {i}, v17")
            e("v_cvt_f32_u32 v17, v17")
            e("v_cvt_pk_bf16_f32 v17, v17, v17")
            e("v_lshlrev_b32 v17, 16, v17")
            e("v_cvt_u32_f32 v18, v17")
            e("v_lshrrev_b32 v17, 23, v17")
            e("v_subrev_u32 v17, 134, v17")
            e("v_med3_i32 v17, v17, 0, 3")
            e("v_lshrrev_b32 v19, 7, v18")
            e("v_and_b32 v20, 7, v18")
            e("v_lshl_add_u32 v19, v19, 3, v20")
            e("v_lshrrev_b32 v19, v17, v19")
            e("v_lshl_add_u32 v19, v17, 3, v19")
            e("v_bfe_u32 v20, v18, 3, 4")
            e("v_lshrrev_b32 v21, 4, v19")
            e("v_and_b32 v19, 15, v19")
            e("v_lshl_add_u32 v20, v21, 4, v20")
            e("v_lshl_add_u32 v19, v20, 4, v19")
            e(f"v_lshlrev_b32 v{d}, 1, v19")
    stamp()
    e("s_waitcnt vmcnt(0)")
    stamp()
    if rep:
        for k in range(4):
            e(f"v_lshl_or_b32 v{216+2*k}, v{201+4*k}, 16, v{200+4*k}")
            e(f"v_lshl_or_b32 v{217+2*k}, v{203+4*k}, 16, v{202+4*k}")
        e("s_lshr_b32 s68, s66, 2")
        e("s_lshl_b32 s68, s68, 4")
        e("s_add_u32 s68, s68, s67")
        e("s_mul_i32 s68, s68, 14336")
        e("s_and_b32 s69, s66, 3")
        e("s_lshl_b32 s70, s69, 10")
        e("s_add_u32 s70, s70, s68")
        e("s_lshl_b32 s71, s63, 13")
        e("s_add_u32 s70, s70, s71")
        e("buffer_store_dwordx4 v[216:219], v2, s[40:43], s70 offen sc1")
        e("s_cmp_eq_u32 s63, 0")
        e(f"s_cbranch_scc0 {px}_RP1")
        e("s_add_u32 s70, s70, 4096")
        e("buffer_store_dwordx4 v[220:223], v2, s[40:43], s70 offen sc1")
        e(f"s_branch {px}_RPJ")
        lab(f"{px}_RP1")
        e("s_lshl_b32 s70, s69, 9")
        e("s_add_u32 s70, s70, s68")
        e("s_add_u32 s70, s70, 12288")
        e("v_lshlrev_b32 v17, 3, v1")
        e("buffer_store_dwordx2 v[220:221], v17, s[40:43], s70 offen sc1")
        lab(f"{px}_RPJ")
    if not kc:
        if not waits:
            pass
        stamp_flush()
        e("s_endpgm")
        return
    e(f"s_mov_b32 s66, {f2u(LOG2E_HI)}")
    e(f"s_mov_b32 s67, {f2u(LOG2E_LO)}")
    e(f"s_mov_b32 s68, {f2u(LN2)}")
    e(f"s_mov_b32 s69, {f2u(INV2PI)}")
    for r in (10, 11, 12, 13, 14, 15):
        e(f"v_lshlrev_b32 v{r}, 16, v{r}")
    def exp_acc(dst, x, t1, t2):
        e(f"v_mul_f32 v{t1}, s66, v{x}")
        e(f"v_fma_f32 v{t2}, v{x}, s66, -v{t1}")
        e(f"v_fmac_f32 v{t2}, s67, v{x}")
        e(f"v_exp_f32 v{dst}, v{t1}")
        e(f"v_mul_f32 v{t2}, s68, v{t2}")
        e(f"v_fmac_f32 v{dst}, v{dst}, v{t2}")
    exp_acc(16, 14, 17, 18)
    exp_acc(19, 10, 20, 21)
    e("v_cvt_pk_bf16_f32 v17, v16, v19")
    e("v_lshlrev_b32 v16, 16, v17")
    e("v_and_b32 v19, s72, v17")
    e("v_mul_f32 v19, v19, v16")
    e("v_mul_f32 v19, s66, v19")
    e("v_mul_f32 v20, v11, v16")
    e("v_mul_f32 v20, s69, v20")
    e("v_mul_f32 v22, v12, v16")
    e("v_mul_f32 v23, v13, v16")
    e("v_max_f32 v24, |v22|, |v23|")
    dpp_reduce([24], "v_max_f32")
    e("v_readlane_b32 s70, v24, 63")
    for k, (m, d) in enumerate(((1.0, 26), (8.0, 28), (128.0, 30))):
        e(f"v_mul_f32 v{32+k}, {f2u(-m)}, v19")
        e(f"v_mul_f32 v{36+k}, {f2u(m)}, v20")
    e("v_frexp_exp_i32_f32 v24, s70")
    for k in range(3):
        e(f"v_exp_f32 v{32+k}, v{32+k}")
        e(f"v_fract_f32 v{36+k}, v{36+k}")
    e("v_sub_u32 v25, 0, v24")
    for k in range(3):
        e(f"v_cos_f32 v{40+k}, v{36+k}")
        e(f"v_sin_f32 v{44+k}, v{36+k}")
    e("v_ldexp_f32 v22, v22, v25")
    e("v_ldexp_f32 v23, v23, v25")
    for k, d in enumerate((26, 28, 30)):
        e(f"v_mul_f32 v{d}, v{32+k}, v{40+k}")
        e(f"v_mul_f32 v{d+1}, v{32+k}, v{44+k}")
    e(f"s_mul_i32 s70, s63, 9216")
    e("s_add_u32 s70, s70, s65")
    e("v_lshlrev_b32 v32, 2, v1")
    e("v_add_u32 v32, s70, v32")
    e("v_mul_u32_u24 v33, 288, v6")
    e("v_lshl_add_u32 v33, v7, 4, v33")
    e("v_add_u32 v33, s70, v33")
    AT = 4608
    cur = 22
    for j in range(16):
        if j:
            nxt = 34 if cur != 34 else 36
            cmul(nxt, cur, 28, nxt)
            cur = nxt
        e(f"v_cvt_pk_f16_f32 v38, v{cur}, -v{cur+1}")
        e(f"ds_write_b32 v32, v38 offset:{288*j}")
    for ks in range(4):
        e(f"ds_read_b128 v[{120+4*ks}:{123+4*ks}], v33 offset:{64*ks}")
    e("v_mov_b32 v40, 1.0")
    e("v_mov_b32 v41, 0")
    e("v_mov_b32 v42, v26")
    e("v_mov_b32 v43, v27")
    for r in range(2, 8):
        cmul(40 + 2 * r, 40 + 2 * (r - 1), 26, 40 + 2 * r)
    e("v_mov_b32 v58, v30")
    e("v_mov_b32 v59, v31")
    for i in range(2, 17):
        cmul(56 + 2 * i, 56 + 2 * (i - 1), 30, 56 + 2 * i)
    def Rr(r): return 40 + 2 * r
    def Gi(i): return 56 + 2 * i
    tiles = [
        [(None, r) for r in range(8)] + [(1, r) for r in range(8)],
        [(2, 2 * r) for r in range(4)] + [(3, 2 * r) for r in range(4)] + [(4 + i, 4 * r) for i in range(4) for r in range(2)],
        [(8 + i, 0) for i in range(9)],
    ]
    for i in range(12):
        e(f"v_mov_b32 v{100+i}, 0")
    for T, rows in enumerate(tiles):
        for row, (gi, r) in enumerate(rows):
            tp = 92 + 2 * (row & 3)
            if gi is None:
                src = Rr(r)
            elif r == 0:
                src = Gi(gi)
            else:
                cmul(tp, Gi(gi), Rr(r), tp)
                src = tp
            e(f"v_cvt_pk_f16_f32 v{112 + (row & 3)}, v{src}, v{src+1}")
            e(f"ds_write_b32 v32, v{112 + (row & 3)} offset:{AT + 288*row}")
        for ks in range(4):
            e(f"ds_read_b128 v[{136+16*(T&1)+4*ks}:{139+16*(T&1)+4*ks}], v33 offset:{AT + 64*ks}")
        e("s_waitcnt lgkmcnt(0)")
        a = 100 + 4 * T
        for ks in range(4):
            A = 136 + 16 * (T & 1) + 4 * ks
            e(f"v_mfma_f32_16x16x32_f16 v[{a}:{a+3}], v[{A}:{A+3}], v[{120+4*ks}:{123+4*ks}], v[{a}:{a+3}]")
    stamp()
    e("s_mul_i32 s70, s63, 3072")
    e("s_add_u32 s70, s70, s65")
    e("v_lshlrev_b32 v34, 6, v6")
    e("v_lshl_add_u32 v34, v7, 4, v34")
    e("v_add_u32 v34, s70, v34")
    e("s_lshl_b32 s70, s63, 2")
    e("s_add_u32 s70, s70, s65")
    e("v_mov_b32 v35, s70")
    e("s_nop 3")
    for T in range(3):
        e(f"ds_write_b128 v34, v[{100+4*T}:{103+4*T}] offset:{18432 + 1024*T}")
    e(f"ds_write_b32 v35, v24 offset:{26112}")
    e("s_waitcnt lgkmcnt(0)")
    e("s_barrier")
    e("v_lshlrev_b32 v34, 4, v0")
    e("v_min_u32 v34, 3056, v34")
    e("v_mov_b32 v35, 0")
    for c in range(2):
        e(f"ds_read_b128 v[{40+16*c}:{43+16*c}], v34 offset:{c*CH + 18432}")
        e(f"ds_read_b128 v[{44+16*c}:{47+16*c}], v34 offset:{c*CH + 18432 + 3072}")
        e(f"ds_read_b64 v[{48+16*c}:{49+16*c}], v35 offset:{c*CH + 26112}")
    e("v_lshrrev_b32 v36, 1, v34")
    e("s_waitcnt lgkmcnt(0)")
    for c in range(2):
        b = 40 + 16 * c
        e(f"v_max_i32 v{b+10}, v{b+8}, v{b+9}")
        e(f"v_sub_u32 v{b+8}, v{b+8}, v{b+10}")
        e(f"v_sub_u32 v{b+9}, v{b+9}, v{b+10}")
        for j in range(4):
            e(f"v_ldexp_f32 v{b+j}, v{b+j}, v{b+8}")
            e(f"v_ldexp_f32 v{b+4+j}, v{b+4+j}, v{b+9}")
        for j in range(4):
            e(f"v_add_f32 v{b+j}, v{b+j}, v{b+4+j}")
        e(f"v_cvt_pk_f16_f32 v{b+12}, v{b}, v{b+1}")
        e(f"v_cvt_pk_f16_f32 v{b+13}, v{b+2}, v{b+3}")
        e(f"ds_write_b64 v36, v[{b+12}:{b+13}] offset:{c*CH + 24576}")
    e("s_cmp_eq_u32 s62, 0")
    e("s_cselect_b64 vcc, -1, 0")
    e("s_nop 1")
    e("v_cndmask_b32 v25, v66, v50, vcc")
    e("v_add_u32 v25, 1, v25")
    e("s_waitcnt lgkmcnt(0)")
    e("s_barrier")
    for c in range(2):
        for i in range(8):
            e(f"ds_read_u16 v{40+8*c+i}, v{230+i} offset:{c*CH + 24576}")
    e("v_lshrrev_b32 v34, 2, v0")
    e("v_lshlrev_b32 v34, 5, v34")
    e("v_bfe_u32 v35, v0, 1, 1")
    e("v_mul_u32_u24 v35, 2560, v35")
    e("v_and_b32 v36, 1, v0")
    e("v_lshl_add_u32 v34, v36, 4, v34")
    e("v_add_u32 v34, v34, v35")
    e("v_bfe_u32 v35, v0, 5, 1")
    e("v_mul_u32_u24 v35, 2560, v35")
    e("v_and_b32 v36, 31, v0")
    e("v_lshl_add_u32 v35, v36, 4, v35")
    e("v_bfe_u32 v36, v0, 6, 1")
    e(f"v_mul_u32_u24 v36, {CH}, v36")
    e("v_add_u32 v35, v35, v36")
    for j in range(4):
        e(f"v_mov_b32 v{64+j}, 0")
    e(f"ds_write_b128 v35, v[64:67] offset:{KB}")
    e("s_waitcnt lgkmcnt(1)")
    for c in range(2):
        for j in range(4):
            e(f"v_lshl_or_b32 v{56+4*c+j}, v{41+8*c+2*j}, 16, v{40+8*c+2*j}")
        if c == 1:
            e(f"v_add_u32 v37, {CH}, v34")
        e(f"ds_write_b128 v{34 if c == 0 else 37}, v[{56+4*c}:{59+4*c}] offset:{KB + 512}")
    if DUMPK:
        srd(36, P_WS, KP_SZ, KP_OFF)
        e("s_mul_i32 s70, s61, 10240")
        e("buffer_store_dwordx4 v[56:59], v34, s[36:39], s70 offen offset:512")
        e("s_add_u32 s70, s70, 5120")
        e("buffer_store_dwordx4 v[60:63], v34, s[36:39], s70 offen offset:512")
        e("s_lshl_b32 s70, s64, 2")
        e(f"s_add_u32 s70, s70, {KP_SZ - 4096}")
        e("v_mov_b32 v36, 0")
        e("buffer_store_dword v25, v36, s[36:39], s70 offen")
    stamp()
    e("s_waitcnt vmcnt(0) lgkmcnt(0)")
    if waits:
        e("s_cmp_eq_u32 s60, 0")
        e(f"s_cbranch_scc0 {px}_W1")
        e("v_lshlrev_b32 v34, 2, v1")
        poll(56, 34, "0", 0x01010101, 64, 35, px)
        lab(f"{px}_W1")
    e("s_barrier")
    stamp()
    if waits:
        e("s_cmp_eq_u32 s60, 0")
        e(f"s_cbranch_scc0 {px}_RF")
        e("s_lshl_b32 s70, s61, 2")
        e("s_add_u32 s70, s70, 2048")
        e("v_mov_b32 v34, 0")
        e("v_mov_b32 v35, 1")
        e("s_mov_b64 exec, 1")
        e("buffer_store_dword v35, v34, s[52:55], s70 offen sc1")
        e("s_mov_b64 exec, -1")
        lab(f"{px}_RF")
    e("s_lshl_b32 s70, s63, 7")
    e("v_add_u32 v34, s70, v1")
    e("v_sub_u32 v35, 255, v34")
    e("v_lshlrev_b32 v35, 13, v35")
    e("s_lshl_b32 s70, s64, 4")
    e("v_add_u32 v35, s70, v35")
    e("v_subrev_u32 v36, 0x2000, v35")
    e("v_subrev_u32 v37, 0x80000, v35")
    e("v_subrev_u32 v38, 0x82000, v35")
    e("buffer_load_dwordx4 v[40:43], v35, s[44:47], 0 offen sc1")
    e("buffer_load_dwordx4 v[44:47], v36, s[44:47], 0 offen sc1")
    e("buffer_load_dwordx4 v[64:67], v37, s[44:47], 0 offen sc1")
    e("buffer_load_dwordx4 v[68:71], v38, s[44:47], 0 offen sc1")
    e("v_lshlrev_b32 v34, 4, v34")
    e("v_add_u32 v34, s65, v34")
    e("v_lshrrev_b32 v35, 2, v1")
    e(f"v_mul_u32_u24 v35, {CS}, v35")
    e("v_and_b32 v36, 3, v1")
    e("v_lshl_add_u32 v35, v36, 4, v35")
    e(f"s_mul_i32 s70, s63, {4*CS}")
    e("s_add_u32 s70, s70, s65")
    e("v_add_u32 v35, s70, v35")
    for j in range(4):
        e(f"v_mov_b32 v{88+j}, 0")
    e("s_mov_b64 exec, 0xffff")
    e("ds_write_b128 v35, v[88:91] offset:4096")
    e("s_mov_b64 exec, -1")
    e("v_and_b32 v35, 3, v6")
    e("v_sub_u32 v35, 7, v35")
    e(f"v_mul_u32_u24 v35, {CS}, v35")
    e("v_lshrrev_b32 v36, 2, v6")
    e("v_sub_u32 v36, v7, v36")
    e("v_lshl_add_u32 v35, v36, 4, v35")
    e("s_lshl_b32 s70, s63, 6")
    e("s_sub_u32 s70, s65, s70")
    e(f"s_add_u32 s70, s70, {4080 - 64*62}")
    e("v_add_u32 v12, s70, v35")
    e(f"v_subrev_u32 v13, {4*CS}, v12")
    e("v_lshrrev_b32 v35, 1, v7")
    e("v_mul_u32_u24 v35, 2560, v35")
    e("v_lshl_add_u32 v35, v6, 5, v35")
    e("v_and_b32 v36, 1, v7")
    e("v_lshl_add_u32 v35, v36, 4, v35")
    e("s_lshl_b32 s70, s63, 5")
    e("s_sub_u32 s70, s65, s70")
    e(f"s_add_u32 s70, s70, {KB+32}")
    e("v_add_u32 v14, s70, v35")
    for it in range(2):
        I = 40 + 24 * it
        O = 48 + 24 * it
        e(f"s_waitcnt vmcnt({2 - 2*it})")
        for j in range(7):
            e(f"v_alignbit_b32 v{O+j}, v{I+j+1}, v{I+j}, 16")
        off = 1024 * it
        e(f"ds_write_b128 v34, v[{I}:{I+3}] offset:{off}")
        e(f"ds_write_b128 v34, v[{I+2}:{I+5}] offset:{off + 4*CS}")
        e(f"ds_write_b128 v34, v[{O}:{O+3}] offset:{off + 1*CS}")
        e(f"ds_write_b128 v34, v[{O+2}:{O+5}] offset:{off + 5*CS}")
        M = 92 + 16 * it
        for k, (src, s) in enumerate(((I + 1, 2), (I + 3, 6), (O + 1, 3), (O + 3, 7))):
            e(f"v_pk_mov_b32 v[{M+4*k}:{M+4*k+1}], v[{src-1}:{src}], v[{src+1}:{src+2}] op_sel:[1,0]")
            e(f"v_pk_mov_b32 v[{M+4*k+2}:{M+4*k+3}], v[{src+1}:{src+2}], v[{src+3}:{src+4}] op_sel:[1,0]")
            e(f"ds_write_b128 v34, v[{M+4*k}:{M+4*k+3}] offset:{off + s*CS}")
    ACC = 16
    e("v_mov_b32 v10, v25")
    e("v_mov_b32 v11, v15")
    for i in range(32):
        e(f"v_mov_b32 v{ACC+i}, 0")
    stamp()
    e("s_waitcnt lgkmcnt(0)")
    e("s_barrier")
    stamp()
    NB = 3
    FR = [48 + 24 * b for b in range(NB)]
    def nI(pp):
        return 4 - (2 * pp) // 16
    def issue(pp):
        R = FR[pp % NB]
        cnt = 0
        for h in range(2):
            e(f"ds_read_b128 v[{R+4*h}:{R+4*h+3}], v{12+h} offset:{64*(62-2*pp)}")
            cnt += 1
        for I in range(4 - nI(pp), 4):
            e(f"ds_read_b128 v[{R+8+4*I}:{R+11+4*I}], v14 offset:{32*(16*I-2*pp+15)}")
            cnt += 1
        return cnt
    cnts = {}
    for pp in range(NB - 1):
        cnts[pp] = issue(pp)
    for pp in range(32):
        if pp + NB - 1 < 32:
            cnts[pp + NB - 1] = issue(pp + NB - 1)
        pend = sum(cnts[k] for k in range(pp + 1, min(32, pp + NB)))
        e(f"s_waitcnt lgkmcnt({pend})")
        R = FR[pp % NB]
        for I in range(4 - nI(pp), 4):
            for h in range(2):
                a = ACC + 8 * I + 4 * h
                e(f"v_mfma_f32_16x16x32_f16 v[{a}:{a+3}], v[{R+4*h}:{R+4*h+3}], v[{R+8+4*I}:{R+11+4*I}], v[{a}:{a+3}]")
    e("s_nop 7")
    stamp()
    e("s_barrier")
    e("s_lshl_b32 s70, s63, 12")
    e("s_add_u32 s70, s70, s65")
    e(f"s_add_u32 s70, s70, {CS}")
    e("v_add_u32 v8, s70, v2")
    e("s_xor_b32 s71, s63, 1")
    e("s_lshl_b32 s70, s71, 12")
    e("s_add_u32 s70, s70, s65")
    e(f"s_add_u32 s70, s70, {CS}")
    e("v_add_u32 v9, s70, v2")
    e("s_cmp_eq_u32 s63, 0")
    e(f"s_cbranch_scc1 {px}_P0")
    for t in range(4):
        e(f"ds_write_b128 v8, v[{ACC+4*t}:{ACC+4*t+3}] offset:{1024*t}")
    for i in range(8):
        e(f"v_pk_mov_b32 v[{48+2*i}:{49+2*i}], v[{ACC+16+2*i}:{ACC+17+2*i}], v[{ACC+16+2*i}:{ACC+17+2*i}] op_sel:[0,1]")
    e(f"s_branch {px}_PJ")
    lab(f"{px}_P0")
    for t in range(4):
        e(f"ds_write_b128 v8, v[{ACC+16+4*t}:{ACC+16+4*t+3}] offset:{1024*t}")
    for i in range(8):
        e(f"v_pk_mov_b32 v[{48+2*i}:{49+2*i}], v[{ACC+2*i}:{ACC+1+2*i}], v[{ACC+2*i}:{ACC+1+2*i}] op_sel:[0,1]")
    lab(f"{px}_PJ")
    e("s_waitcnt lgkmcnt(0)")
    e("s_barrier")
    for t in range(4):
        e(f"ds_read_b128 v[{64+4*t}:{67+4*t}], v9 offset:{1024*t}")
    e("v_lshlrev_b32 v5, 6, v6")
    e("v_lshl_add_u32 v5, v7, 4, v5")
    e("s_lshl_b32 s70, s63, 11")
    e("s_sub_u32 s70, s65, s70")
    e(f"s_add_u32 s70, s70, {4080-1024}")
    e("v_sub_u32 v8, s70, v5")
    for Il in range(2):
        e(f"ds_read_b128 v[{80+4*Il}:{83+4*Il}], v8 offset:{1024*(1-Il)}")
    e("s_lshl_b32 s70, s64, 12")
    e("s_lshl_b32 s71, s63, 11")
    e("s_add_u32 s70, s70, s71")
    e("s_waitcnt lgkmcnt(0)")
    for Il in range(2):
        a = 48 + 8 * Il
        for k in range(4):
            e(f"v_pk_add_f32 v[{a+2*k}:{a+2*k+1}], v[{a+2*k}:{a+2*k+1}], v[{64+8*Il+2*k}:{65+8*Il+2*k}]")
        for k in range(8):
            e(f"v_ldexp_f32 v{a+k}, v{a+k}, v10")
        for k in range(4):
            e(f"v_cvt_pk_bf16_f32 v{88+k}, v{a+2*k}, v{a+2*k+1}")
        for k in range(4):
            e(f"v_lshlrev_b32 v{a+2*k}, 16, v{88+k}")
            e(f"v_and_b32 v{a+2*k+1}, s72, v{88+k}")
        U = 80 + 4 * Il
        for k in range(4):
            src = U + 3 - k
            e(f"v_cvt_f32_f16_sdwa v{92+2*k}, v{src} dst_sel:DWORD dst_unused:UNUSED_PAD src0_sel:WORD_1")
            e(f"v_cvt_f32_f16 v{93+2*k}, v{src}")
        for k in range(8):
            e(f"v_mul_f32 v{92+k}, v{92+k}, v11")
        for k in range(4):
            e(f"v_cvt_pk_bf16_f32 v{88+k}, v{92+2*k}, v{93+2*k}")
        for k in range(4):
            e(f"v_lshlrev_b32 v{92+2*k}, 16, v{88+k}")
            e(f"v_and_b32 v{93+2*k}, s72, v{88+k}")
        for k in range(4):
            e(f"v_pk_add_f32 v[{a+2*k}:{a+2*k+1}], v[{a+2*k}:{a+2*k+1}], v[{92+2*k}:{93+2*k}]")
        for k in range(4):
            e(f"v_cvt_pk_bf16_f32 v{100+4*Il+k}, v{a+2*k}, v{a+2*k+1}")
        e(f"buffer_store_dwordx4 v[{100+4*Il}:{103+4*Il}], v5, s[48:51], s70 offen offset:{1024*Il} sc1")
    stamp()
    if waits:
        e("s_waitcnt vmcnt(0)")
        e("s_barrier")
        e("s_cmp_eq_u32 s60, 0")
        e(f"s_cbranch_scc0 {px}_SF")
        e("s_lshl_b32 s70, s61, 2")
        e("s_add_u32 s70, s70, 1024")
        e("v_mov_b32 v34, 0")
        e("v_mov_b32 v35, 1")
        e("s_mov_b64 exec, 1")
        e("buffer_store_dword v35, v34, s[52:55], s70 offen sc1")
        e("s_mov_b64 exec, -1")
        lab(f"{px}_SF")
    stamp_flush()
    e("s_endpgm")

def gen_kernel(name, px, gargs, cargs):
    kernel_begin(name)
    e("s_cmp_ge_u32 s2, 512")
    e(f"s_cbranch_scc1 {px}_END")
    e("s_load_dwordx16 s[4:19], s[0:1], 0")
    e("s_load_dwordx8 s[20:27], s[0:1], 64")
    e("s_load_dwordx4 s[28:31], s[0:1], 96")
    e("s_load_dwordx2 s[32:33], s[0:1], 112")
    e("v_and_b32 v1, 63, v0")
    e("v_readfirstlane_b32 s60, v0")
    e("v_lshlrev_b32 v2, 4, v1")
    e("s_lshr_b32 s60, s60, 6")
    e("s_cmp_ge_u32 s2, 256")
    e(f"s_cbranch_scc1 {px}_C")
    gen_G(px + "G", *gargs)
    lab(f"{px}_C")
    if cargs is None:
        e("s_endpgm")
    else:
        gen_C(px + "C", *cargs)
    lab(f"{px}_END")
    e("s_endpgm")

LDS = 81920
if SPLIT:
    names = ["pa_kernel", "pb_kernel", "pc_kernel"]
    gen_kernel("pa_kernel", "A", (True, False, False, False), (True, False, False))
    gen_kernel("pb_kernel", "B", (False, True, False, False), (False, True, False))
    gen_kernel("pc_kernel", "C", (False, False, True, False), None)
else:
    names = ["pf_kernel"]
    gen_kernel("pf_kernel", "F", (True, True, True, True), (True, True, True))
hdr = "; S4D conv + FFN fused op (generated by gen/gen2.py)\n"
for n in names:
    hdr += f"; @launch kernel={n} grid=(512,1,1) block=(256,1,1) lds={LDS}\n"
hdr += '.amdgcn_target "amdgcn-amd-amdhsa--gfx950"\n.text\n'
txt = hdr + "\n".join(L) + "\n" + '.section .rodata,"a"\n'
for n in names:
    txt += kd(n, 256, 102, 256)
open(OUT, "w").write(txt)
print("wrote", OUT, len(txt))
```

```python
import struct, sys, os

OUT = sys.argv[1] if len(sys.argv) > 1 else "recurrent_scan__ssm_conv_s4d__dense_activation_gelu__prompt.s"
SPLIT = os.environ.get("SPLIT", "") != ""
STAMP = os.environ.get("STAMP", "") != ""
DUMPK = os.environ.get("DUMPK", "") != ""

L = []
def e(s=""):
    L.append("    " + s)
def lab(s):
    L.append(s + ":")
def f2u(x):
    return "0x%08x" % struct.unpack("<I", struct.pack("<f", x))[0]

XNF_OFF = 0x0;        XNF_SZ = 0x200000
XNB_OFF = 0x200000;   XNB_SZ = 0x200000
W2F_OFF = 0x400000;   W2F_SZ = 8 * 16 * 14336
HF_OFF  = 0x600000;   HF_SZ = 32 * 16 * 14336
ST_OFF  = 0xD80000;   ST_SZ = 512 * 4096
FL_OFF  = 0xF80000;   FL_SZ = 4096
KP_OFF  = 0x1000000;  KP_SZ = 512 * 5120
DBG_OFF = 0x1800000

LOG2E = 1.4426950408889634
LOG2E_HI = struct.unpack("<f", struct.pack("<f", LOG2E))[0]
LOG2E_LO = LOG2E - LOG2E_HI
LN2 = 0.6931471805599453
INV2PI = 0.15915494309189535
GC1 = 2 * 0.7978845608028654 * LOG2E
GC2 = GC1 * 0.044715
SPIN_MAX = 1 << 20

P_X, P_LAR, P_AIM, P_CR, P_CI, P_LDT, P_DSK = 4, 6, 8, 10, 12, 14, 16
P_W1, P_B1, P_W2, P_B2, P_OUT, P_DBG, P_WS = 20, 22, 24, 26, 28, 30, 32

def srd(dst, ptr, size, off=0):
    if off:
        e(f"s_add_u32 s{dst}, s{ptr}, 0x{off:x}")
        e(f"s_addc_u32 s{dst+1}, s{ptr+1}, 0")
    else:
        e(f"s_mov_b32 s{dst}, s{ptr}")
        e(f"s_mov_b32 s{dst+1}, s{ptr+1}")
    e(f"s_mov_b32 s{dst+2}, 0x{size:x}")
    e(f"s_mov_b32 s{dst+3}, 0x00020000")

_st = [0]
KIDX = [0]
def stamp(reset=False):
    if not STAMP: return
    if reset:
        _st[0] = 0
        e("s_memrealtime s[78:79]")
    k = _st[0]; _st[0] += 1
    assert k < 20
    e("s_memtime s[100:101]")
    e("s_waitcnt lgkmcnt(0)")
    e(f"s_mov_b32 s{80+k}, s100")
def stamp_flush():
    if not STAMP: return
    stamp()
    e("s_mov_b64 exec, 1")
    e("s_memrealtime s[100:101]")
    srd(36, P_WS, 0x80000, DBG_OFF + KIDX[0] * 0x80000)
    e("v_readfirstlane_b32 s40, v0")
    e("s_lshr_b32 s40, s40, 6")
    e("s_lshl_b32 s41, s2, 2")
    e("s_add_u32 s40, s40, s41")
    e("s_lshl_b32 s40, s40, 7")
    e("v_mov_b32 v1, 0")
    e("s_waitcnt lgkmcnt(0)")
    e("v_mov_b32 v2, s100")
    e("v_mov_b32 v3, s78")
    e(f"v_mov_b32 v4, {_st[0]}")
    e("buffer_store_dwordx3 v[2:4], v1, s[36:39], s40 offen")
    for k in range(_st[0]):
        e(f"v_mov_b32 v5, s{80+k}")
        e(f"buffer_store_dword v5, v1, s[36:39], s40 offen offset:{16+4*k}")
        e("s_nop 1")
    e("s_mov_b64 exec, -1")

def kernel_begin(name):
    L.append(f".globl {name}")
    L.append(".p2align 8")
    L.append(f".type {name},@function")
    lab(name)

def kd(name, vgpr, sgpr, accum):
    return f""".p2align 6
.amdhsa_kernel {name}
  .amdhsa_next_free_vgpr {vgpr}
  .amdhsa_next_free_sgpr {sgpr}
  .amdhsa_accum_offset {accum}
  .amdhsa_group_segment_fixed_size 0
  .amdhsa_kernarg_size 120
  .amdhsa_user_sgpr_count 2
  .amdhsa_user_sgpr_kernarg_segment_ptr 1
  .amdhsa_system_sgpr_workgroup_id_x 1
.end_amdhsa_kernel
"""

def cmul(d, x, y, t):
    e(f"v_pk_mul_f32 v[{t}:{t+1}], v[{x}:{x+1}], v[{y}:{y+1}] op_sel:[0,0] op_sel_hi:[0,1]")
    e(f"v_pk_fma_f32 v[{d}:{d+1}], v[{x}:{x+1}], v[{y}:{y+1}], v[{t}:{t+1}] op_sel:[1,1,0] op_sel_hi:[1,0,1] neg_lo:[1,0,0]")

_uid = [0]
def poll(srd_r, voff, soff, expect, nlanes, vt, tag):
    _uid[0] += 1
    lb = f"POLL_{tag}_{_uid[0]}"
    e(f"s_mov_b32 s76, {SPIN_MAX}")
    if nlanes < 64:
        e(f"s_mov_b32 s74, 0x{(1 << nlanes) - 1:x}")
        e("s_mov_b32 s75, 0")
    else:
        e("s_mov_b64 s[74:75], -1")
    e(f"s_mov_b32 s77, 0x{expect:x}")
    lab(lb)
    e(f"buffer_load_dword v{vt}, v{voff}, s[{srd_r}:{srd_r+3}], {soff} offen sc1")
    e("s_waitcnt vmcnt(0)")
    e(f"v_cmp_ne_u32 vcc, s77, v{vt}")
    e("s_and_b64 vcc, vcc, s[74:75]")
    e(f"s_cbranch_scc0 {lb}_D")
    e("s_sleep 6")
    e("s_sub_u32 s76, s76, 1")
    e("s_cmp_lg_u32 s76, 0")
    e(f"s_cbranch_scc1 {lb}")
    lab(lb + "_D")

def dpp_reduce(regs, op):
    steps = ["quad_perm:[1,0,3,2] row_mask:0xf bank_mask:0xf", "quad_perm:[2,3,0,1] row_mask:0xf bank_mask:0xf",
             "row_half_mirror row_mask:0xf bank_mask:0xf", "row_mirror row_mask:0xf bank_mask:0xf",
             "row_bcast:15 row_mask:0xa bank_mask:0xf", "row_bcast:31 row_mask:0xc bank_mask:0xf"]
    for st in steps:
        e(f"s_nop {1 if len(regs) < 2 else 0}" if len(regs) < 3 else "s_nop 0")
        for r in regs:
            e(f"{op}_dpp v{r}, v{r}, v{r} {st}")
    e("s_nop 0")

def gen_G(px, ln, g1, g2, waits):
    SL = " sc1" if "L" in waits else ""
    SH = " sc1" if "H" in waits else ""
    stamp(True)
    e("s_and_b32 s61, s2, 7")
    e("s_lshr_b32 s62, s2, 3")
    e("s_lshr_b32 s63, s61, 1")
    e("s_lshl_b32 s63, s63, 2")
    e("s_lshr_b32 s67, s62, 3")
    e("s_add_u32 s63, s63, s67")
    e("s_and_b32 s64, s61, 1")
    e("s_lshl_b32 s64, s64, 3")
    e("s_and_b32 s66, s62, 7")
    e("s_add_u32 s64, s64, s66")
    e("s_lshl_b32 s65, s61, 2")
    e("s_add_u32 s65, s65, s67")
    e("s_waitcnt lgkmcnt(0)")
    srd(36, P_X, 0x200000)
    srd(40, P_W1, 512 * 1792 * 2)
    srd(44, P_WS, XNF_SZ, XNF_OFF)
    srd(48, P_WS, XNB_SZ, XNB_OFF)
    srd(52, P_WS, FL_SZ, FL_OFF)
    srd(56, P_DBG, 256)
    nvm = 0
    if ln:
        e("s_lshl_b32 s67, s2, 13")
        e("s_lshl_b32 s68, s60, 11")
        e("s_add_u32 s67, s67, s68")
        e("buffer_load_dwordx4 v[64:67], v2, s[36:39], s67 offen")
        e("buffer_load_dwordx4 v[68:71], v2, s[36:39], s67 offen offset:1024")
    SB = 14336
    def dma(s, buf):
        e(f"s_add_u32 s68, s61, {s*64*3584}")
        for q in range(4):
            e(f"s_add_u32 s70, s62, {buf*SB + q*1024}")
            e("s_mov_b32 m0, s70")
            if q == 3:
                e("s_mov_b32 exec_hi, 0")
            else:
                e("s_nop 0")
            e(f"buffer_load_dwordx4 v{60+q}, s[40:43], s68 offen lds")
        e("s_mov_b64 exec, -1")
    if g1:
        e("s_mul_i32 s70, s60, 224")
        e("s_mov_b32 s72, 4682")
        for q in range(4):
            e(f"v_add_u32 v{60+q}, s70, v1")
            if q:
                e(f"v_add_u32 v{60+q}, {64*q}, v{60+q}")
            e(f"v_mul_lo_u32 v230, v{60+q}, s72")
            e("v_lshrrev_b32 v230, 16, v230")
            e("v_mul_u32_u24 v231, 14, v230")
            e(f"v_sub_u32 v231, v{60+q}, v231")
            e("v_mul_u32_u24 v230, 3584, v230")
            e(f"v_lshl_add_u32 v{60+q}, v231, 4, v230")
        e("s_mul_i32 s61, s64, 224")
        e("s_mul_i32 s62, s60, 3584")
        def early_loads():
            for s in range(4):
                dma(s, s)
            srd(36, P_B1, 1792 * 2)
            e("v_lshrrev_b32 v230, 4, v1")
            e("v_lshlrev_b32 v230, 3, v230")
            for i in range(7):
                e(f"buffer_load_dwordx2 v[{216+2*i}:{217+2*i}], v230, s[36:39], s61 offen offset:{32*i}")
        if not ln:
            early_loads()
    e("s_mov_b32 s72, 0xffff0000")
    if ln:
        LT = 4 * SB; LP = 1040; T2 = LT + 8 * LP
        e(f"s_mov_b32 s73, {f2u(1.0/512)}")
        stamp()
        e(f"s_waitcnt vmcnt({nvm})")
        stamp()
        for i in range(2):
            for j in range(4):
                e(f"v_lshlrev_b32 v{72+8*i+2*j}, 16, v{64+4*i+j}")
                e(f"v_and_b32 v{73+8*i+2*j}, s72, v{64+4*i+j}")
        for i in range(2):
            b = 72 + 8 * i; t = 88 + 4 * i
            e(f"v_pk_add_f32 v[{t}:{t+1}], v[{b}:{b+1}], v[{b+2}:{b+3}]")
            e(f"v_pk_add_f32 v[{t+2}:{t+3}], v[{b+4}:{b+5}], v[{b+6}:{b+7}]")
        for i in range(2):
            t = 88 + 4 * i
            e(f"v_pk_add_f32 v[{t}:{t+1}], v[{t}:{t+1}], v[{t+2}:{t+3}]")
        for i in range(2):
            t = 88 + 4 * i
            e(f"v_add_f32 v{t}, v{t}, v{t+1}")
        dpp_reduce([88, 92], "v_add_f32")
        e("v_readlane_b32 s70, v88, 63")
        e("v_readlane_b32 s71, v92, 63")
        e("v_mov_b32 v90, s73")
        e("s_nop 0")
        e("v_mul_f32 v89, s70, v90")
        e("v_mul_f32 v93, s71, v90")
        for i in range(2):
            b = 72 + 8 * i; m = 88 + 4 * i; d = 96 + 8 * i
            for j in range(4):
                e(f"v_pk_add_f32 v[{d+2*j}:{d+2*j+1}], v[{b+2*j}:{b+2*j+1}], v[{m}:{m+1}] op_sel:[0,1] op_sel_hi:[1,1] neg_lo:[0,1] neg_hi:[0,1]")
        for i in range(2):
            d = 96 + 8 * i; t = 112 + 2 * i
            e(f"v_pk_mul_f32 v[{t}:{t+1}], v[{d}:{d+1}], v[{d}:{d+1}]")
        for j in range(1, 4):
            for i in range(2):
                d = 96 + 8 * i; t = 112 + 2 * i
                e(f"v_pk_fma_f32 v[{t}:{t+1}], v[{d+2*j}:{d+2*j+1}], v[{d+2*j}:{d+2*j+1}], v[{t}:{t+1}]")
        e("v_add_f32 v112, v112, v113")
        e("v_add_f32 v114, v114, v115")
        dpp_reduce([112, 114], "v_add_f32")
        e("v_readlane_b32 s70, v112, 63")
        e("v_readlane_b32 s71, v114, 63")
        e(f"s_mov_b32 s73, {f2u(1e-5)}")
        e("v_cvt_pk_bf16_f32 v116, v89, v93")
        e("v_mul_f32 v112, s70, v90")
        e("v_mul_f32 v113, s71, v90")
        e("v_lshlrev_b32 v89, 16, v116")
        e("v_and_b32 v93, s72, v116")
        def rnd2(a, b):
            e(f"v_cvt_pk_bf16_f32 v116, v{a}, v{b}")
            e(f"v_lshlrev_b32 v{a}, 16, v116")
            e(f"v_and_b32 v{b}, s72, v116")
        rnd2(112, 113)
        e("v_add_f32 v112, s73, v112")
        e("v_add_f32 v113, s73, v113")
        rnd2(112, 113)
        e("v_sqrt_f32 v112, v112")
        e("v_sqrt_f32 v113, v113")
        e("s_nop 0")
        rnd2(112, 113)
        e("v_rcp_f32 v91, v112")
        e("v_rcp_f32 v95, v113")
        e("s_nop 0")
        e("v_fma_f32 v114, -v112, v91, 1.0")
        e("v_fma_f32 v115, -v113, v95, 1.0")
        e("v_fmac_f32 v91, v91, v114")
        e("v_fmac_f32 v95, v95, v115")
        for i in range(2):
            b = 72 + 8 * i; m = 88 + 4 * i; d = 96 + 8 * i; P = 64 + 4 * i; H = 120 + 4 * i
            for j in range(4):
                e(f"v_pk_add_f32 v[{d+2*j}:{d+2*j+1}], v[{b+2*j}:{b+2*j+1}], v[{m}:{m+1}] op_sel:[0,1] op_sel_hi:[1,1] neg_lo:[0,1] neg_hi:[0,1]")
            for j in range(4):
                e(f"v_cvt_pk_bf16_f32 v{P+j}, v{d+2*j}, v{d+2*j+1}")
            for j in range(4):
                e(f"v_lshlrev_b32 v{d+2*j}, 16, v{P+j}")
                e(f"v_and_b32 v{d+2*j+1}, s72, v{P+j}")
            for j in range(4):
                e(f"v_pk_mul_f32 v[{d+2*j}:{d+2*j+1}], v[{d+2*j}:{d+2*j+1}], v[{m+2}:{m+3}] op_sel:[0,1] op_sel_hi:[1,1]")
            for j in range(4):
                e(f"v_cvt_pk_bf16_f32 v{P+j}, v{d+2*j}, v{d+2*j+1}")
            for j in range(4):
                e(f"v_lshlrev_b32 v{d+2*j}, 16, v{P+j}")
                e(f"v_and_b32 v{d+2*j+1}, s72, v{P+j}")
            for j in range(4):
                e(f"v_cvt_pk_f16_f32 v{H+j}, v{d+2*j}, v{d+2*j+1}")
        e(f"s_mul_i32 s70, s60, {2*LP}")
        e(f"s_add_u32 s70, s70, {LT}")
        e("v_add_u32 v230, s70, v2")
        for i in range(2):
            e(f"ds_write_b128 v230, v[{64+4*i}:{67+4*i}] offset:{LP*i}")
            e(f"ds_write_b128 v230, v[{120+4*i}:{123+4*i}] offset:{T2 - LT + LP*i}")
        stamp()
        e("s_waitcnt lgkmcnt(0)")
        e("s_barrier")
        e("s_cmp_ge_u32 s60, 2")
        e(f"s_cbranch_scc1 {px}_LNB")
        e("v_and_b32 v230, 7, v1")
        e("v_lshrrev_b32 v231, 5, v1")
        e("v_bfe_u32 v232, v1, 3, 2")
        e(f"v_mul_u32_u24 v233, {LP}, v230")
        e("v_lshl_add_u32 v233, v231, 6, v233")
        e("v_lshl_add_u32 v233, v232, 3, v233")
        e("s_lshl_b32 s70, s60, 9")
        e("v_add_u32 v233, s70, v233")
        e("v_lshlrev_b32 v234, 10, v231")
        e("v_lshl_add_u32 v234, v232, 8, v234")
        e("v_lshl_add_u32 v234, v230, 4, v234")
        for q in range(4):
            e(f"ds_read_b64 v[{64+4*q}:{65+4*q}], v233 offset:{LT + 128*q}")
            e(f"ds_read_b64 v[{66+4*q}:{67+4*q}], v233 offset:{LT + 128*q + 32}")
        e("s_lshr_b32 s70, s2, 1")
        e("s_lshl_b32 s70, s70, 14")
        e("s_and_b32 s71, s2, 1")
        e("s_lshl_b32 s71, s71, 7")
        e("s_add_u32 s70, s70, s71")
        e("s_lshl_b32 s71, s60, 13")
        e("s_add_u32 s70, s70, s71")
        for q in range(4):
            e(f"s_waitcnt lgkmcnt({6-2*q})")
            if q == 2:
                e("s_add_u32 s70, s70, 4096")
            e(f"buffer_store_dwordx4 v[{64+4*q}:{67+4*q}], v234, s[44:47], s70 offen offset:{2048*(q&1)}{SL}")
        e("s_cmp_eq_u32 s60, 0")
        e(f"s_cbranch_scc0 {px}_LNJ")
        e("v_lshlrev_b32 v230, 2, v1")
        e("v_mov_b32 v231, 0")
        e("s_lshl_b32 s70, s2, 4")
        e("s_mov_b64 exec, 15")
        e(f"buffer_store_dword v231, v230, s[52:55], s70 offen{SL}")
        e("s_mov_b64 exec, -1")
        e(f"s_branch {px}_LNJ")
        lab(f"{px}_LNB")
        e("v_lshrrev_b32 v230, 4, v1")
        e("v_bfe_u32 v231, v1, 2, 2")
        e("v_and_b32 v232, 3, v1")
        e("v_sub_u32 v231, 3, v231")
        e(f"v_mul_u32_u24 v233, {LP}, v231")
        e("v_lshl_add_u32 v233, v230, 5, v233")
        e("v_lshl_add_u32 v233, v232, 3, v233")
        e("s_sub_u32 s71, s60, 2")
        e("s_lshl_b32 s70, s71, 9")
        e(f"s_add_u32 s70, s70, {T2}")
        e("v_add_u32 v233, s70, v233")
        for q in range(4):
            e(f"ds_read_b64_tr_b16 v[{64+4*q}:{65+4*q}], v233 offset:{4*LP + 128*q}")
            e(f"ds_read_b64_tr_b16 v[{66+4*q}:{67+4*q}], v233 offset:{128*q}")
        e("s_lshl_b32 s70, s2, 13")
        e("s_lshl_b32 s71, s71, 12")
        e("s_add_u32 s70, s70, s71")
        for q in range(4):
            e(f"s_waitcnt lgkmcnt({6-2*q})")
            e(f"buffer_store_dwordx4 v[{64+4*q}:{67+4*q}], v2, s[48:51], s70 offen offset:{1024*q}{SL}")
        lab(f"{px}_LNJ")
        stamp()
        if "L" in waits:
            e("s_waitcnt vmcnt(0)")
            e("s_barrier")
            stamp()
            e("s_cmp_eq_u32 s60, 0")
            e(f"s_cbranch_scc0 {px}_LNF")
            e("v_mov_b32 v230, s2")
            e("v_mov_b32 v231, 1")
            e("s_mov_b64 exec, 1")
            e("buffer_store_byte v231, v230, s[56:59], 0 offen sc1")
            e("s_mov_b64 exec, -1")
            lab(f"{px}_LNF")
        if g1:
            early_loads()
    if g1:
        dma(4, 4)
        stamp()
        e(f"s_waitcnt vmcnt(4)")
        for i in range(7):
            for j in range(2):
                a = 4 + 8 * i + 4 * j
                e(f"v_lshlrev_b32 v{a}, 16, v{216+2*i}")
                e(f"v_and_b32 v{a+1}, s72, v{216+2*i}")
                e(f"v_lshlrev_b32 v{a+2}, 16, v{217+2*i}")
                e(f"v_and_b32 v{a+3}, s72, v{217+2*i}")
        e("v_lshrrev_b32 v230, 2, v1")
        e("v_mul_u32_u24 v3, 224, v230")
        e("v_and_b32 v230, 3, v1")
        e("v_lshl_add_u32 v3, v230, 3, v3")
        e("v_add_u32 v248, 0x8000, v3")
        if "L" in waits:
            e("s_cmp_eq_u32 s60, 0")
            e(f"s_cbranch_scc0 {px}_W1")
            e("v_and_b32 v230, 3, v1")
            e("v_lshlrev_b32 v230, 2, v230")
            e("s_lshl_b32 s70, s63, 4")
            poll(56, 230, "s70", 0x01010101, 4, 231, px)
            lab(f"{px}_W1")
            e("s_barrier")
        stamp()
        e("s_lshl_b32 s67, s63, 3")
        e("s_lshl_b32 s70, s60, 1")
        e("s_add_u32 s67, s67, s70")
        e("s_lshl_b32 s73, s67, 14")
        def bload(s):
            R = 64 + 16 * (s % 6)
            e(f"s_add_u32 s70, s73, {s*2048}")
            e(f"s_add_u32 s74, s73, {s*2048 + 16384}")
            for j in range(2):
                for k in range(2):
                    r = R + 8 * j + 4 * k
                    e(f"buffer_load_dwordx4 v[{r}:{r+3}], v2, s[44:47], s{70 if j == 0 else 74} offen offset:{1024*k}{SL}")
        for s in range(6):
            bload(s)
        AR = [160, 188]
        def lds_a(buf, ksl, dst):
            for i in range(7):
                for e2 in range(2):
                    off = buf*SB + (32*ksl+16*e2)*224 + 32*i
                    if off >= 0x8000:
                        e(f"ds_read_b64_tr_b16 v[{dst+4*i+2*e2}:{dst+4*i+2*e2+1}], v248 offset:{off - 0x8000}")
                    else:
                        e(f"ds_read_b64_tr_b16 v[{dst+4*i+2*e2}:{dst+4*i+2*e2+1}], v3 offset:{off}")
        vmw = [20, 16, 20, 24, 24, 16, 8, 0]
        for s in range(8):
            e(f"s_waitcnt vmcnt({vmw[s]})")
            e("s_barrier")
            if s in (0, 4): stamp()
            buf = s % 5
            lds_a(buf, 0, AR[0])
            lds_a(buf, 1, AR[1])
            if 1 <= s <= 3:
                dma(s + 4, (s + 4) % 5)
            if 1 <= s <= 2:
                bload(s + 5)
            R = 64 + 16 * (s % 6)
            for ksl in range(2):
                e(f"s_waitcnt lgkmcnt({14 if ksl == 0 else 0})")
                A = AR[ksl]
                for i in range(7):
                    for j in range(2):
                        a = 4 + 8 * i + 4 * j
                        b = R + 8 * j + 4 * ksl
                        e(f"v_mfma_f32_16x16x32_bf16 v[{a}:{a+3}], v[{A+4*i}:{A+4*i+3}], v[{b}:{b+3}], v[{a}:{a+3}]")
        stamp()
    srd(36, P_WS, W2F_SZ, W2F_OFF)
    srd(40, P_WS, HF_SZ, HF_OFF)
    NA, NB = 6, 5
    AREG = [68 + 16 * k for k in range(NA)]
    BREG = [164 + 16 * k for k in range(NB)]
    ops = []
    def g2load(kind, k):
        fbl, q = k >> 2, k & 3
        R = (AREG[k % NA] if kind == "A" else BREG[k % NB])
        sr = 36 if kind == "A" else 40
        base = 68 if kind == "A" else 69
        e(f"s_add_u32 s70, s{base}, {fbl*14336 + q*4096}")
        for i in range(4):
            sc = SL if kind == "A" else SH
            if q < 3:
                e(f"buffer_load_dwordx4 v[{R+4*i}:{R+4*i+3}], v2, s[{sr}:{sr+3}], s70 offen offset:{1024*i}{sc}")
            else:
                e(f"buffer_load_dwordx2 v[{R+4*i}:{R+4*i+1}], v244, s[{sr}:{sr+3}], s70 offen offset:{512*i}{sc}")
            ops.append((kind, k))
    e("v_lshlrev_b32 v244, 3, v1")
    if g2:
        e("s_lshl_b32 s70, s66, 4")
        e("s_lshl_b32 s71, s60, 2")
        e("s_add_u32 s70, s70, s71")
        e("s_mul_i32 s68, s70, 14336")
        e("s_lshl_b32 s70, s65, 4")
        e("s_add_u32 s70, s70, s71")
        e("s_mul_i32 s69, s70, 14336")
        e("v_lshlrev_b32 v245, 2, v1")
        if "L" in waits:
            poll(56, 245, "0", 0x01010101, 64, 249, px)
            e("s_lshl_b32 s70, s66, 7")
            e("s_add_u32 s70, s70, 3072")
            poll(52, 245, "s70", 1, 32, 249, px)
        if not g1:
            for k in range(NA):
                g2load("A", k)
    if g1:
        e(f"s_mov_b32 s74, {f2u(-GC2)}")
        e(f"s_mov_b32 s75, {f2u(-GC2)}")
        e(f"v_mov_b32 v246, {f2u(-GC1)}")
        e(f"v_mov_b32 v247, {f2u(-GC1)}")
        e("s_lshr_b32 s70, s67, 2")
        e("s_lshl_b32 s70, s70, 4")
        e("s_add_u32 s70, s70, s64")
        e("s_mul_i32 s70, s70, 14336")
        e("s_and_b32 s71, s67, 3")
        e("s_lshl_b32 s73, s71, 9")
        e("s_add_u32 s73, s73, s70")
        e("s_add_u32 s73, s73, 12288")
        e("s_lshl_b32 s71, s71, 10")
        e("s_add_u32 s70, s70, s71")
        def gelu_pairs(pairs, outs):
            T = [164 + 2 * k for k in range(len(pairs))]
            for a, t in zip(pairs, T):
                e(f"v_pk_mul_f32 v[{t}:{t+1}], v[{a}:{a+1}], v[{a}:{a+1}]")
            for a, t in zip(pairs, T):
                e(f"v_pk_fma_f32 v[{t}:{t+1}], v[{t}:{t+1}], s[74:75], v[246:247]")
            for a, t in zip(pairs, T):
                e(f"v_pk_mul_f32 v[{t}:{t+1}], v[{a}:{a+1}], v[{t}:{t+1}]")
            for t in T:
                e(f"v_exp_f32 v{t}, v{t}")
                e(f"v_exp_f32 v{t+1}, v{t+1}")
            e("s_nop 0")
            for t in T:
                e(f"v_pk_add_f32 v[{t}:{t+1}], v[{t}:{t+1}], 1.0 op_sel_hi:[1,0]")
            for t in T:
                e(f"v_rcp_f32 v{t}, v{t}")
                e(f"v_rcp_f32 v{t+1}, v{t+1}")
            e("s_nop 0")
            for a, t in zip(pairs, T):
                e(f"v_pk_mul_f32 v[{t}:{t+1}], v[{a}:{a+1}], v[{t}:{t+1}]")
            for t, o in zip(T, outs):
                e(f"v_cvt_pk_bf16_f32 v{o}, v{t}, v{t+1}")
        e("s_nop 3")
        cnt = 0
        for q in range(3):
            for j in range(2):
                a0 = 4 + 8 * (2 * q) + 4 * j; a1 = 4 + 8 * (2 * q + 1) + 4 * j
                O = 176 + 4 * (cnt % 8); cnt += 1
                gelu_pairs([a0, a0 + 2, a1, a1 + 2], [O, O + 1, O + 2, O + 3])
                e(f"buffer_store_dwordx4 v[{O}:{O+3}], v2, s[40:43], s70 offen offset:{1024*j}{SH}")
            if q < 2:
                e("s_add_u32 s70, s70, 4096")
        a0 = 4 + 48; a1 = 4 + 48 + 4
        O = 176 + 4 * (cnt % 8)
        gelu_pairs([a0, a0 + 2, a1, a1 + 2], [O, O + 1, O + 2, O + 3])
        e(f"buffer_store_dwordx2 v[{O}:{O+1}], v244, s[40:43], s73 offen{SH}")
        e(f"buffer_store_dwordx2 v[{O+2}:{O+3}], v244, s[40:43], s73 offen offset:512{SH}")
        stamp()
        if g2:
            e("s_waitcnt vmcnt(0)")
            e("s_barrier")
            stamp()
            e("s_cmp_eq_u32 s60, 0")
            e(f"s_cbranch_scc0 {px}_HF")
            e("s_lshl_b32 s70, s63, 5")
            e("s_add_u32 s70, s70, s64")
            e("s_lshl_b32 s70, s70, 2")
            e("v_mov_b32 v230, 0")
            e("v_mov_b32 v231, 1")
            e("s_mov_b64 exec, 1")
            e("buffer_store_dword v231, v230, s[52:55], s70 offen sc1")
            e("s_mov_b64 exec, -1")
            e("s_lshr_b32 s70, s65, 1")
            e("s_lshl_b32 s70, s70, 7")
            poll(52, 245, "s70", 1, 16, 249, px)
            lab(f"{px}_HF")
            for k in range(NA):
                g2load("A", k)
            e("s_barrier")
    if g2:
        stamp()
        for k in range(NB):
            g2load("B", k)
        for i in range(64):
            e(f"v_mov_b32 v{4+i}, 0")
        for k in range(16):
            last = max(i for i, o in enumerate(ops) if o in (("A", k), ("B", k)))
            e(f"s_waitcnt vmcnt({len(ops) - 1 - last})")
            if k in (0, 8): stamp()
            q = k & 3
            A = AREG[k % NA]; B = BREG[k % NB]
            for i in range(4):
                for j in range(4):
                    a = 4 + 16 * j + 4 * i
                    if q < 3:
                        e(f"v_mfma_f32_16x16x32_bf16 v[{a}:{a+3}], v[{A+4*i}:{A+4*i+3}], v[{B+4*j}:{B+4*j+3}], v[{a}:{a+3}]")
                    else:
                        e(f"v_mfma_f32_16x16x16_bf16 v[{a}:{a+3}], v[{A+4*i}:{A+4*i+1}], v[{B+4*j}:{B+4*j+1}], v[{a}:{a+3}]")
            if k + NA < 16:
                g2load("A", k + NA)
            if k + NB < 16:
                g2load("B", k + NB)
        stamp()
        srd(36, P_X, 0x200000)
        srd(40, P_B2, 1024)
        srd(44, P_WS, ST_SZ, ST_OFF)
        srd(48, P_OUT, 0x200000)
        if "H" in waits:
            e("s_cmp_eq_u32 s60, 0")
            e(f"s_cbranch_scc0 {px}_SW")
            e("s_lshl_b32 s70, s66, 7")
            e("s_add_u32 s70, s70, 2048")
            poll(52, 245, "s70", 1, 32, 249, px)
            lab(f"{px}_SW")
            e("s_barrier")
        e("v_and_b32 v230, 15, v1")
        e("v_lshrrev_b32 v231, 4, v1")
        e("s_lshl_b32 s70, s65, 6")
        e("s_lshl_b32 s71, s60, 4")
        e("s_add_u32 s70, s70, s71")
        e("v_add_u32 v232, s70, v230")
        e("v_lshlrev_b32 v233, 10, v232")
        e("v_lshl_add_u32 v233, v231, 3, v233")
        e("s_lshl_b32 s73, s66, 7")
        for i in range(4):
            e(f"buffer_load_dwordx2 v[{132+2*i}:{133+2*i}], v233, s[36:39], s73 offen offset:{32*i}")
        e("v_lshlrev_b32 v234, 3, v231")
        for i in range(4):
            e(f"buffer_load_dwordx2 v[{140+2*i}:{141+2*i}], v234, s[40:43], s73 offen offset:{32*i}")
        e("v_lshlrev_b32 v235, 14, v231")
        e("v_lshl_add_u32 v235, v232, 1, v235")
        e("s_lshl_b32 s70, s66, 18")
        for i in range(4):
            for r in range(4):
                e(f"s_add_u32 s71, s70, {(16*i + r)*4096}")
                e(f"buffer_load_ushort v{148+4*i+r}, v235, s[44:47], s71 offen{SH}")
        e("s_lshl_b32 s70, s60, 14")
        e("v_add_u32 v236, s70, v2")
        for j in range(4):
            for i in range(4):
                a = 4 + 16 * j + 4 * i
                e(f"ds_write_b128 v236, v[{a}:{a+3}] offset:{(4*j+i)*1024}")
        e("s_waitcnt lgkmcnt(0)")
        e("s_barrier")
        e("s_lshl_b32 s70, s60, 12")
        e("v_add_u32 v236, s70, v2")
        for ww in range(4):
            for i in range(4):
                r = 68 + 16 * ww + 4 * i
                e(f"ds_read_b128 v[{r}:{r+3}], v236 offset:{ww*16384 + i*1024}")
        e(f"s_mov_b32 s74, {f2u(-LOG2E)}")
        e("s_waitcnt lgkmcnt(0)")
        for q in range(8):
            e(f"v_pk_add_f32 v[{68+2*q}:{69+2*q}], v[{68+2*q}:{69+2*q}], v[{84+2*q}:{85+2*q}]")
            e(f"v_pk_add_f32 v[{100+2*q}:{101+2*q}], v[{100+2*q}:{101+2*q}], v[{116+2*q}:{117+2*q}]")
        for q in range(8):
            e(f"v_pk_add_f32 v[{68+2*q}:{69+2*q}], v[{68+2*q}:{69+2*q}], v[{100+2*q}:{101+2*q}]")
        stamp()
        e("s_waitcnt vmcnt(0)")
        def rnd4(a, T):
            e(f"v_cvt_pk_bf16_f32 v{T}, v{a}, v{a+1}")
            e(f"v_cvt_pk_bf16_f32 v{T+1}, v{a+2}, v{a+3}")
            e(f"v_lshlrev_b32 v{a}, 16, v{T}")
            e(f"v_and_b32 v{a+1}, s72, v{T}")
            e(f"v_lshlrev_b32 v{a+2}, 16, v{T+1}")
            e(f"v_and_b32 v{a+3}, s72, v{T+1}")
        def unp4(dst, src):
            e(f"v_lshlrev_b32 v{dst}, 16, v{src}")
            e(f"v_and_b32 v{dst+1}, s72, v{src}")
            e(f"v_lshlrev_b32 v{dst+2}, 16, v{src+1}")
            e(f"v_and_b32 v{dst+3}, s72, v{src+1}")
        for i in range(4):
            a = 68 + 4 * i
            rnd4(a, 12)
            unp4(16, 140 + 2 * i)
            for r in range(4):
                e(f"v_add_f32 v{a+r}, v{a+r}, v{16+r}")
            rnd4(a, 12)
            for r in range(4):
                e(f"v_mul_f32 v{16+r}, s74, v{a+r}")
            for r in range(4):
                e(f"v_exp_f32 v{16+r}, v{16+r}")
            e("s_nop 0")
            for r in range(4):
                e(f"v_add_f32 v{16+r}, 1.0, v{16+r}")
            for r in range(4):
                e(f"v_rcp_f32 v{16+r}, v{16+r}")
            e("s_nop 0")
            for r in range(4):
                e(f"v_mul_f32 v{a+r}, v{a+r}, v{16+r}")
            rnd4(a, 12)
            for r in range(4):
                e(f"v_lshlrev_b32 v{16+r}, 16, v{148+4*i+r}")
            for r in range(4):
                e(f"v_mul_f32 v{a+r}, v{a+r}, v{16+r}")
            rnd4(a, 12)
            unp4(16, 132 + 2 * i)
            for r in range(4):
                e(f"v_add_f32 v{a+r}, v{a+r}, v{16+r}")
            e(f"v_cvt_pk_bf16_f32 v{20+2*i}, v{a}, v{a+1}")
            e(f"v_cvt_pk_bf16_f32 v{21+2*i}, v{a+2}, v{a+3}")
            e(f"buffer_store_dwordx2 v[{20+2*i}:{21+2*i}], v233, s[48:51], s73 offen offset:{32*i}")
    if STAMP:
        stamp()
        e("s_waitcnt vmcnt(0)")
    stamp_flush()
    e("s_endpgm")

def gen_C(px, rep, kc, waits):
    CH = 38400; CS = 4160; KB = 8 * CS
    SL = " sc1" if "L" in waits else ""
    SH = " sc1" if "H" in waits else ""
    stamp(True)
    e("s_sub_u32 s61, s2, 256")
    e("s_and_b32 s62, s61, 7")
    e("s_lshr_b32 s61, s61, 3")
    e("s_lshl_b32 s62, s62, 5")
    e("s_add_u32 s61, s61, s62")
    e("s_lshr_b32 s62, s60, 1")
    e("s_and_b32 s63, s60, 1")
    e("s_lshl_b32 s64, s61, 1")
    e("s_add_u32 s64, s64, s62")
    e(f"s_mul_i32 s65, s62, {CH}")
    e("v_and_b32 v6, 15, v1")
    e("v_lshrrev_b32 v7, 4, v1")
    e("s_waitcnt lgkmcnt(0)")
    srd(36, P_W2, 512 * 1792 * 2)
    srd(40, P_WS, W2F_SZ, W2F_OFF)
    srd(44, P_WS, XNB_SZ, XNB_OFF)
    srd(48, P_WS, ST_SZ, ST_OFF)
    srd(52, P_WS, FL_SZ, FL_OFF)
    srd(56, P_DBG, 256)
    e("s_mov_b32 s72, 0xffff0000")
    if kc:
        e("s_lshl_b32 s66, s64, 8")
        e("s_lshl_b32 s67, s63, 7")
        e("s_add_u32 s66, s66, s67")
        e("v_lshl_add_u32 v8, v1, 1, s66")
        e("s_lshl_b32 s67, s64, 1")
        e("v_mov_b32 v9, s67")
        e(f"global_load_ushort v10, v8, s[{P_LAR}:{P_LAR+1}]")
        e(f"global_load_ushort v11, v8, s[{P_AIM}:{P_AIM+1}]")
        e(f"global_load_ushort v12, v8, s[{P_CR}:{P_CR+1}]")
        e(f"global_load_ushort v13, v8, s[{P_CI}:{P_CI+1}]")
        e(f"global_load_ushort v14, v9, s[{P_LDT}:{P_LDT+1}]")
        e(f"global_load_ushort v15, v9, s[{P_DSK}:{P_DSK+1}]")
    if rep:
        e("s_lshr_b32 s66, s64, 4")
        e("s_and_b32 s67, s64, 15")
        e("v_lshlrev_b32 v16, 12, v7")
        e("v_lshl_add_u32 v16, v6, 1, v16")
        e(f"s_mul_i32 s68, s67, {112*1024}")
        e("s_lshl_b32 s69, s66, 5")
        e("s_add_u32 s68, s68, s69")
        e("s_lshl_b32 s69, s63, 16")
        e("s_add_u32 s68, s68, s69")
        for k in range(4):
            e(f"s_add_u32 s{73}, s68, {k*16384}")
            for el in range(4):
                e(f"buffer_load_ushort v{200+4*k+el}, v16, s[36:39], s73 offen offset:{1024*el}")
    if kc:
        for i in range(8):
            d = 230 + i
            e("v_lshlrev_b32 v17, 3, v0")
            if i:
                e(f"v_add_u32 v17, {i}, v17")
            e("v_cvt_f32_u32 v17, v17")
            e("v_cvt_pk_bf16_f32 v17, v17, v17")
            e("v_lshlrev_b32 v17, 16, v17")
            e("v_cvt_u32_f32 v18, v17")
            e("v_lshrrev_b32 v17, 23, v17")
            e("v_subrev_u32 v17, 134, v17")
            e("v_med3_i32 v17, v17, 0, 3")
            e("v_lshrrev_b32 v19, 7, v18")
            e("v_and_b32 v20, 7, v18")
            e("v_lshl_add_u32 v19, v19, 3, v20")
            e("v_lshrrev_b32 v19, v17, v19")
            e("v_lshl_add_u32 v19, v17, 3, v19")
            e("v_bfe_u32 v20, v18, 3, 4")
            e("v_lshrrev_b32 v21, 4, v19")
            e("v_and_b32 v19, 15, v19")
            e("v_lshl_add_u32 v20, v21, 4, v20")
            e("v_lshl_add_u32 v19, v20, 4, v19")
            e(f"v_lshlrev_b32 v{d}, 1, v19")
    def rep_store():
        e("s_lshr_b32 s66, s64, 4")
        e("s_and_b32 s67, s64, 15")
        for k in range(4):
            e(f"v_lshl_or_b32 v{216+2*k}, v{201+4*k}, 16, v{200+4*k}")
            e(f"v_lshl_or_b32 v{217+2*k}, v{203+4*k}, 16, v{202+4*k}")
        e("s_lshr_b32 s68, s66, 2")
        e("s_lshl_b32 s68, s68, 4")
        e("s_add_u32 s68, s68, s67")
        e("s_mul_i32 s68, s68, 14336")
        e("s_and_b32 s69, s66, 3")
        e("s_lshl_b32 s70, s69, 10")
        e("s_add_u32 s70, s70, s68")
        e("s_lshl_b32 s71, s63, 13")
        e("s_add_u32 s70, s70, s71")
        e(f"buffer_store_dwordx4 v[216:219], v2, s[40:43], s70 offen{SL}")
        e("s_cmp_eq_u32 s63, 0")
        e(f"s_cbranch_scc0 {px}_RP1")
        e("s_add_u32 s70, s70, 4096")
        e(f"buffer_store_dwordx4 v[220:223], v2, s[40:43], s70 offen{SL}")
        e(f"s_branch {px}_RPJ")
        lab(f"{px}_RP1")
        e("s_lshl_b32 s70, s69, 9")
        e("s_add_u32 s70, s70, s68")
        e("s_add_u32 s70, s70, 12288")
        e("v_lshlrev_b32 v17, 3, v1")
        e(f"buffer_store_dwordx2 v[220:221], v17, s[40:43], s70 offen{SL}")
        lab(f"{px}_RPJ")
    stamp()
    if kc and rep:
        e("s_waitcnt vmcnt(16)")
    else:
        e("s_waitcnt vmcnt(0)")
    stamp()
    if rep and not kc:
        rep_store()
    if not kc:
        if not waits:
            pass
        stamp_flush()
        e("s_endpgm")
        return
    e(f"s_mov_b32 s66, {f2u(LOG2E_HI)}")
    e(f"s_mov_b32 s67, {f2u(LOG2E_LO)}")
    e(f"s_mov_b32 s68, {f2u(LN2)}")
    e(f"s_mov_b32 s69, {f2u(INV2PI)}")
    for r in (10, 11, 12, 13, 14, 15):
        e(f"v_lshlrev_b32 v{r}, 16, v{r}")
    def exp_acc(dst, x, t1, t2):
        e(f"v_mul_f32 v{t1}, s66, v{x}")
        e(f"v_fma_f32 v{t2}, v{x}, s66, -v{t1}")
        e(f"v_fmac_f32 v{t2}, s67, v{x}")
        e(f"v_exp_f32 v{dst}, v{t1}")
        e(f"v_mul_f32 v{t2}, s68, v{t2}")
        e(f"v_fmac_f32 v{dst}, v{dst}, v{t2}")
    exp_acc(16, 14, 17, 18)
    exp_acc(19, 10, 20, 21)
    e("v_cvt_pk_bf16_f32 v17, v16, v19")
    e("v_lshlrev_b32 v16, 16, v17")
    e("v_and_b32 v19, s72, v17")
    e("v_mul_f32 v19, v19, v16")
    e("v_mul_f32 v19, s66, v19")
    e("v_mul_f32 v20, v11, v16")
    e("v_mul_f32 v20, s69, v20")
    e("v_mul_f32 v22, v12, v16")
    e("v_mul_f32 v23, v13, v16")
    e("v_max_f32 v24, |v22|, |v23|")
    dpp_reduce([24], "v_max_f32")
    e("v_readlane_b32 s70, v24, 63")
    for k, (m, d) in enumerate(((1.0, 26), (8.0, 28), (128.0, 30))):
        e(f"v_mul_f32 v{32+k}, {f2u(-m)}, v19")
        e(f"v_mul_f32 v{36+k}, {f2u(m)}, v20")
    e("v_frexp_exp_i32_f32 v24, s70")
    for k in range(3):
        e(f"v_exp_f32 v{32+k}, v{32+k}")
        e(f"v_fract_f32 v{36+k}, v{36+k}")
    e("v_sub_u32 v25, 0, v24")
    for k in range(3):
        e(f"v_cos_f32 v{40+k}, v{36+k}")
        e(f"v_sin_f32 v{44+k}, v{36+k}")
    e("v_ldexp_f32 v22, v22, v25")
    e("v_ldexp_f32 v23, v23, v25")
    for k, d in enumerate((26, 28, 30)):
        e(f"v_mul_f32 v{d}, v{32+k}, v{40+k}")
        e(f"v_mul_f32 v{d+1}, v{32+k}, v{44+k}")
    e(f"s_mul_i32 s70, s63, 9216")
    e("s_add_u32 s70, s70, s65")
    e("v_lshlrev_b32 v32, 2, v1")
    e("v_add_u32 v32, s70, v32")
    e("v_mul_u32_u24 v33, 288, v6")
    e("v_lshl_add_u32 v33, v7, 4, v33")
    e("v_add_u32 v33, s70, v33")
    AT = 4608
    cur = 22
    for j in range(16):
        if j:
            nxt = 34 if cur != 34 else 36
            cmul(nxt, cur, 28, nxt)
            cur = nxt
        e(f"v_cvt_pk_f16_f32 v38, v{cur}, -v{cur+1}")
        e(f"ds_write_b32 v32, v38 offset:{288*j}")
    for ks in range(4):
        e(f"ds_read_b128 v[{120+4*ks}:{123+4*ks}], v33 offset:{64*ks}")
    e("v_mov_b32 v40, 1.0")
    e("v_mov_b32 v41, 0")
    e("v_mov_b32 v42, v26")
    e("v_mov_b32 v43, v27")
    for r in range(2, 8):
        cmul(40 + 2 * r, 40 + 2 * (r - 1), 26, 40 + 2 * r)
    e("v_mov_b32 v58, v30")
    e("v_mov_b32 v59, v31")
    for i in range(2, 17):
        cmul(56 + 2 * i, 56 + 2 * (i - 1), 30, 56 + 2 * i)
    def Rr(r): return 40 + 2 * r
    def Gi(i): return 56 + 2 * i
    tiles = [
        [(None, r) for r in range(8)] + [(1, r) for r in range(8)],
        [(2, 2 * r) for r in range(4)] + [(3, 2 * r) for r in range(4)] + [(4 + i, 4 * r) for i in range(4) for r in range(2)],
        [(8 + i, 0) for i in range(9)],
    ]
    for i in range(12):
        e(f"v_mov_b32 v{100+i}, 0")
    for T, rows in enumerate(tiles):
        for row, (gi, r) in enumerate(rows):
            tp = 92 + 2 * (row & 3)
            if gi is None:
                src = Rr(r)
            elif r == 0:
                src = Gi(gi)
            else:
                cmul(tp, Gi(gi), Rr(r), tp)
                src = tp
            e(f"v_cvt_pk_f16_f32 v{112 + (row & 3)}, v{src}, v{src+1}")
            e(f"ds_write_b32 v32, v{112 + (row & 3)} offset:{AT + 288*row}")
        for ks in range(4):
            e(f"ds_read_b128 v[{136+16*(T&1)+4*ks}:{139+16*(T&1)+4*ks}], v33 offset:{AT + 64*ks}")
        e("s_waitcnt lgkmcnt(0)")
        a = 100 + 4 * T
        for ks in range(4):
            A = 136 + 16 * (T & 1) + 4 * ks
            e(f"v_mfma_f32_16x16x32_f16 v[{a}:{a+3}], v[{A}:{A+3}], v[{120+4*ks}:{123+4*ks}], v[{a}:{a+3}]")
    stamp()
    if rep:
        e("s_waitcnt vmcnt(0)")
        rep_store()
    e("s_mul_i32 s70, s63, 3072")
    e("s_add_u32 s70, s70, s65")
    e("v_lshlrev_b32 v34, 6, v6")
    e("v_lshl_add_u32 v34, v7, 4, v34")
    e("v_add_u32 v34, s70, v34")
    e("s_lshl_b32 s70, s63, 2")
    e("s_add_u32 s70, s70, s65")
    e("v_mov_b32 v35, s70")
    e("s_nop 3")
    for T in range(3):
        e(f"ds_write_b128 v34, v[{100+4*T}:{103+4*T}] offset:{18432 + 1024*T}")
    e(f"ds_write_b32 v35, v24 offset:{26112}")
    e("s_waitcnt lgkmcnt(0)")
    e("s_barrier")
    e("v_lshlrev_b32 v34, 4, v0")
    e("v_min_u32 v34, 3056, v34")
    e("v_mov_b32 v35, 0")
    for c in range(2):
        e(f"ds_read_b128 v[{40+16*c}:{43+16*c}], v34 offset:{c*CH + 18432}")
        e(f"ds_read_b128 v[{44+16*c}:{47+16*c}], v34 offset:{c*CH + 18432 + 3072}")
        e(f"ds_read_b64 v[{48+16*c}:{49+16*c}], v35 offset:{c*CH + 26112}")
    e("v_lshrrev_b32 v36, 1, v34")
    e("s_waitcnt lgkmcnt(0)")
    for c in range(2):
        b = 40 + 16 * c
        e(f"v_max_i32 v{b+10}, v{b+8}, v{b+9}")
        e(f"v_sub_u32 v{b+8}, v{b+8}, v{b+10}")
        e(f"v_sub_u32 v{b+9}, v{b+9}, v{b+10}")
        for j in range(4):
            e(f"v_ldexp_f32 v{b+j}, v{b+j}, v{b+8}")
            e(f"v_ldexp_f32 v{b+4+j}, v{b+4+j}, v{b+9}")
        for j in range(4):
            e(f"v_add_f32 v{b+j}, v{b+j}, v{b+4+j}")
        e(f"v_cvt_pk_f16_f32 v{b+12}, v{b}, v{b+1}")
        e(f"v_cvt_pk_f16_f32 v{b+13}, v{b+2}, v{b+3}")
        e(f"ds_write_b64 v36, v[{b+12}:{b+13}] offset:{c*CH + 24576}")
    e("s_cmp_eq_u32 s62, 0")
    e("s_cselect_b64 vcc, -1, 0")
    e("s_nop 1")
    e("v_cndmask_b32 v25, v66, v50, vcc")
    e("v_add_u32 v25, 1, v25")
    e("s_waitcnt lgkmcnt(0)")
    e("s_barrier")
    for c in range(2):
        for i in range(8):
            e(f"ds_read_u16 v{40+8*c+i}, v{230+i} offset:{c*CH + 24576}")
    e("v_lshrrev_b32 v34, 2, v0")
    e("v_lshlrev_b32 v34, 5, v34")
    e("v_bfe_u32 v35, v0, 1, 1")
    e("v_mul_u32_u24 v35, 2560, v35")
    e("v_and_b32 v36, 1, v0")
    e("v_lshl_add_u32 v34, v36, 4, v34")
    e("v_add_u32 v34, v34, v35")
    e("v_bfe_u32 v35, v0, 5, 1")
    e("v_mul_u32_u24 v35, 2560, v35")
    e("v_and_b32 v36, 31, v0")
    e("v_lshl_add_u32 v35, v36, 4, v35")
    e("v_bfe_u32 v36, v0, 6, 1")
    e(f"v_mul_u32_u24 v36, {CH}, v36")
    e("v_add_u32 v35, v35, v36")
    for j in range(4):
        e(f"v_mov_b32 v{64+j}, 0")
    e(f"ds_write_b128 v35, v[64:67] offset:{KB}")
    e("s_waitcnt lgkmcnt(1)")
    for c in range(2):
        for j in range(4):
            e(f"v_lshl_or_b32 v{56+4*c+j}, v{41+8*c+2*j}, 16, v{40+8*c+2*j}")
        if c == 1:
            e(f"v_add_u32 v37, {CH}, v34")
        e(f"ds_write_b128 v{34 if c == 0 else 37}, v[{56+4*c}:{59+4*c}] offset:{KB + 512}")
    if DUMPK:
        srd(36, P_WS, KP_SZ, KP_OFF)
        e("s_mul_i32 s70, s61, 10240")
        e("buffer_store_dwordx4 v[56:59], v34, s[36:39], s70 offen offset:512")
        e("s_add_u32 s70, s70, 5120")
        e("buffer_store_dwordx4 v[60:63], v34, s[36:39], s70 offen offset:512")
        e("s_lshl_b32 s70, s64, 2")
        e(f"s_add_u32 s70, s70, {KP_SZ - 4096}")
        e("v_mov_b32 v36, 0")
        e("buffer_store_dword v25, v36, s[36:39], s70 offen")
    stamp()
    e("s_waitcnt vmcnt(0) lgkmcnt(0)")
    if "L" in waits:
        e("s_cmp_eq_u32 s60, 0")
        e(f"s_cbranch_scc0 {px}_W1")
        e("v_lshlrev_b32 v34, 2, v1")
        poll(56, 34, "0", 0x01010101, 64, 35, px)
        lab(f"{px}_W1")
    e("s_barrier")
    stamp()
    if "L" in waits:
        e("s_cmp_eq_u32 s60, 0")
        e(f"s_cbranch_scc0 {px}_RF")
        e("s_lshl_b32 s70, s61, 2")
        e("s_add_u32 s70, s70, 3072")
        e("v_mov_b32 v34, 0")
        e("v_mov_b32 v35, 1")
        e("s_mov_b64 exec, 1")
        e("buffer_store_dword v35, v34, s[52:55], s70 offen sc1")
        e("s_mov_b64 exec, -1")
        lab(f"{px}_RF")
    e("s_lshl_b32 s70, s63, 7")
    e("v_add_u32 v34, s70, v1")
    e("v_sub_u32 v35, 255, v34")
    e("v_lshlrev_b32 v35, 13, v35")
    e("s_lshl_b32 s70, s64, 4")
    e("v_add_u32 v35, s70, v35")
    e("v_subrev_u32 v36, 0x2000, v35")
    e("v_subrev_u32 v37, 0x80000, v35")
    e("v_subrev_u32 v38, 0x82000, v35")
    e(f"buffer_load_dwordx4 v[40:43], v35, s[44:47], 0 offen{SL}")
    e(f"buffer_load_dwordx4 v[44:47], v36, s[44:47], 0 offen{SL}")
    e(f"buffer_load_dwordx4 v[64:67], v37, s[44:47], 0 offen{SL}")
    e(f"buffer_load_dwordx4 v[68:71], v38, s[44:47], 0 offen{SL}")
    e("v_lshlrev_b32 v34, 4, v34")
    e("v_add_u32 v34, s65, v34")
    e("v_lshrrev_b32 v35, 2, v1")
    e(f"v_mul_u32_u24 v35, {CS}, v35")
    e("v_and_b32 v36, 3, v1")
    e("v_lshl_add_u32 v35, v36, 4, v35")
    e(f"s_mul_i32 s70, s63, {4*CS}")
    e("s_add_u32 s70, s70, s65")
    e("v_add_u32 v35, s70, v35")
    for j in range(4):
        e(f"v_mov_b32 v{88+j}, 0")
    e("s_mov_b64 exec, 0xffff")
    e("ds_write_b128 v35, v[88:91] offset:4096")
    e("s_mov_b64 exec, -1")
    e("v_and_b32 v35, 3, v6")
    e("v_sub_u32 v35, 7, v35")
    e(f"v_mul_u32_u24 v35, {CS}, v35")
    e("v_lshrrev_b32 v36, 2, v6")
    e("v_sub_u32 v36, v7, v36")
    e("v_lshl_add_u32 v35, v36, 4, v35")
    e("s_lshl_b32 s70, s63, 6")
    e("s_sub_u32 s70, s65, s70")
    e(f"s_add_u32 s70, s70, {4080 - 64*62}")
    e("v_add_u32 v12, s70, v35")
    e(f"v_subrev_u32 v13, {4*CS}, v12")
    e("v_lshrrev_b32 v35, 1, v7")
    e("v_mul_u32_u24 v35, 2560, v35")
    e("v_lshl_add_u32 v35, v6, 5, v35")
    e("v_and_b32 v36, 1, v7")
    e("v_lshl_add_u32 v35, v36, 4, v35")
    e("s_lshl_b32 s70, s63, 5")
    e("s_sub_u32 s70, s65, s70")
    e(f"s_add_u32 s70, s70, {KB+32}")
    e("v_add_u32 v14, s70, v35")
    for it in range(2):
        I = 40 + 24 * it
        O = 48 + 24 * it
        e(f"s_waitcnt vmcnt({2 - 2*it})")
        for j in range(7):
            e(f"v_alignbit_b32 v{O+j}, v{I+j+1}, v{I+j}, 16")
        off = 1024 * it
        e(f"ds_write_b128 v34, v[{I}:{I+3}] offset:{off}")
        e(f"ds_write_b128 v34, v[{I+2}:{I+5}] offset:{off + 4*CS}")
        e(f"ds_write_b128 v34, v[{O}:{O+3}] offset:{off + 1*CS}")
        e(f"ds_write_b128 v34, v[{O+2}:{O+5}] offset:{off + 5*CS}")
        M = 92 + 16 * it
        for k, (src, s) in enumerate(((I + 1, 2), (I + 3, 6), (O + 1, 3), (O + 3, 7))):
            e(f"v_pk_mov_b32 v[{M+4*k}:{M+4*k+1}], v[{src-1}:{src}], v[{src+1}:{src+2}] op_sel:[1,0]")
            e(f"v_pk_mov_b32 v[{M+4*k+2}:{M+4*k+3}], v[{src+1}:{src+2}], v[{src+3}:{src+4}] op_sel:[1,0]")
            e(f"ds_write_b128 v34, v[{M+4*k}:{M+4*k+3}] offset:{off + s*CS}")
    ACC = 16
    e("v_mov_b32 v10, v25")
    e("v_mov_b32 v11, v15")
    for i in range(32):
        e(f"v_mov_b32 v{ACC+i}, 0")
    stamp()
    e("s_waitcnt lgkmcnt(0)")
    e("s_barrier")
    stamp()
    NB = 3
    FR = [48 + 24 * b for b in range(NB)]
    def nI(pp):
        return 4 - (2 * pp) // 16
    def issue(pp):
        R = FR[pp % NB]
        cnt = 0
        for h in range(2):
            e(f"ds_read_b128 v[{R+4*h}:{R+4*h+3}], v{12+h} offset:{64*(62-2*pp)}")
            cnt += 1
        for I in range(4 - nI(pp), 4):
            e(f"ds_read_b128 v[{R+8+4*I}:{R+11+4*I}], v14 offset:{32*(16*I-2*pp+15)}")
            cnt += 1
        return cnt
    cnts = {}
    for pp in range(NB - 1):
        cnts[pp] = issue(pp)
    for pp in range(32):
        if pp + NB - 1 < 32:
            cnts[pp + NB - 1] = issue(pp + NB - 1)
        pend = sum(cnts[k] for k in range(pp + 1, min(32, pp + NB)))
        e(f"s_waitcnt lgkmcnt({pend})")
        R = FR[pp % NB]
        for I in range(4 - nI(pp), 4):
            for h in range(2):
                a = ACC + 8 * I + 4 * h
                e(f"v_mfma_f32_16x16x32_f16 v[{a}:{a+3}], v[{R+4*h}:{R+4*h+3}], v[{R+8+4*I}:{R+11+4*I}], v[{a}:{a+3}]")
    e("s_nop 7")
    stamp()
    e("s_barrier")
    e("s_lshl_b32 s70, s63, 12")
    e("s_add_u32 s70, s70, s65")
    e(f"s_add_u32 s70, s70, {CS}")
    e("v_add_u32 v8, s70, v2")
    e("s_xor_b32 s71, s63, 1")
    e("s_lshl_b32 s70, s71, 12")
    e("s_add_u32 s70, s70, s65")
    e(f"s_add_u32 s70, s70, {CS}")
    e("v_add_u32 v9, s70, v2")
    e("s_cmp_eq_u32 s63, 0")
    e(f"s_cbranch_scc1 {px}_P0")
    for t in range(4):
        e(f"ds_write_b128 v8, v[{ACC+4*t}:{ACC+4*t+3}] offset:{1024*t}")
    for i in range(8):
        e(f"v_pk_mov_b32 v[{48+2*i}:{49+2*i}], v[{ACC+16+2*i}:{ACC+17+2*i}], v[{ACC+16+2*i}:{ACC+17+2*i}] op_sel:[0,1]")
    e(f"s_branch {px}_PJ")
    lab(f"{px}_P0")
    for t in range(4):
        e(f"ds_write_b128 v8, v[{ACC+16+4*t}:{ACC+16+4*t+3}] offset:{1024*t}")
    for i in range(8):
        e(f"v_pk_mov_b32 v[{48+2*i}:{49+2*i}], v[{ACC+2*i}:{ACC+1+2*i}], v[{ACC+2*i}:{ACC+1+2*i}] op_sel:[0,1]")
    lab(f"{px}_PJ")
    e("s_waitcnt lgkmcnt(0)")
    e("s_barrier")
    for t in range(4):
        e(f"ds_read_b128 v[{64+4*t}:{67+4*t}], v9 offset:{1024*t}")
    e("v_lshlrev_b32 v5, 6, v6")
    e("v_lshl_add_u32 v5, v7, 4, v5")
    e("s_lshl_b32 s70, s63, 11")
    e("s_sub_u32 s70, s65, s70")
    e(f"s_add_u32 s70, s70, {4080-1024}")
    e("v_sub_u32 v8, s70, v5")
    for Il in range(2):
        e(f"ds_read_b128 v[{80+4*Il}:{83+4*Il}], v8 offset:{1024*(1-Il)}")
    e("s_lshl_b32 s70, s64, 12")
    e("s_lshl_b32 s71, s63, 11")
    e("s_add_u32 s70, s70, s71")
    e("s_waitcnt lgkmcnt(0)")
    for Il in range(2):
        a = 48 + 8 * Il
        for k in range(4):
            e(f"v_pk_add_f32 v[{a+2*k}:{a+2*k+1}], v[{a+2*k}:{a+2*k+1}], v[{64+8*Il+2*k}:{65+8*Il+2*k}]")
        for k in range(8):
            e(f"v_ldexp_f32 v{a+k}, v{a+k}, v10")
        for k in range(4):
            e(f"v_cvt_pk_bf16_f32 v{88+k}, v{a+2*k}, v{a+2*k+1}")
        for k in range(4):
            e(f"v_lshlrev_b32 v{a+2*k}, 16, v{88+k}")
            e(f"v_and_b32 v{a+2*k+1}, s72, v{88+k}")
        U = 80 + 4 * Il
        for k in range(4):
            src = U + 3 - k
            e(f"v_cvt_f32_f16_sdwa v{92+2*k}, v{src} dst_sel:DWORD dst_unused:UNUSED_PAD src0_sel:WORD_1")
            e(f"v_cvt_f32_f16 v{93+2*k}, v{src}")
        for k in range(8):
            e(f"v_mul_f32 v{92+k}, v{92+k}, v11")
        for k in range(4):
            e(f"v_cvt_pk_bf16_f32 v{88+k}, v{92+2*k}, v{93+2*k}")
        for k in range(4):
            e(f"v_lshlrev_b32 v{92+2*k}, 16, v{88+k}")
            e(f"v_and_b32 v{93+2*k}, s72, v{88+k}")
        for k in range(4):
            e(f"v_pk_add_f32 v[{a+2*k}:{a+2*k+1}], v[{a+2*k}:{a+2*k+1}], v[{92+2*k}:{93+2*k}]")
        for k in range(4):
            e(f"v_cvt_pk_bf16_f32 v{100+4*Il+k}, v{a+2*k}, v{a+2*k+1}")
        e(f"buffer_store_dwordx4 v[{100+4*Il}:{103+4*Il}], v5, s[48:51], s70 offen offset:{1024*Il}{SH}")
    stamp()
    if "H" in waits:
        e("s_waitcnt vmcnt(0)")
        e("s_barrier")
        e("s_cmp_eq_u32 s60, 0")
        e(f"s_cbranch_scc0 {px}_SF")
        e("s_lshl_b32 s70, s61, 2")
        e("s_add_u32 s70, s70, 2048")
        e("v_mov_b32 v34, 0")
        e("v_mov_b32 v35, 1")
        e("s_mov_b64 exec, 1")
        e("buffer_store_dword v35, v34, s[52:55], s70 offen sc1")
        e("s_mov_b64 exec, -1")
        lab(f"{px}_SF")
    stamp_flush()
    e("s_endpgm")

def gen_kernel(name, px, gargs, cargs):
    kernel_begin(name)
    e("s_cmp_ge_u32 s2, 512")
    e(f"s_cbranch_scc1 {px}_END")
    e("s_load_dwordx16 s[4:19], s[0:1], 0")
    e("s_load_dwordx8 s[20:27], s[0:1], 64")
    e("s_load_dwordx4 s[28:31], s[0:1], 96")
    e("s_load_dwordx2 s[32:33], s[0:1], 112")
    e("v_and_b32 v1, 63, v0")
    e("v_readfirstlane_b32 s60, v0")
    e("v_lshlrev_b32 v2, 4, v1")
    e("s_lshr_b32 s60, s60, 6")
    e("s_cmp_ge_u32 s2, 256")
    e(f"s_cbranch_scc1 {px}_C")
    gen_G(px + "G", *gargs)
    lab(f"{px}_C")
    if cargs is None:
        e("s_endpgm")
    else:
        gen_C(px + "C", *cargs)
    lab(f"{px}_END")
    e("s_endpgm")

LDS = 81920
MODE = os.environ.get("MODE", "2")
if SPLIT:
    names = ["pa_kernel", "pb_kernel", "pc_kernel"]
    gen_kernel("pa_kernel", "A", (True, False, False, ""), (True, False, ""))
    gen_kernel("pb_kernel", "B", (False, True, False, ""), (False, True, ""))
    gen_kernel("pc_kernel", "C", (False, False, True, ""), None)
elif MODE == "1":
    names = ["pf_kernel"]
    gen_kernel("pf_kernel", "F", (True, True, True, "LH"), (True, True, "LH"))
else:
    names = ["pa_kernel", "pf_kernel"]
    gen_kernel("pa_kernel", "A", (True, False, False, ""), (True, False, ""))
    KIDX[0] = 1
    gen_kernel("pf_kernel", "F", (False, True, True, "H"), (False, True, "H"))
hdr = "; S4D conv + FFN fused op (generated by gen/gen2.py)\n"
for n in names:
    hdr += f"; @launch kernel={n} grid=(512,1,1) block=(256,1,1) lds={LDS}\n"
hdr += '.amdgcn_target "amdgcn-amd-amdhsa--gfx950"\n.text\n'
txt = hdr + "\n".join(L) + "\n" + '.section .rodata,"a"\n'
for n in names:
    txt += kd(n, 256, 102, 256)
open(OUT, "w").write(txt)
print("wrote", OUT, len(txt))
```

```python
import struct, sys, os

OUT = sys.argv[1] if len(sys.argv) > 1 else "recurrent_scan__ssm_conv_s4d__dense_activation_gelu__prompt.s"
SPLIT = os.environ.get("SPLIT", "") != ""
STAMP = os.environ.get("STAMP", "") != ""
DUMPK = os.environ.get("DUMPK", "") != ""

L = []
def e(s=""):
    L.append("    " + s)
def lab(s):
    L.append(s + ":")
def f2u(x):
    return "0x%08x" % struct.unpack("<I", struct.pack("<f", x))[0]

XNF_OFF = 0x0;        XNF_SZ = 0x200000
XNB_OFF = 0x200000;   XNB_SZ = 0x200000
W2F_OFF = 0x400000;   W2F_SZ = 8 * 16 * 14336
HF_OFF  = 0x600000;   HF_SZ = 32 * 16 * 14336
ST_OFF  = 0xD80000;   ST_SZ = 512 * 4096
FL_OFF  = 0xF80000;   FL_SZ = 8192
LNF, HFL, SFL, RFL, EPO, HINT = 0, 1024, 3072, 4096, 5120, 6144
W1F_OFF = 0x1400000;  W1F_SZ = 1792 * 1024
KP_OFF  = 0x1000000;  KP_SZ = 512 * 5120
DBG_OFF = 0x1800000

LOG2E = 1.4426950408889634
LOG2E_HI = struct.unpack("<f", struct.pack("<f", LOG2E))[0]
LOG2E_LO = LOG2E - LOG2E_HI
LN2 = 0.6931471805599453
INV2PI = 0.15915494309189535
GC1 = 2 * 0.7978845608028654 * LOG2E
GC2 = GC1 * 0.044715
SPIN_MAX = 1 << 20
FINE = os.environ.get("FINE")
LSC = " sc1" if os.environ.get("LSC") else ""

P_X, P_LAR, P_AIM, P_CR, P_CI, P_LDT, P_DSK = 4, 6, 8, 10, 12, 14, 16
P_W1, P_B1, P_W2, P_B2, P_OUT, P_DBG, P_WS = 20, 22, 24, 26, 28, 30, 32

def srd(dst, ptr, size, off=0):
    if off:
        e(f"s_add_u32 s{dst}, s{ptr}, 0x{off:x}")
        e(f"s_addc_u32 s{dst+1}, s{ptr+1}, 0")
    else:
        e(f"s_mov_b32 s{dst}, s{ptr}")
        e(f"s_mov_b32 s{dst+1}, s{ptr+1}")
    e(f"s_mov_b32 s{dst+2}, 0x{size:x}")
    e(f"s_mov_b32 s{dst+3}, 0x00020000")

_st = [0]
KIDX = [0]
def stamp(reset=False):
    if not STAMP: return
    if reset:
        _st[0] = 0
        e("s_memrealtime s[78:79]")
    k = _st[0]; _st[0] += 1
    assert k < 28
    e("s_memtime s[100:101]")
    e("s_waitcnt lgkmcnt(0)")
    if k < 20:
        e(f"s_mov_b32 s{80+k}, s100")
    else:
        e(f"v_mov_b32 v{250+k-20}, s100")
def stamp_flush():
    if not STAMP: return
    stamp()
    e("s_mov_b64 exec, 1")
    e("s_memrealtime s[100:101]")
    srd(36, P_WS, 0x80000, DBG_OFF + KIDX[0] * 0x80000)
    e("v_readfirstlane_b32 s40, v0")
    e("s_lshr_b32 s40, s40, 6")
    e("s_lshl_b32 s41, s2, 2")
    e("s_add_u32 s40, s40, s41")
    e("s_lshl_b32 s40, s40, 7")
    e("v_mov_b32 v1, 0")
    e("s_waitcnt lgkmcnt(0)")
    e("v_mov_b32 v2, s100")
    e("v_mov_b32 v3, s78")
    e(f"v_mov_b32 v4, {_st[0]}")
    e("buffer_store_dwordx3 v[2:4], v1, s[36:39], s40 offen")
    for k in range(_st[0]):
        e(f"v_mov_b32 v5, s{80+k}" if k < 20 else f"v_mov_b32 v5, v{250+k-20}")
        e(f"buffer_store_dword v5, v1, s[36:39], s40 offen offset:{16+4*k}")
        e("s_nop 1")
    e("s_mov_b64 exec, -1")

def kernel_begin(name):
    L.append(f".globl {name}")
    L.append(".p2align 8")
    L.append(f".type {name},@function")
    lab(name)

def kd(name, vgpr, sgpr, accum):
    return f""".p2align 6
.amdhsa_kernel {name}
  .amdhsa_next_free_vgpr {vgpr}
  .amdhsa_next_free_sgpr {sgpr}
  .amdhsa_accum_offset {accum}
  .amdhsa_group_segment_fixed_size 0
  .amdhsa_kernarg_size 120
  .amdhsa_user_sgpr_count 2
  .amdhsa_user_sgpr_kernarg_segment_ptr 1
  .amdhsa_system_sgpr_workgroup_id_x 1
.end_amdhsa_kernel
"""

def cmul(d, x, y, t):
    e(f"v_pk_mul_f32 v[{t}:{t+1}], v[{x}:{x+1}], v[{y}:{y+1}] op_sel:[0,0] op_sel_hi:[0,1]")
    e(f"v_pk_fma_f32 v[{d}:{d+1}], v[{x}:{x+1}], v[{y}:{y+1}], v[{t}:{t+1}] op_sel:[1,1,0] op_sel_hi:[1,0,1] neg_lo:[1,0,0]")

_uid = [0]
def poll(srd_r, voff, soff, nlanes, vt, tag, ndw=1, sleep=4):
    _uid[0] += 1
    lb = f"POLL_{tag}_{_uid[0]}"
    e(f"s_mov_b32 s76, {SPIN_MAX}")
    if nlanes < 64:
        e(f"s_mov_b32 s74, 0x{(1 << nlanes) - 1:x}")
        e("s_mov_b32 s75, 0")
    else:
        e("s_mov_b64 s[74:75], -1")
    lab(lb)
    for k in range(ndw):
        e(f"buffer_load_dword v{vt+k}, v{voff}, s[{srd_r}:{srd_r+3}], {soff} offen offset:{256*k} sc1")
    e("s_waitcnt vmcnt(0)")
    for k in range(1, ndw):
        e(f"v_xor_b32 v{vt+k}, s34, v{vt+k}")
    e(f"v_xor_b32 v{vt}, s34, v{vt}")
    for k in range(1, ndw):
        e(f"v_or_b32 v{vt}, v{vt}, v{vt+k}")
    e(f"v_cmp_ne_u32 vcc, 0, v{vt}")
    e("s_and_b64 vcc, vcc, s[74:75]")
    e(f"s_cbranch_scc0 {lb}_D")
    e(f"s_sleep {sleep}")
    e("s_sub_u32 s76, s76, 1")
    e("s_cmp_lg_u32 s76, 0")
    e(f"s_cbranch_scc1 {lb}")
    lab(lb + "_D")

def nonce():
    e("s_mul_i32 s34, s35, 0x9E3779B1")
    e("s_xor_b32 s34, s34, 0x85EBCA6B")

def publish(px, tag, soff_code, vt):
    e("s_cmp_eq_u32 s60, 0")
    e(f"s_cbranch_scc0 {px}_{tag}")
    soff_code()
    e(f"v_mov_b32 v{vt}, 0")
    e(f"v_mov_b32 v{vt+1}, s34")
    e("s_mov_b64 exec, 1")
    e(f"buffer_store_dword v{vt+1}, v{vt}, s[52:55], s70 offen sc1")
    e("s_mov_b64 exec, -1")

def dpp_reduce(regs, op):
    steps = ["quad_perm:[1,0,3,2] row_mask:0xf bank_mask:0xf", "quad_perm:[2,3,0,1] row_mask:0xf bank_mask:0xf",
             "row_half_mirror row_mask:0xf bank_mask:0xf", "row_mirror row_mask:0xf bank_mask:0xf",
             "row_bcast:15 row_mask:0xa bank_mask:0xf", "row_bcast:31 row_mask:0xc bank_mask:0xf"]
    for st in steps:
        e(f"s_nop {1 if len(regs) < 2 else 0}" if len(regs) < 3 else "s_nop 0")
        for r in regs:
            e(f"{op}_dpp v{r}, v{r}, v{r} {st}")
    e("s_nop 0")

class VM:
    def __init__(self): self.ops = []
    def add(self, tag, n=1): self.ops += [tag] * n
    def wait(self, *tags):
        idx = [i for i, o in enumerate(self.ops) if o in tags]
        if not idx: return
        n = len(self.ops) - 1 - max(idx)
        assert n < 64
        e(f"s_waitcnt vmcnt({n})")
    def drained(self): self.ops = []

def gen_G(px):
    vm = VM()
    stamp(True)
    e("s_setprio 2")
    e("s_and_b32 s61, s2, 7")
    e("s_lshr_b32 s62, s2, 3")
    e("s_lshr_b32 s63, s61, 1")
    e("s_lshl_b32 s63, s63, 2")
    e("s_lshr_b32 s67, s62, 3")
    e("s_add_u32 s63, s63, s67")
    e("s_and_b32 s64, s61, 1")
    e("s_lshl_b32 s64, s64, 3")
    e("s_and_b32 s66, s62, 7")
    e("s_add_u32 s64, s64, s66")
    e("s_lshl_b32 s65, s61, 2")
    e("s_add_u32 s65, s65, s67")
    SB = 14336
    srd(36, P_X, 0x200000)
    e("s_lshl_b32 s67, s2, 13")
    e("s_lshl_b32 s68, s60, 11")
    e("s_add_u32 s67, s67, s68")
    e("buffer_load_dwordx4 v[64:67], v2, s[36:39], s67 offen")
    e("buffer_load_dwordx4 v[68:71], v2, s[36:39], s67 offen offset:1024")
    vm.add("x", 2)
    srd(40, P_W1, 512 * 1792 * 2)
    srd(44, P_WS, XNF_SZ, XNF_OFF)
    srd(48, P_WS, XNB_SZ, XNB_OFF)
    srd(52, P_WS, FL_SZ, FL_OFF)
    srd(56, P_B2, 1024)
    e("s_mul_i32 s70, s60, 224")
    e("s_mov_b32 s72, 4682")
    for q in range(4):
        e(f"v_add_u32 v{60+q}, s70, v1")
        if q:
            e(f"v_add_u32 v{60+q}, {64*q}, v{60+q}")
        e(f"v_mul_lo_u32 v230, v{60+q}, s72")
        e("v_lshrrev_b32 v230, 16, v230")
        e("v_mul_u32_u24 v231, 14, v230")
        e(f"v_sub_u32 v231, v{60+q}, v231")
        e("v_mul_u32_u24 v230, 3584, v230")
        e(f"v_lshl_add_u32 v{60+q}, v231, 4, v230")
    e("s_mul_i32 s61, s64, 224")
    e("s_mul_i32 s62, s60, 3584")
    e("s_mov_b32 s72, 0xffff0000")
    ROT = os.environ.get("ROT")
    def dma(s, buf):
        if ROT:
            e(f"s_add_u32 s68, s66, {s}")
            e("s_and_b32 s68, s68, 7")
            e(f"s_mul_i32 s68, s68, {64*3584}")
            e("s_add_u32 s68, s68, s61")
        else:
            e(f"s_add_u32 s68, s61, {s*64*3584}")
        for q in range(4):
            e(f"s_add_u32 s70, s62, {buf*SB + q*1024}")
            e("s_mov_b32 m0, s70")
            if q == 3:
                e("s_mov_b32 exec_hi, 0")
            else:
                e("s_nop 0")
            e(f"buffer_load_dwordx4 v{60+q}, s[40:43], s68 offen lds")
        e("s_mov_b64 exec, -1")
        vm.add(("D", s), 4)
    def bload(s):
        R = 64 + 16 * (s % 6)
        if ROT:
            e(f"s_add_u32 s70, s66, {s}")
            e("s_and_b32 s70, s70, 7")
            e("s_lshl_b32 s70, s70, 11")
            e("s_add_u32 s70, s70, s73")
            e("s_add_u32 s71, s70, 16384")
        else:
            e(f"s_add_u32 s70, s73, {s*2048}")
            e(f"s_add_u32 s71, s73, {s*2048 + 16384}")
        for j in range(2):
            for k in range(2):
                r = R + 8 * j + 4 * k
                e(f"buffer_load_dwordx4 v[{r}:{r+3}], v2, s[44:47], s{70 if j == 0 else 71} offen offset:{1024*k}{LSC}")
        vm.add(("B", s), 4)
    ED = int(os.environ.get("ED", "2"))
    for s in range(ED):
        dma(s, s)
    srd(36, P_B1, 1792 * 2)
    e("v_lshrrev_b32 v235, 4, v1")
    e("v_lshlrev_b32 v235, 3, v235")
    for i in range(7):
        e(f"buffer_load_dwordx2 v[{216+2*i}:{217+2*i}], v235, s[36:39], s61 offen offset:{32*i}")
    vm.add("b1", 7)
    LT = 4 * SB; LP = 1040; T2 = LT + 8 * LP
    e(f"s_mov_b32 s73, {f2u(1.0/512)}")
    stamp()
    vm.wait("x")
    stamp()
    for i in range(2):
        for j in range(4):
            e(f"v_lshlrev_b32 v{72+8*i+2*j}, 16, v{64+4*i+j}")
            e(f"v_and_b32 v{73+8*i+2*j}, s72, v{64+4*i+j}")
    for i in range(2):
        b = 72 + 8 * i; t = 88 + 4 * i
        e(f"v_pk_add_f32 v[{t}:{t+1}], v[{b}:{b+1}], v[{b+2}:{b+3}]")
        e(f"v_pk_add_f32 v[{t+2}:{t+3}], v[{b+4}:{b+5}], v[{b+6}:{b+7}]")
    for i in range(2):
        t = 88 + 4 * i
        e(f"v_pk_add_f32 v[{t}:{t+1}], v[{t}:{t+1}], v[{t+2}:{t+3}]")
    for i in range(2):
        t = 88 + 4 * i
        e(f"v_add_f32 v{t}, v{t}, v{t+1}")
    dpp_reduce([88, 92], "v_add_f32")
    e("v_readlane_b32 s70, v88, 63")
    e("v_readlane_b32 s71, v92, 63")
    e("v_mov_b32 v90, s73")
    e("s_nop 0")
    e("v_mul_f32 v89, s70, v90")
    e("v_mul_f32 v93, s71, v90")
    for i in range(2):
        b = 72 + 8 * i; m = 88 + 4 * i; d = 96 + 8 * i
        for j in range(4):
            e(f"v_pk_add_f32 v[{d+2*j}:{d+2*j+1}], v[{b+2*j}:{b+2*j+1}], v[{m}:{m+1}] op_sel:[0,1] op_sel_hi:[1,1] neg_lo:[0,1] neg_hi:[0,1]")
    for i in range(2):
        d = 96 + 8 * i; t = 112 + 2 * i
        e(f"v_pk_mul_f32 v[{t}:{t+1}], v[{d}:{d+1}], v[{d}:{d+1}]")
    for j in range(1, 4):
        for i in range(2):
            d = 96 + 8 * i; t = 112 + 2 * i
            e(f"v_pk_fma_f32 v[{t}:{t+1}], v[{d+2*j}:{d+2*j+1}], v[{d+2*j}:{d+2*j+1}], v[{t}:{t+1}]")
    e("v_add_f32 v112, v112, v113")
    e("v_add_f32 v114, v114, v115")
    dpp_reduce([112, 114], "v_add_f32")
    e("v_readlane_b32 s70, v112, 63")
    e("v_readlane_b32 s71, v114, 63")
    e(f"s_mov_b32 s73, {f2u(1e-5)}")
    e("v_cvt_pk_bf16_f32 v116, v89, v93")
    e("v_mul_f32 v112, s70, v90")
    e("v_mul_f32 v113, s71, v90")
    e("v_lshlrev_b32 v89, 16, v116")
    e("v_and_b32 v93, s72, v116")
    def rnd2(a, b):
        e(f"v_cvt_pk_bf16_f32 v116, v{a}, v{b}")
        e(f"v_lshlrev_b32 v{a}, 16, v116")
        e(f"v_and_b32 v{b}, s72, v116")
    rnd2(112, 113)
    e("v_add_f32 v112, s73, v112")
    e("v_add_f32 v113, s73, v113")
    rnd2(112, 113)
    e("v_sqrt_f32 v112, v112")
    e("v_sqrt_f32 v113, v113")
    e("s_nop 0")
    rnd2(112, 113)
    e("v_rcp_f32 v91, v112")
    e("v_rcp_f32 v95, v113")
    e("s_nop 0")
    e("v_fma_f32 v114, -v112, v91, 1.0")
    e("v_fma_f32 v115, -v113, v95, 1.0")
    e("v_fmac_f32 v91, v91, v114")
    e("v_fmac_f32 v95, v95, v115")
    for i in range(2):
        b = 72 + 8 * i; m = 88 + 4 * i; d = 96 + 8 * i; P = 64 + 4 * i; H = 120 + 4 * i
        for j in range(4):
            e(f"v_pk_add_f32 v[{d+2*j}:{d+2*j+1}], v[{b+2*j}:{b+2*j+1}], v[{m}:{m+1}] op_sel:[0,1] op_sel_hi:[1,1] neg_lo:[0,1] neg_hi:[0,1]")
        for j in range(4):
            e(f"v_cvt_pk_bf16_f32 v{P+j}, v{d+2*j}, v{d+2*j+1}")
        for j in range(4):
            e(f"v_lshlrev_b32 v{d+2*j}, 16, v{P+j}")
            e(f"v_and_b32 v{d+2*j+1}, s72, v{P+j}")
        for j in range(4):
            e(f"v_pk_mul_f32 v[{d+2*j}:{d+2*j+1}], v[{d+2*j}:{d+2*j+1}], v[{m+2}:{m+3}] op_sel:[0,1] op_sel_hi:[1,1]")
        for j in range(4):
            e(f"v_cvt_pk_bf16_f32 v{P+j}, v{d+2*j}, v{d+2*j+1}")
        for j in range(4):
            e(f"v_lshlrev_b32 v{d+2*j}, 16, v{P+j}")
            e(f"v_and_b32 v{d+2*j+1}, s72, v{P+j}")
        for j in range(4):
            e(f"v_cvt_pk_f16_f32 v{H+j}, v{d+2*j}, v{d+2*j+1}")
    e(f"s_mul_i32 s70, s60, {2*LP}")
    e(f"s_add_u32 s70, s70, {LT}")
    e("v_add_u32 v230, s70, v2")
    for i in range(2):
        e(f"ds_write_b128 v230, v[{64+4*i}:{67+4*i}] offset:{LP*i}")
        e(f"ds_write_b128 v230, v[{120+4*i}:{123+4*i}] offset:{T2 - LT + LP*i}")
    stamp()
    e("s_waitcnt lgkmcnt(0)")
    nonce()
    e("s_barrier")
    e("s_cmp_ge_u32 s60, 2")
    e(f"s_cbranch_scc1 {px}_LNB")
    e("v_and_b32 v230, 7, v1")
    e("v_lshrrev_b32 v231, 5, v1")
    e("v_bfe_u32 v232, v1, 3, 2")
    e(f"v_mul_u32_u24 v233, {LP}, v230")
    e("v_lshl_add_u32 v233, v231, 6, v233")
    e("v_lshl_add_u32 v233, v232, 3, v233")
    e("s_lshl_b32 s70, s60, 9")
    e("v_add_u32 v233, s70, v233")
    e("v_lshlrev_b32 v234, 10, v231")
    e("v_lshl_add_u32 v234, v232, 8, v234")
    e("v_lshl_add_u32 v234, v230, 4, v234")
    for q in range(4):
        e(f"ds_read_b64 v[{64+4*q}:{65+4*q}], v233 offset:{LT + 128*q}")
        e(f"ds_read_b64 v[{66+4*q}:{67+4*q}], v233 offset:{LT + 128*q + 32}")
    e("s_lshr_b32 s70, s2, 1")
    e("s_lshl_b32 s70, s70, 14")
    e("s_and_b32 s71, s2, 1")
    e("s_lshl_b32 s71, s71, 7")
    e("s_add_u32 s70, s70, s71")
    e("s_lshl_b32 s71, s60, 13")
    e("s_add_u32 s70, s70, s71")
    for q in range(4):
        e(f"s_waitcnt lgkmcnt({6-2*q})")
        if q == 2:
            e("s_add_u32 s70, s70, 4096")
        e(f"buffer_store_dwordx4 v[{64+4*q}:{67+4*q}], v234, s[44:47], s70 offen offset:{2048*(q&1)} sc1")
    e(f"s_branch {px}_LNJ")
    lab(f"{px}_LNB")
    e("v_lshrrev_b32 v230, 4, v1")
    e("v_bfe_u32 v231, v1, 2, 2")
    e("v_and_b32 v232, 3, v1")
    e("v_sub_u32 v231, 3, v231")
    e(f"v_mul_u32_u24 v233, {LP}, v231")
    e("v_lshl_add_u32 v233, v230, 5, v233")
    e("v_lshl_add_u32 v233, v232, 3, v233")
    e("s_sub_u32 s71, s60, 2")
    e("s_lshl_b32 s70, s71, 9")
    e(f"s_add_u32 s70, s70, {T2}")
    e("v_add_u32 v233, s70, v233")
    for q in range(4):
        e(f"ds_read_b64_tr_b16 v[{64+4*q}:{65+4*q}], v233 offset:{4*LP + 128*q}")
        e(f"ds_read_b64_tr_b16 v[{66+4*q}:{67+4*q}], v233 offset:{128*q}")
    e("s_lshl_b32 s70, s2, 13")
    e("s_lshl_b32 s71, s71, 12")
    e("s_add_u32 s70, s70, s71")
    for q in range(4):
        e(f"s_waitcnt lgkmcnt({6-2*q})")
        e(f"buffer_store_dwordx4 v[{64+4*q}:{67+4*q}], v2, s[48:51], s70 offen offset:{1024*q} sc1")
    lab(f"{px}_LNJ")
    stamp()
    e("s_waitcnt vmcnt(0)")
    vm.drained()
    e("s_barrier")
    stamp()
    def c_():
        e("s_lshl_b32 s70, s2, 2")
    publish(px, "LNF", c_, 230)
    lab(f"{px}_LNF")
    for s in range(ED, 5):
        dma(s, s)
    for i in range(7):
        for j in range(2):
            a = 4 + 8 * i + 4 * j
            e(f"v_lshlrev_b32 v{a}, 16, v{216+2*i}")
            e(f"v_and_b32 v{a+1}, s72, v{216+2*i}")
            e(f"v_lshlrev_b32 v{a+2}, 16, v{217+2*i}")
            e(f"v_and_b32 v{a+3}, s72, v{217+2*i}")
    e("v_lshrrev_b32 v230, 2, v1")
    e("v_mul_u32_u24 v3, 224, v230")
    e("v_and_b32 v230, 3, v1")
    e("v_lshl_add_u32 v3, v230, 3, v3")
    e("v_add_u32 v248, 0x8000, v3")
    e("v_lshlrev_b32 v245, 2, v1")
    e("s_lshl_b32 s67, s63, 3")
    e("s_lshl_b32 s70, s60, 1")
    e("s_add_u32 s67, s67, s70")
    e("s_lshl_b32 s73, s67, 14")
    srd(48, P_X, 0x200000)
    stamp()
    e("s_cmp_eq_u32 s60, 0")
    e(f"s_cbranch_scc0 {px}_W1")
    e("s_lshl_b32 s70, s63, 6")
    poll(52, 245, "s70", 16, 230, px, sleep=2)
    lab(f"{px}_W1")
    e("s_barrier")
    stamp()
    for s in range(4):
        bload(s)
    def xloads():
        e("v_lshrrev_b32 v231, 3, v1")
        e("v_and_b32 v232, 7, v1")
        e("v_lshlrev_b32 v233, 10, v231")
        e("v_lshl_add_u32 v233, v232, 4, v233")
        e("v_lshlrev_b32 v249, 12, v231")
        e("v_lshl_add_u32 v249, v232, 4, v249")
        e("s_lshl_b32 s70, s65, 16")
        e("s_lshl_b32 s71, s60, 14")
        e("s_add_u32 s70, s70, s71")
        e("s_lshl_b32 s71, s66, 7")
        e("s_add_u32 s70, s70, s71")
        e("s_lshl_b32 s71, s60, 11")
        e(f"s_add_u32 s71, s71, 73728")
        for q in range(2):
            e("s_mov_b32 m0, s71")
            e("s_nop 0")
            e("buffer_load_dwordx4 v233, s[48:51], s70 offen lds")
            if q == 0:
                e("s_add_u32 s70, s70, 8192")
                e("s_add_u32 s71, s71, 1024")
        vm.add("xt", 2)
        e("s_lshl_b32 s70, s66, 7")
        for i in range(4):
            e(f"buffer_load_dwordx2 v[{236+2*i}:{237+2*i}], v235, s[56:59], s70 offen offset:{32*i}")
        vm.add("b2", 4)
    AR = [160, 188]
    def lds_a_list(u):
        s, ksl = u >> 1, u & 1
        dst = AR[u & 1]
        out = []
        for i in range(7):
            for e2 in range(2):
                off = (s % 5)*SB + (32*ksl+16*e2)*224 + 32*i
                if off >= 0x8000:
                    out.append(f"ds_read_b64_tr_b16 v[{dst+4*i+2*e2}:{dst+4*i+2*e2+1}], v248 offset:{off - 0x8000}")
                else:
                    out.append(f"ds_read_b64_tr_b16 v[{dst+4*i+2*e2}:{dst+4*i+2*e2+1}], v3 offset:{off}")
        return out
    vm.wait(("D", 0), ("B", 0))
    e("s_barrier")
    stamp()
    for x in lds_a_list(0): e(x)
    for u in range(16):
        nxt = []
        if u + 1 < 16:
            if (u + 1) % 2 == 0:
                sn = (u + 1) >> 1
                if FINE and sn in (3, 5): stamp()
                vm.wait(("D", sn), ("B", sn))
                if FINE and sn in (3, 5): stamp()
                e("s_barrier")
                if sn == 4 or (FINE and sn in (3, 5)): stamp()
            nxt = lds_a_list(u + 1)
        e("s_waitcnt lgkmcnt(0)")
        s, ksl = u >> 1, u & 1
        R = 64 + 16 * (s % 6)
        A = AR[u & 1]
        for i in range(7):
            for j in range(2):
                a = 4 + 8 * i + 4 * j
                b = R + 8 * j + 4 * ksl
                e(f"v_mfma_f32_16x16x32_bf16 v[{a}:{a+3}], v[{A+4*i}:{A+4*i+3}], v[{b}:{b+3}], v[{a}:{a+3}]")
                if nxt: e(nxt.pop(0))
        if u % 2 == 1:
            sn = (u + 1) >> 1
            if sn >= 2 and sn + 3 < 8:
                dma(sn + 3, (sn + 3) % 5)
            if sn + 3 < 8:
                bload(sn + 3)
            if sn == 5:
                xloads()
    vm.drained()
    stamp()
    if os.environ.get("DEFER"):
        def c_():
            e("s_lshl_b32 s70, s2, 2")
            e(f"s_add_u32 s70, s70, {HINT}")
        publish(px, "HN", c_, 230)
        lab(f"{px}_HN")
    srd(36, P_WS, W2F_SZ, W2F_OFF)
    srd(40, P_WS, HF_SZ, HF_OFF)
    srd(44, P_WS, ST_SZ, ST_OFF)
    srd(48, P_OUT, 0x200000)
    NA, NB = 6, 4
    AREG = [68 + 16 * k for k in range(NA)]
    BREG = [164 + 16 * k for k in range(NB)]
    LA0, LA1 = NA, NA + 4
    def g2load(kind, k):
        fbl, q = k >> 2, k & 3
        R = (AREG[k % NA] if kind == "A" else BREG[k % NB])
        sr = 36 if kind == "A" else 40
        base = 68 if kind == "A" else 69
        sc = LSC
        e(f"s_add_u32 s70, s{base}, {fbl*14336 + q*4096}")
        for i in range(4):
            if q < 3:
                e(f"buffer_load_dwordx4 v[{R+4*i}:{R+4*i+3}], v2, s[{sr}:{sr+3}], s70 offen offset:{1024*i}{sc}")
            else:
                e(f"buffer_load_dwordx2 v[{R+4*i}:{R+4*i+1}], v244, s[{sr}:{sr+3}], s70 offen offset:{512*i}{sc}")
        vm.add((kind, k), 4)
    def g2dma(k):
        fbl, q = k >> 2, k & 3
        e(f"s_add_u32 s70, s68, {fbl*14336 + q*4096}")
        e(f"s_add_u32 s71, s35, {(k-LA0)*4096}")
        e("s_mov_b32 m0, s71")
        e("s_nop 0")
        n = 4 if q < 3 else 2
        for i in range(n):
            e(f"buffer_load_dwordx4 v2, s[36:39], s70 offen offset:{1024*i}{LSC} lds")
        vm.add(("L", k), n)
    def g2ldsread(k):
        q = k & 3
        R = AREG[k % NA]
        for i in range(4):
            if q < 3:
                e(f"ds_read_b128 v[{R+4*i}:{R+4*i+3}], v246 offset:{(k-LA0)*4096 + 1024*i}")
            else:
                e(f"ds_read_b64 v[{R+4*i}:{R+4*i+1}], v247 offset:{(k-LA0)*4096 + 512*i}")
    e("v_lshlrev_b32 v244, 3, v1")
    e("v_lshlrev_b32 v245, 2, v1")
    e("s_lshl_b32 s70, s66, 4")
    e("s_lshl_b32 s71, s60, 2")
    e("s_add_u32 s70, s70, s71")
    e("s_mul_i32 s68, s70, 14336")
    e("s_lshl_b32 s70, s65, 4")
    e("s_add_u32 s70, s70, s71")
    e("s_mul_i32 s69, s70, 14336")
    e(f"s_mov_b32 s74, {f2u(-GC2)}")
    e(f"s_mov_b32 s75, {f2u(-GC2)}")
    e(f"v_mov_b32 v246, {f2u(-GC1)}")
    e(f"v_mov_b32 v247, {f2u(-GC1)}")
    e("s_lshr_b32 s70, s67, 2")
    e("s_lshl_b32 s70, s70, 4")
    e("s_add_u32 s70, s70, s64")
    e("s_mul_i32 s70, s70, 14336")
    e("s_and_b32 s71, s67, 3")
    e("s_lshl_b32 s73, s71, 9")
    e("s_add_u32 s73, s73, s70")
    e("s_add_u32 s73, s73, 12288")
    e("s_lshl_b32 s71, s71, 10")
    e("s_add_u32 s70, s70, s71")
    def gelu_pairs(pairs, outs):
        T = [164 + 2 * k for k in range(len(pairs))]
        for a, t in zip(pairs, T):
            e(f"v_pk_mul_f32 v[{t}:{t+1}], v[{a}:{a+1}], v[{a}:{a+1}]")
        for a, t in zip(pairs, T):
            e(f"v_pk_fma_f32 v[{t}:{t+1}], v[{t}:{t+1}], s[74:75], v[246:247]")
        for a, t in zip(pairs, T):
            e(f"v_pk_mul_f32 v[{t}:{t+1}], v[{a}:{a+1}], v[{t}:{t+1}]")
        for t in T:
            e(f"v_exp_f32 v{t}, v{t}")
            e(f"v_exp_f32 v{t+1}, v{t+1}")
        e("s_nop 0")
        for t in T:
            e(f"v_pk_add_f32 v[{t}:{t+1}], v[{t}:{t+1}], 1.0 op_sel_hi:[1,0]")
        for t in T:
            e(f"v_rcp_f32 v{t}, v{t}")
            e(f"v_rcp_f32 v{t+1}, v{t+1}")
        e("s_nop 0")
        for a, t in zip(pairs, T):
            e(f"v_pk_mul_f32 v[{t}:{t+1}], v[{a}:{a+1}], v[{t}:{t+1}]")
        for t, o in zip(T, outs):
            e(f"v_cvt_pk_bf16_f32 v{o}, v{t}, v{t+1}")
    cnt = 0
    for q in range(3):
        for j in range(2):
            a0 = 4 + 8 * (2 * q) + 4 * j; a1 = 4 + 8 * (2 * q + 1) + 4 * j
            O = 176 + 4 * (cnt % 8); cnt += 1
            gelu_pairs([a0, a0 + 2, a1, a1 + 2], [O, O + 1, O + 2, O + 3])
            e(f"buffer_store_dwordx4 v[{O}:{O+3}], v2, s[40:43], s70 offen offset:{1024*j} sc1")
        if q < 2:
            e("s_add_u32 s70, s70, 4096")
    a0 = 4 + 48; a1 = 4 + 48 + 4
    O = 176 + 4 * (cnt % 8)
    gelu_pairs([a0, a0 + 2, a1, a1 + 2], [O, O + 1, O + 2, O + 3])
    e(f"buffer_store_dwordx2 v[{O}:{O+1}], v244, s[40:43], s73 offen sc1")
    e(f"buffer_store_dwordx2 v[{O+2}:{O+3}], v244, s[40:43], s73 offen offset:512 sc1")
    stamp()
    e("s_waitcnt vmcnt(0)")
    e("s_barrier")
    stamp()
    def c_():
        e("s_lshl_b32 s70, s63, 5")
        e("s_add_u32 s70, s70, s64")
        e("s_lshl_b32 s70, s70, 2")
        e(f"s_add_u32 s70, s70, {HFL}")
    publish(px, "HF", c_, 230)
    lab(f"{px}_HF")
    e("s_lshl_b32 s70, s66, 7")
    e(f"s_add_u32 s70, s70, {RFL}")
    poll(52, 245, "s70", 32, 230, px)
    e("s_lshl_b32 s35, s60, 14")
    e("v_add_u32 v246, s35, v2")
    e("v_add_u32 v247, s35, v244")
    e("s_cmp_eq_u32 s60, 0")
    e(f"s_cbranch_scc0 {px}_HW")
    e("s_lshr_b32 s70, s65, 1")
    e("s_lshl_b32 s70, s70, 7")
    e(f"s_add_u32 s70, s70, {HFL}")
    poll(52, 245, "s70", 16, 230, px, sleep=2)
    lab(f"{px}_HW")
    for k in range(NA):
        g2load("A", k)
    for k in range(LA0, LA1):
        g2dma(k)
    for i in range(64):
        e(f"v_mov_b32 v{4+i}, 0")
    e("s_barrier")
    stamp()
    for k in range(NB):
        g2load("B", k)
    for k in range(16):
        vm.wait(("A", k), ("B", k))
        if LA0 <= k < LA1:
            e("s_waitcnt lgkmcnt(0)")
        if k in (0, 8): stamp()
        q = k & 3
        A = AREG[k % NA]; B = BREG[k % NB]
        for i in range(4):
            for j in range(4):
                a = 4 + 16 * j + 4 * i
                if q < 3:
                    e(f"v_mfma_f32_16x16x32_bf16 v[{a}:{a+3}], v[{A+4*i}:{A+4*i+3}], v[{B+4*j}:{B+4*j+3}], v[{a}:{a+3}]")
                else:
                    e(f"v_mfma_f32_16x16x16_bf16 v[{a}:{a+3}], v[{A+4*i}:{A+4*i+1}], v[{B+4*j}:{B+4*j+1}], v[{a}:{a+3}]")
        if k + NB < 16:
            g2load("B", k + NB)
        if k + NA < 16:
            if LA0 <= k + NA < LA1:
                g2ldsread(k + NA)
            else:
                g2load("A", k + NA)
    vm.drained()
    stamp()
    e("s_cmp_eq_u32 s60, 0")
    e(f"s_cbranch_scc0 {px}_SW")
    e("s_lshl_b32 s70, s66, 7")
    e(f"s_add_u32 s70, s70, {SFL}")
    poll(52, 245, "s70", 32, 230, px)
    lab(f"{px}_SW")
    e("s_barrier")
    e("s_lshl_b32 s70, s66, 18")
    e("s_lshl_b32 s71, s60, 16")
    e("s_add_u32 s70, s70, s71")
    e("s_lshl_b32 s71, s65, 7")
    e("s_add_u32 s70, s70, s71")
    e("s_lshl_b32 s71, s60, 11")
    e("s_add_u32 s71, s71, 65536")
    for q in range(2):
        e("s_mov_b32 m0, s71")
        e("s_nop 0")
        e(f"buffer_load_dwordx4 v249, s[44:47], s70 offen{LSC} lds")
        if q == 0:
            e("s_add_u32 s70, s70, 32768")
            e("s_add_u32 s71, s71, 1024")
    for j in range(4):
        for i in range(4):
            a = 4 + 16 * j + 4 * i
            e(f"ds_write_b128 v246, v[{a}:{a+3}] offset:{(4*j+i)*1024}")
    e("v_and_b32 v230, 15, v1")
    e("v_lshrrev_b32 v231, 4, v1")
    e("s_lshl_b32 s71, s60, 4")
    e("v_add_u32 v232, s71, v230")
    e("v_lshlrev_b32 v234, 7, v232")
    e("v_lshl_add_u32 v234, v231, 3, v234")
    e("v_add_u32 v234, 0x12000, v234")
    e("v_lshlrev_b32 v235, 9, v231")
    e("v_lshl_add_u32 v235, v232, 1, v235")
    e("v_add_u32 v235, 0x10000, v235")
    e("s_lshl_b32 s70, s65, 6")
    e("v_add_u32 v232, s70, v232")
    e("v_lshlrev_b32 v233, 10, v232")
    e("v_lshl_add_u32 v233, v231, 3, v233")
    e("s_lshl_b32 s73, s66, 7")
    e("s_lshl_b32 s70, s60, 12")
    e("v_add_u32 v246, s70, v2")
    e(f"s_mov_b32 s74, {f2u(-LOG2E)}")
    e("s_waitcnt vmcnt(0) lgkmcnt(0)")
    e("s_barrier")
    stamp()
    for ww in range(4):
        for i in range(4):
            r = 68 + 16 * ww + 4 * i
            e(f"ds_read_b128 v[{r}:{r+3}], v246 offset:{ww*16384 + i*1024}")
    e("s_waitcnt lgkmcnt(8)")
    for i in range(4):
        e(f"ds_read_b64 v[{132+2*i}:{133+2*i}], v234 offset:{32*i}")
    for q in range(8):
        e(f"v_pk_add_f32 v[{68+2*q}:{69+2*q}], v[{68+2*q}:{69+2*q}], v[{84+2*q}:{85+2*q}]")
    e("s_waitcnt lgkmcnt(4)")
    for i in range(4):
        for r in range(4):
            if i < 2:
                e(f"ds_read_u16 v{148+4*i+r}, v235 offset:{(16*i+r)*128}")
    for q in range(8):
        e(f"v_pk_add_f32 v[{100+2*q}:{101+2*q}], v[{100+2*q}:{101+2*q}], v[{116+2*q}:{117+2*q}]")
    for q in range(8):
        e(f"v_pk_add_f32 v[{68+2*q}:{69+2*q}], v[{68+2*q}:{69+2*q}], v[{100+2*q}:{101+2*q}]")
    e("s_waitcnt lgkmcnt(4)")
    for i in range(2, 4):
        for r in range(4):
            e(f"ds_read_u16 v{148+4*i+r}, v235 offset:{(16*i+r)*128}")
    def rnd(a, n, T):
        for k in range(n // 2):
            e(f"v_cvt_pk_bf16_f32 v{T+k}, v{a+2*k}, v{a+2*k+1}")
        for k in range(n // 2):
            e(f"v_lshlrev_b32 v{a+2*k}, 16, v{T+k}")
            e(f"v_and_b32 v{a+2*k+1}, s72, v{T+k}")
    def unp(dst, src, n):
        for k in range(n // 2):
            e(f"v_lshlrev_b32 v{dst+2*k}, 16, v{src+k}")
            e(f"v_and_b32 v{dst+2*k+1}, s72, v{src+k}")
    a = 68
    rnd(a, 16, 4)
    unp(16, 236, 16)
    for k in range(8):
        e(f"v_pk_add_f32 v[{a+2*k}:{a+2*k+1}], v[{a+2*k}:{a+2*k+1}], v[{16+2*k}:{17+2*k}]")
    rnd(a, 16, 4)
    for r in range(16):
        e(f"v_mul_f32 v{16+r}, s74, v{a+r}")
    for r in range(16):
        e(f"v_exp_f32 v{16+r}, v{16+r}")
    for k in range(8):
        e(f"v_pk_add_f32 v[{16+2*k}:{17+2*k}], v[{16+2*k}:{17+2*k}], 1.0 op_sel_hi:[1,0]")
    for r in range(16):
        e(f"v_rcp_f32 v{16+r}, v{16+r}")
    for k in range(8):
        e(f"v_pk_mul_f32 v[{a+2*k}:{a+2*k+1}], v[{a+2*k}:{a+2*k+1}], v[{16+2*k}:{17+2*k}]")
    rnd(a, 16, 4)
    e("s_waitcnt lgkmcnt(0)")
    for r in range(16):
        e(f"v_lshlrev_b32 v{16+r}, 16, v{148+r}")
    for k in range(8):
        e(f"v_pk_mul_f32 v[{a+2*k}:{a+2*k+1}], v[{a+2*k}:{a+2*k+1}], v[{16+2*k}:{17+2*k}]")
    rnd(a, 16, 4)
    unp(16, 132, 16)
    for k in range(8):
        e(f"v_pk_add_f32 v[{a+2*k}:{a+2*k+1}], v[{a+2*k}:{a+2*k+1}], v[{16+2*k}:{17+2*k}]")
    for k in range(8):
        e(f"v_cvt_pk_bf16_f32 v{32+k}, v{a+2*k}, v{a+2*k+1}")
    for i in range(4):
        e(f"buffer_store_dwordx2 v[{32+2*i}:{33+2*i}], v233, s[48:51], s73 offen offset:{32*i}")
    if STAMP:
        stamp()
        e("s_waitcnt vmcnt(0)")
    stamp_flush()
    e("s_endpgm")


def gen_C(px, rep=True, kc=True, waits='LH'):
    CH = 38400; CS = 4160; KB = 8 * CS
    SL = " sc1" if "L" in waits else ""
    SH = " sc1" if "H" in waits else ""
    stamp(True)
    e("s_sub_u32 s61, s2, 256")
    e("s_and_b32 s62, s61, 7")
    e("s_lshr_b32 s61, s61, 3")
    e("s_lshl_b32 s62, s62, 5")
    e("s_add_u32 s61, s61, s62")
    e("s_lshr_b32 s62, s60, 1")
    e("s_and_b32 s63, s60, 1")
    e("s_lshl_b32 s64, s61, 1")
    e("s_add_u32 s64, s64, s62")
    e(f"s_mul_i32 s65, s62, {CH}")
    e("v_and_b32 v6, 15, v1")
    e("v_lshrrev_b32 v7, 4, v1")
    srd(36, P_W2, 512 * 1792 * 2)
    srd(40, P_WS, W2F_SZ, W2F_OFF)
    srd(44, P_WS, XNB_SZ, XNB_OFF)
    srd(48, P_WS, ST_SZ, ST_OFF)
    srd(52, P_WS, FL_SZ, FL_OFF)
    e("s_mov_b32 s72, 0xffff0000")
    def uloads():
        e("s_lshl_b32 s70, s63, 7")
        e("v_add_u32 v34, s70, v1")
        e("v_sub_u32 v35, 255, v34")
        e("v_lshlrev_b32 v35, 13, v35")
        e("s_lshl_b32 s70, s64, 4")
        e("v_add_u32 v35, s70, v35")
        e("v_subrev_u32 v36, 0x2000, v35")
        e("v_subrev_u32 v37, 0x80000, v35")
        e("v_subrev_u32 v38, 0x82000, v35")
        e(f"buffer_load_dwordx4 v[168:171], v35, s[44:47], 0 offen{LSC}")
        e(f"buffer_load_dwordx4 v[172:175], v36, s[44:47], 0 offen{LSC}")
        e(f"buffer_load_dwordx4 v[176:179], v37, s[44:47], 0 offen{LSC}")
        e(f"buffer_load_dwordx4 v[180:183], v38, s[44:47], 0 offen{LSC}")
    if kc:
        e("s_lshl_b32 s66, s64, 8")
        e("s_lshl_b32 s67, s63, 7")
        e("s_add_u32 s66, s66, s67")
        e("v_lshl_add_u32 v8, v1, 1, s66")
        e("s_lshl_b32 s67, s64, 1")
        e("v_mov_b32 v9, s67")
        e(f"global_load_ushort v10, v8, s[{P_LAR}:{P_LAR+1}]")
        e(f"global_load_ushort v11, v8, s[{P_AIM}:{P_AIM+1}]")
        e(f"global_load_ushort v12, v8, s[{P_CR}:{P_CR+1}]")
        e(f"global_load_ushort v13, v8, s[{P_CI}:{P_CI+1}]")
        e(f"global_load_ushort v14, v9, s[{P_LDT}:{P_LDT+1}]")
        e(f"global_load_ushort v15, v9, s[{P_DSK}:{P_DSK+1}]")
        if "L" not in waits:
            uloads()
    def rep_loads():
        e("s_lshr_b32 s66, s64, 4")
        e("s_and_b32 s67, s64, 15")
        e("v_lshlrev_b32 v16, 12, v7")
        e("v_lshl_add_u32 v16, v6, 1, v16")
        e(f"s_mul_i32 s68, s67, {112*1024}")
        e("s_lshl_b32 s69, s66, 5")
        e("s_add_u32 s68, s68, s69")
        e("s_lshl_b32 s69, s63, 16")
        e("s_add_u32 s68, s68, s69")
        for k in range(4):
            e(f"s_add_u32 s{73}, s68, {k*16384}")
            for el in range(4):
                e(f"buffer_load_ushort v{200+4*k+el}, v16, s[36:39], s73 offen offset:{1024*el}")
    if rep and not kc:
        e("s_sub_u32 s35, s2, 256")
        e("s_lshl_b32 s35, s35, 2")
        e("s_add_u32 s35, s35, s60")
        e("s_cmp_ge_u32 s35, 896")
        e(f"s_cbranch_scc1 {px}_W1L")
        srd(44, P_W1, 512 * 1792 * 2)
        e(f"v_mul_u32_u24 v18, {4*3584}, v7")
        e("v_lshl_add_u32 v18, v6, 1, v18")
        for k in range(2):
            e("s_lshl_b32 s67, s35, 1")
            if k: e("s_add_u32 s67, s67, 1")
            e("s_mul_i32 s68, s67, 9363")
            e("s_lshr_b32 s68, s68, 16")
            e("s_mul_i32 s69, s68, 7")
            e("s_sub_u32 s69, s67, s69")
            e("s_lshr_b32 s70, s68, 4")
            e("s_and_b32 s68, s68, 15")
            e("s_mul_i32 s70, s70, 7")
            e("s_add_u32 s70, s70, s69")
            e("s_lshl_b32 s70, s70, 5")
            e(f"s_mul_i32 s68, s68, {32*3584}")
            e("s_add_u32 s70, s70, s68")
            for ee in range(8):
                e(f"s_add_u32 s71, s70, {(16*(ee>>2) + (ee&3))*3584}")
                e(f"buffer_load_ushort v{100+8*k+ee}, v18, s[44:47], s71 offen")
        lab(f"{px}_W1L")
    if kc:
        for i in range(8):
            d = 230 + i
            e("v_lshlrev_b32 v17, 3, v0")
            if i:
                e(f"v_add_u32 v17, {i}, v17")
            e("v_cvt_f32_u32 v17, v17")
            e("v_cvt_pk_bf16_f32 v17, v17, v17")
            e("v_lshlrev_b32 v17, 16, v17")
            e("v_cvt_u32_f32 v18, v17")
            e("v_lshrrev_b32 v17, 23, v17")
            e("v_subrev_u32 v17, 134, v17")
            e("v_med3_i32 v17, v17, 0, 3")
            e("v_lshrrev_b32 v19, 7, v18")
            e("v_and_b32 v20, 7, v18")
            e("v_lshl_add_u32 v19, v19, 3, v20")
            e("v_lshrrev_b32 v19, v17, v19")
            e("v_lshl_add_u32 v19, v17, 3, v19")
            e("v_bfe_u32 v20, v18, 3, 4")
            e("v_lshrrev_b32 v21, 4, v19")
            e("v_and_b32 v19, 15, v19")
            e("v_lshl_add_u32 v20, v21, 4, v20")
            e("v_lshl_add_u32 v19, v20, 4, v19")
            e(f"v_lshlrev_b32 v{d}, 1, v19")
    def rep_store():
        e("s_lshr_b32 s66, s64, 4")
        e("s_and_b32 s67, s64, 15")
        for k in range(4):
            e(f"v_lshl_or_b32 v{216+2*k}, v{201+4*k}, 16, v{200+4*k}")
            e(f"v_lshl_or_b32 v{217+2*k}, v{203+4*k}, 16, v{202+4*k}")
        e("s_lshr_b32 s68, s66, 2")
        e("s_lshl_b32 s68, s68, 4")
        e("s_add_u32 s68, s68, s67")
        e("s_mul_i32 s68, s68, 14336")
        e("s_and_b32 s69, s66, 3")
        e("s_lshl_b32 s70, s69, 10")
        e("s_add_u32 s70, s70, s68")
        e("s_lshl_b32 s71, s63, 13")
        e("s_add_u32 s70, s70, s71")
        e(f"buffer_store_dwordx4 v[216:219], v2, s[40:43], s70 offen{SL}")
        e("s_cmp_eq_u32 s63, 0")
        e(f"s_cbranch_scc0 {px}_RP1")
        e("s_add_u32 s70, s70, 4096")
        e(f"buffer_store_dwordx4 v[220:223], v2, s[40:43], s70 offen{SL}")
        e(f"s_branch {px}_RPJ")
        lab(f"{px}_RP1")
        e("s_lshl_b32 s70, s69, 9")
        e("s_add_u32 s70, s70, s68")
        e("s_add_u32 s70, s70, 12288")
        e("v_lshlrev_b32 v17, 3, v1")
        e(f"buffer_store_dwordx2 v[220:221], v17, s[40:43], s70 offen{SL}")
        lab(f"{px}_RPJ")
    stamp()
    e("s_waitcnt vmcnt(0)")
    stamp()
    if rep and not kc:
        rep_store()
        e("s_cmp_ge_u32 s35, 896")
        e(f"s_cbranch_scc1 {px}_W1E")
        srd(40, P_WS, W1F_SZ, W1F_OFF)
        e("s_lshl_b32 s67, s35, 11")
        for k in range(2):
            for j in range(4):
                e(f"v_lshl_or_b32 v{120+4*k+j}, v{101+8*k+2*j}, 16, v{100+8*k+2*j}")
            e(f"buffer_store_dwordx4 v[{120+4*k}:{123+4*k}], v2, s[40:43], s67 offen offset:{1024*k}")
        lab(f"{px}_W1E")
    if not kc:
        if not waits:
            pass
        stamp_flush()
        e("s_endpgm")
        return
    e(f"s_mov_b32 s66, {f2u(LOG2E_HI)}")
    e(f"s_mov_b32 s67, {f2u(LOG2E_LO)}")
    e(f"s_mov_b32 s68, {f2u(LN2)}")
    e(f"s_mov_b32 s69, {f2u(INV2PI)}")
    for r in (10, 11, 12, 13, 14, 15):
        e(f"v_lshlrev_b32 v{r}, 16, v{r}")
    def exp_acc(dst, x, t1, t2):
        e(f"v_mul_f32 v{t1}, s66, v{x}")
        e(f"v_fma_f32 v{t2}, v{x}, s66, -v{t1}")
        e(f"v_fmac_f32 v{t2}, s67, v{x}")
        e(f"v_exp_f32 v{dst}, v{t1}")
        e(f"v_mul_f32 v{t2}, s68, v{t2}")
        e(f"v_fmac_f32 v{dst}, v{dst}, v{t2}")
    exp_acc(16, 14, 17, 18)
    exp_acc(19, 10, 20, 21)
    e("v_cvt_pk_bf16_f32 v17, v16, v19")
    e("v_lshlrev_b32 v16, 16, v17")
    e("v_and_b32 v19, s72, v17")
    e("v_mul_f32 v19, v19, v16")
    e("v_mul_f32 v19, s66, v19")
    e("v_mul_f32 v20, v11, v16")
    e("v_mul_f32 v20, s69, v20")
    e("v_mul_f32 v22, v12, v16")
    e("v_mul_f32 v23, v13, v16")
    e("v_max_f32 v24, |v22|, |v23|")
    dpp_reduce([24], "v_max_f32")
    e("v_readlane_b32 s70, v24, 63")
    for k, (m, d) in enumerate(((1.0, 26), (8.0, 28), (128.0, 30))):
        e(f"v_mul_f32 v{32+k}, {f2u(-m)}, v19")
        e(f"v_mul_f32 v{36+k}, {f2u(m)}, v20")
    e("v_frexp_exp_i32_f32 v24, s70")
    for k in range(3):
        e(f"v_exp_f32 v{32+k}, v{32+k}")
        e(f"v_fract_f32 v{36+k}, v{36+k}")
    e("v_sub_u32 v25, 0, v24")
    for k in range(3):
        e(f"v_cos_f32 v{40+k}, v{36+k}")
        e(f"v_sin_f32 v{44+k}, v{36+k}")
    e("v_ldexp_f32 v22, v22, v25")
    e("v_ldexp_f32 v23, v23, v25")
    for k, d in enumerate((26, 28, 30)):
        e(f"v_mul_f32 v{d}, v{32+k}, v{40+k}")
        e(f"v_mul_f32 v{d+1}, v{32+k}, v{44+k}")
    e(f"s_mul_i32 s70, s63, 9216")
    e("s_add_u32 s70, s70, s65")
    e("v_lshlrev_b32 v32, 2, v1")
    e("v_add_u32 v32, s70, v32")
    e("v_mul_u32_u24 v33, 288, v6")
    e("v_lshl_add_u32 v33, v7, 4, v33")
    e("v_add_u32 v33, s70, v33")
    AT = 4608
    cur = 22
    for j in range(16):
        if j:
            nxt = 34 if cur != 34 else 36
            cmul(nxt, cur, 28, nxt)
            cur = nxt
        e(f"v_cvt_pk_f16_f32 v38, v{cur}, -v{cur+1}")
        e(f"ds_write_b32 v32, v38 offset:{288*j}")
    for ks in range(4):
        e(f"ds_read_b128 v[{120+4*ks}:{123+4*ks}], v33 offset:{64*ks}")
    e("v_mov_b32 v40, 1.0")
    e("v_mov_b32 v41, 0")
    e("v_mov_b32 v42, v26")
    e("v_mov_b32 v43, v27")
    for r in range(2, 8):
        cmul(40 + 2 * r, 40 + 2 * (r - 1), 26, 40 + 2 * r)
    e("v_mov_b32 v58, v30")
    e("v_mov_b32 v59, v31")
    for i in range(2, 17):
        cmul(56 + 2 * i, 56 + 2 * (i - 1), 30, 56 + 2 * i)
    def Rr(r): return 40 + 2 * r
    def Gi(i): return 56 + 2 * i
    tiles = [
        [(None, r) for r in range(8)] + [(1, r) for r in range(8)],
        [(2, 2 * r) for r in range(4)] + [(3, 2 * r) for r in range(4)] + [(4 + i, 4 * r) for i in range(4) for r in range(2)],
        [(8 + i, 0) for i in range(9)],
    ]
    for i in range(12):
        e(f"v_mov_b32 v{100+i}, 0")
    for T, rows in enumerate(tiles):
        for row, (gi, r) in enumerate(rows):
            tp = 92 + 2 * (row & 3)
            if gi is None:
                src = Rr(r)
            elif r == 0:
                src = Gi(gi)
            else:
                cmul(tp, Gi(gi), Rr(r), tp)
                src = tp
            e(f"v_cvt_pk_f16_f32 v{112 + (row & 3)}, v{src}, v{src+1}")
            e(f"ds_write_b32 v32, v{112 + (row & 3)} offset:{AT + 288*row}")
        for ks in range(4):
            e(f"ds_read_b128 v[{136+16*(T&1)+4*ks}:{139+16*(T&1)+4*ks}], v33 offset:{AT + 64*ks}")
        e("s_waitcnt lgkmcnt(0)")
        a = 100 + 4 * T
        for ks in range(4):
            A = 136 + 16 * (T & 1) + 4 * ks
            e(f"v_mfma_f32_16x16x32_f16 v[{a}:{a+3}], v[{A}:{A+3}], v[{120+4*ks}:{123+4*ks}], v[{a}:{a+3}]")
    stamp()
    rep_loads()
    e("s_mul_i32 s70, s63, 3072")
    e("s_add_u32 s70, s70, s65")
    e("v_lshlrev_b32 v34, 6, v6")
    e("v_lshl_add_u32 v34, v7, 4, v34")
    e("v_add_u32 v34, s70, v34")
    e("s_lshl_b32 s70, s63, 2")
    e("s_add_u32 s70, s70, s65")
    e("v_mov_b32 v35, s70")
    e("s_nop 3")
    for T in range(3):
        e(f"ds_write_b128 v34, v[{100+4*T}:{103+4*T}] offset:{18432 + 1024*T}")
    e(f"ds_write_b32 v35, v24 offset:{26112}")
    e("s_waitcnt lgkmcnt(0)")
    nonce()
    e("s_barrier")
    e("v_lshlrev_b32 v34, 4, v0")
    e("v_min_u32 v34, 3056, v34")
    e("v_mov_b32 v35, 0")
    for c in range(2):
        e(f"ds_read_b128 v[{40+16*c}:{43+16*c}], v34 offset:{c*CH + 18432}")
        e(f"ds_read_b128 v[{44+16*c}:{47+16*c}], v34 offset:{c*CH + 18432 + 3072}")
        e(f"ds_read_b64 v[{48+16*c}:{49+16*c}], v35 offset:{c*CH + 26112}")
    e("v_lshrrev_b32 v36, 1, v34")
    e("s_waitcnt lgkmcnt(0)")
    for c in range(2):
        b = 40 + 16 * c
        e(f"v_max_i32 v{b+10}, v{b+8}, v{b+9}")
        e(f"v_sub_u32 v{b+8}, v{b+8}, v{b+10}")
        e(f"v_sub_u32 v{b+9}, v{b+9}, v{b+10}")
        for j in range(4):
            e(f"v_ldexp_f32 v{b+j}, v{b+j}, v{b+8}")
            e(f"v_ldexp_f32 v{b+4+j}, v{b+4+j}, v{b+9}")
        for j in range(4):
            e(f"v_add_f32 v{b+j}, v{b+j}, v{b+4+j}")
        e(f"v_cvt_pk_f16_f32 v{b+12}, v{b}, v{b+1}")
        e(f"v_cvt_pk_f16_f32 v{b+13}, v{b+2}, v{b+3}")
        e(f"ds_write_b64 v36, v[{b+12}:{b+13}] offset:{c*CH + 24576}")
    e("s_cmp_eq_u32 s62, 0")
    e("s_cselect_b64 vcc, -1, 0")
    e("s_nop 1")
    e("v_cndmask_b32 v25, v66, v50, vcc")
    e("v_add_u32 v25, 1, v25")
    e("s_waitcnt lgkmcnt(0)")
    e("s_barrier")
    for c in range(2):
        for i in range(8):
            e(f"ds_read_u16 v{40+8*c+i}, v{230+i} offset:{c*CH + 24576}")
    e("v_lshrrev_b32 v34, 2, v0")
    e("v_lshlrev_b32 v34, 5, v34")
    e("v_bfe_u32 v35, v0, 1, 1")
    e("v_mul_u32_u24 v35, 2560, v35")
    e("v_and_b32 v36, 1, v0")
    e("v_lshl_add_u32 v34, v36, 4, v34")
    e("v_add_u32 v34, v34, v35")
    e("v_bfe_u32 v35, v0, 5, 1")
    e("v_mul_u32_u24 v35, 2560, v35")
    e("v_and_b32 v36, 31, v0")
    e("v_lshl_add_u32 v35, v36, 4, v35")
    e("v_bfe_u32 v36, v0, 6, 1")
    e(f"v_mul_u32_u24 v36, {CH}, v36")
    e("v_add_u32 v35, v35, v36")
    for j in range(4):
        e(f"v_mov_b32 v{64+j}, 0")
    e(f"ds_write_b128 v35, v[64:67] offset:{KB}")
    e("s_waitcnt lgkmcnt(1)")
    for c in range(2):
        for j in range(4):
            e(f"v_lshl_or_b32 v{56+4*c+j}, v{41+8*c+2*j}, 16, v{40+8*c+2*j}")
        if c == 1:
            e(f"v_add_u32 v37, {CH}, v34")
        e(f"ds_write_b128 v{34 if c == 0 else 37}, v[{56+4*c}:{59+4*c}] offset:{KB + 512}")
    if DUMPK:
        srd(36, P_WS, KP_SZ, KP_OFF)
        e("s_mul_i32 s70, s61, 10240")
        e("buffer_store_dwordx4 v[56:59], v34, s[36:39], s70 offen offset:512")
        e("s_add_u32 s70, s70, 5120")
        e("buffer_store_dwordx4 v[60:63], v34, s[36:39], s70 offen offset:512")
        e("s_lshl_b32 s70, s64, 2")
        e(f"s_add_u32 s70, s70, {KP_SZ - 4096}")
        e("v_mov_b32 v36, 0")
        e("buffer_store_dword v25, v36, s[36:39], s70 offen")
    stamp()
    e("s_waitcnt vmcnt(0) lgkmcnt(0)")
    rep_store()
    e("s_cmp_eq_u32 s60, 0")
    e(f"s_cbranch_scc0 {px}_W1")
    e("v_lshlrev_b32 v34, 2, v1")
    poll(52, 34, "0", 64, 36, px, ndw=4, sleep=8)
    lab(f"{px}_W1")
    e("s_barrier")
    stamp()
    if "L" in waits:
        uloads()
    e("s_lshl_b32 s70, s63, 7")
    e("v_add_u32 v34, s70, v1")
    e("v_lshlrev_b32 v34, 4, v34")
    e("v_add_u32 v34, s65, v34")
    e("v_lshrrev_b32 v35, 2, v1")
    e(f"v_mul_u32_u24 v35, {CS}, v35")
    e("v_and_b32 v36, 3, v1")
    e("v_lshl_add_u32 v35, v36, 4, v35")
    e(f"s_mul_i32 s70, s63, {4*CS}")
    e("s_add_u32 s70, s70, s65")
    e("v_add_u32 v35, s70, v35")
    for j in range(4):
        e(f"v_mov_b32 v{88+j}, 0")
    e("s_mov_b64 exec, 0xffff")
    e("ds_write_b128 v35, v[88:91] offset:4096")
    e("s_mov_b64 exec, -1")
    e("v_and_b32 v35, 3, v6")
    e("v_sub_u32 v35, 7, v35")
    e(f"v_mul_u32_u24 v35, {CS}, v35")
    e("v_lshrrev_b32 v36, 2, v6")
    e("v_sub_u32 v36, v7, v36")
    e("v_lshl_add_u32 v35, v36, 4, v35")
    e("s_lshl_b32 s70, s63, 6")
    e("s_sub_u32 s70, s65, s70")
    e(f"s_add_u32 s70, s70, {4080 - 64*62}")
    e("v_add_u32 v12, s70, v35")
    e(f"v_subrev_u32 v13, {4*CS}, v12")
    e("v_lshrrev_b32 v35, 1, v7")
    e("v_mul_u32_u24 v35, 2560, v35")
    e("v_lshl_add_u32 v35, v6, 5, v35")
    e("v_and_b32 v36, 1, v7")
    e("v_lshl_add_u32 v35, v36, 4, v35")
    e("s_lshl_b32 s70, s63, 5")
    e("s_sub_u32 s70, s65, s70")
    e(f"s_add_u32 s70, s70, {KB+32}")
    e("v_add_u32 v14, s70, v35")
    for it in range(2):
        I = 168 + 8 * it
        O = 48 + 24 * it
        e(f"s_waitcnt vmcnt({2 - 2*it})")
        for j in range(7):
            e(f"v_alignbit_b32 v{O+j}, v{I+j+1}, v{I+j}, 16")
        off = 1024 * it
        e(f"ds_write_b128 v34, v[{I}:{I+3}] offset:{off}")
        e(f"ds_write_b128 v34, v[{I+2}:{I+5}] offset:{off + 4*CS}")
        e(f"ds_write_b128 v34, v[{O}:{O+3}] offset:{off + 1*CS}")
        e(f"ds_write_b128 v34, v[{O+2}:{O+5}] offset:{off + 5*CS}")
        M = 92 + 16 * it
        for k, (src, s) in enumerate(((I + 1, 2), (I + 3, 6), (O + 1, 3), (O + 3, 7))):
            e(f"v_pk_mov_b32 v[{M+4*k}:{M+4*k+1}], v[{src-1}:{src}], v[{src+1}:{src+2}] op_sel:[1,0]")
            e(f"v_pk_mov_b32 v[{M+4*k+2}:{M+4*k+3}], v[{src+1}:{src+2}], v[{src+3}:{src+4}] op_sel:[1,0]")
            e(f"ds_write_b128 v34, v[{M+4*k}:{M+4*k+3}] offset:{off + s*CS}")
    ACC = 16
    e("v_mov_b32 v10, v25")
    e("v_mov_b32 v11, v15")
    for i in range(32):
        e(f"v_mov_b32 v{ACC+i}, 0")
    stamp()
    e("s_waitcnt vmcnt(0) lgkmcnt(0)")
    e("s_barrier")
    stamp()
    def c_():
        e("s_lshl_b32 s70, s61, 2")
        e(f"s_add_u32 s70, s70, {RFL}")
    publish(px, "RF", c_, 8)
    if os.environ.get("DEFER"):
        e("s_sub_u32 s70, s2, 256")
        e("s_lshl_b32 s70, s70, 2")
        e(f"s_add_u32 s70, s70, {HINT}")
        e("v_mov_b32 v8, 0")
        poll(52, 8, "s70", 1, 9, px, sleep=3)
    lab(f"{px}_RF")
    if os.environ.get("DEFER"):
        e("s_barrier")
    stamp()
    NB = 3
    FR = [48 + 24 * b for b in range(NB)]
    def nI(pp):
        return 4 - (2 * pp) // 16
    def issue_list(pp):
        R = FR[pp % NB]
        out = []
        for h in range(2):
            out.append(f"ds_read_b128 v[{R+4*h}:{R+4*h+3}], v{12+h} offset:{64*(62-2*pp)}")
        for I in range(4 - nI(pp), 4):
            out.append(f"ds_read_b128 v[{R+8+4*I}:{R+11+4*I}], v14 offset:{32*(16*I-2*pp+15)}")
        return out
    cnts = {}
    for pp in range(NB - 1):
        l_ = issue_list(pp); cnts[pp] = len(l_)
        for x in l_: e(x)
    for pp in range(32):
        nxt = issue_list(pp + NB - 1) if pp + NB - 1 < 32 else []
        pend = sum(cnts[k] for k in range(pp + 1, min(32, pp + NB - 1)))
        cnts[pp + NB - 1] = len(nxt)
        e(f"s_waitcnt lgkmcnt({pend})")
        R = FR[pp % NB]
        for I in range(4 - nI(pp), 4):
            for h in range(2):
                a = ACC + 8 * I + 4 * h
                e(f"v_mfma_f32_16x16x32_f16 v[{a}:{a+3}], v[{R+4*h}:{R+4*h+3}], v[{R+8+4*I}:{R+11+4*I}], v[{a}:{a+3}]")
                if nxt: e(nxt.pop(0))
        for x in nxt: e(x)
    e("s_nop 7")
    stamp()
    e("s_barrier")
    e("s_lshl_b32 s70, s63, 12")
    e("s_add_u32 s70, s70, s65")
    e(f"s_add_u32 s70, s70, {CS}")
    e("v_add_u32 v8, s70, v2")
    e("s_xor_b32 s71, s63, 1")
    e("s_lshl_b32 s70, s71, 12")
    e("s_add_u32 s70, s70, s65")
    e(f"s_add_u32 s70, s70, {CS}")
    e("v_add_u32 v9, s70, v2")
    e("s_cmp_eq_u32 s63, 0")
    e(f"s_cbranch_scc1 {px}_P0")
    for t in range(4):
        e(f"ds_write_b128 v8, v[{ACC+4*t}:{ACC+4*t+3}] offset:{1024*t}")
    for i in range(8):
        e(f"v_pk_mov_b32 v[{48+2*i}:{49+2*i}], v[{ACC+16+2*i}:{ACC+17+2*i}], v[{ACC+16+2*i}:{ACC+17+2*i}] op_sel:[0,1]")
    e(f"s_branch {px}_PJ")
    lab(f"{px}_P0")
    for t in range(4):
        e(f"ds_write_b128 v8, v[{ACC+16+4*t}:{ACC+16+4*t+3}] offset:{1024*t}")
    for i in range(8):
        e(f"v_pk_mov_b32 v[{48+2*i}:{49+2*i}], v[{ACC+2*i}:{ACC+1+2*i}], v[{ACC+2*i}:{ACC+1+2*i}] op_sel:[0,1]")
    lab(f"{px}_PJ")
    e("s_waitcnt lgkmcnt(0)")
    e("s_barrier")
    for t in range(4):
        e(f"ds_read_b128 v[{64+4*t}:{67+4*t}], v9 offset:{1024*t}")
    e("v_lshlrev_b32 v5, 6, v6")
    e("v_lshl_add_u32 v5, v7, 4, v5")
    e("s_lshl_b32 s70, s63, 11")
    e("s_sub_u32 s70, s65, s70")
    e(f"s_add_u32 s70, s70, {4080-1024}")
    e("v_sub_u32 v8, s70, v5")
    for Il in range(2):
        e(f"ds_read_b128 v[{80+4*Il}:{83+4*Il}], v8 offset:{1024*(1-Il)}")
    e("s_lshl_b32 s70, s64, 12")
    e("s_lshl_b32 s71, s63, 11")
    e("s_add_u32 s70, s70, s71")
    e("s_waitcnt lgkmcnt(0)")
    for Il in range(2):
        a = 48 + 8 * Il
        for k in range(4):
            e(f"v_pk_add_f32 v[{a+2*k}:{a+2*k+1}], v[{a+2*k}:{a+2*k+1}], v[{64+8*Il+2*k}:{65+8*Il+2*k}]")
        for k in range(8):
            e(f"v_ldexp_f32 v{a+k}, v{a+k}, v10")
        for k in range(4):
            e(f"v_cvt_pk_bf16_f32 v{88+k}, v{a+2*k}, v{a+2*k+1}")
        for k in range(4):
            e(f"v_lshlrev_b32 v{a+2*k}, 16, v{88+k}")
            e(f"v_and_b32 v{a+2*k+1}, s72, v{88+k}")
        U = 80 + 4 * Il
        for k in range(4):
            src = U + 3 - k
            e(f"v_cvt_f32_f16_sdwa v{92+2*k}, v{src} dst_sel:DWORD dst_unused:UNUSED_PAD src0_sel:WORD_1")
            e(f"v_cvt_f32_f16 v{93+2*k}, v{src}")
        for k in range(8):
            e(f"v_mul_f32 v{92+k}, v{92+k}, v11")
        for k in range(4):
            e(f"v_cvt_pk_bf16_f32 v{88+k}, v{92+2*k}, v{93+2*k}")
        for k in range(4):
            e(f"v_lshlrev_b32 v{92+2*k}, 16, v{88+k}")
            e(f"v_and_b32 v{93+2*k}, s72, v{88+k}")
        for k in range(4):
            e(f"v_pk_add_f32 v[{a+2*k}:{a+2*k+1}], v[{a+2*k}:{a+2*k+1}], v[{92+2*k}:{93+2*k}]")
        for k in range(4):
            e(f"v_cvt_pk_bf16_f32 v{100+4*Il+k}, v{a+2*k}, v{a+2*k+1}")
        e(f"buffer_store_dwordx4 v[{100+4*Il}:{103+4*Il}], v5, s[48:51], s70 offen offset:{1024*Il}{SH}")
    stamp()
    e("s_waitcnt vmcnt(0)")
    e("s_barrier")
    def c_():
        e("s_lshl_b32 s70, s61, 2")
        e(f"s_add_u32 s70, s70, {SFL}")
    publish(px, "SF", c_, 36)
    e("s_cmp_eq_u32 s61, 0")
    e(f"s_cbranch_scc0 {px}_SF")
    e("v_lshlrev_b32 v34, 2, v1")
    e(f"s_mov_b32 s70, {RFL}")
    poll(52, 34, "s70", 64, 36, px, ndw=4, sleep=8)
    e("s_add_u32 s35, s35, 1")
    e("v_mov_b32 v34, 0")
    e("v_mov_b32 v35, s35")
    e(f"s_mov_b32 s70, {EPO}")
    e("s_mov_b64 exec, 1")
    e("buffer_store_dword v35, v34, s[52:55], s70 offen sc1")
    e("s_mov_b64 exec, -1")
    lab(f"{px}_SF")
    stamp_flush()
    e("s_endpgm")


def gen_kernel(name, px):
    kernel_begin(name)
    e("s_cmp_ge_u32 s2, 512")
    e(f"s_cbranch_scc1 {px}_END")
    e("s_load_dwordx16 s[4:19], s[0:1], 0")
    e("s_load_dwordx8 s[20:27], s[0:1], 64")
    e("s_load_dwordx4 s[28:31], s[0:1], 96")
    e("s_load_dwordx2 s[32:33], s[0:1], 112")
    e("v_and_b32 v1, 63, v0")
    e("v_readfirstlane_b32 s60, v0")
    e("v_lshlrev_b32 v2, 4, v1")
    e("s_lshr_b32 s60, s60, 6")
    e("s_waitcnt lgkmcnt(0)")
    e(f"s_add_u32 s36, s32, 0x{FL_OFF:x}")
    e("s_addc_u32 s37, s33, 0")
    e(f"s_load_dword s35, s[36:37], {EPO}")
    e("s_cmp_ge_u32 s2, 256")
    e(f"s_cbranch_scc1 {px}_C")
    gen_G(px + "G")
    lab(f"{px}_C")
    gen_C(px + "C")
    lab(f"{px}_END")
    e("s_endpgm")

LDS = 81920
gen_kernel("pf_kernel", "F")
hdr = "; S4D conv + FFN fused op, single launch (generated by gen/gen3.py)\n"
hdr += f"; @launch kernel=pf_kernel grid=(512,1,1) block=(256,1,1) lds={LDS}\n"
hdr += '.amdgcn_target "amdgcn-amd-amdhsa--gfx950"\n.text\n'
txt = hdr + "\n".join(L) + "\n" + '.section .rodata,"a"\n'
txt += kd("pf_kernel", 256, 102, 256)
open(OUT, "w").write(txt)
print("wrote", OUT, len(txt))
```

```python
import struct, sys, os

OUT = sys.argv[1] if len(sys.argv) > 1 else "recurrent_scan__ssm_conv_s4d__dense_activation_gelu__prompt.s"
SPLIT = os.environ.get("SPLIT", "") != ""
STAMP = os.environ.get("STAMP", "") != ""
DUMPK = os.environ.get("DUMPK", "") != ""

L = []
def e(s=""):
    L.append("    " + s)
def lab(s):
    L.append(s + ":")
def f2u(x):
    return "0x%08x" % struct.unpack("<I", struct.pack("<f", x))[0]

XNF_OFF = 0x0;        XNF_SZ = 0x200000
XNB_OFF = 0x200000;   XNB_SZ = 0x200000
W2F_OFF = 0x400000;   W2F_SZ = 8 * 16 * 14336
HF_OFF  = 0x600000;   HF_SZ = 32 * 16 * 14336
ST_OFF  = 0xD80000;   ST_SZ = 512 * 4096
FL_OFF  = 0xF80000;   FL_SZ = 8192
LNF, HFL, SFL, RFL, EPO, HINT = 0, 1024, 3072, 4096, 5120, 6144
W1F_OFF = 0x1400000;  W1F_SZ = 1792 * 1024
KP_OFF  = 0x1000000;  KP_SZ = 512 * 5120
DBG_OFF = 0x1800000

LOG2E = 1.4426950408889634
LOG2E_HI = struct.unpack("<f", struct.pack("<f", LOG2E))[0]
LOG2E_LO = LOG2E - LOG2E_HI
LN2 = 0.6931471805599453
INV2PI = 0.15915494309189535
GC1 = 2 * 0.7978845608028654 * LOG2E
GC2 = GC1 * 0.044715
SPIN_MAX = 1 << 20
FINE = os.environ.get("FINE")
LSC = " sc1" if os.environ.get("LSC") else ""

P_X, P_LAR, P_AIM, P_CR, P_CI, P_LDT, P_DSK = 4, 6, 8, 10, 12, 14, 16
P_W1, P_B1, P_W2, P_B2, P_OUT, P_DBG, P_WS = 20, 22, 24, 26, 28, 30, 32

def srd(dst, ptr, size, off=0):
    if off:
        e(f"s_add_u32 s{dst}, s{ptr}, 0x{off:x}")
        e(f"s_addc_u32 s{dst+1}, s{ptr+1}, 0")
    else:
        e(f"s_mov_b32 s{dst}, s{ptr}")
        e(f"s_mov_b32 s{dst+1}, s{ptr+1}")
    e(f"s_mov_b32 s{dst+2}, 0x{size:x}")
    e(f"s_mov_b32 s{dst+3}, 0x00020000")

_st = [0]
KIDX = [0]
def stamp(reset=False):
    if not STAMP: return
    if reset:
        _st[0] = 0
        e("s_memrealtime s[78:79]")
    k = _st[0]; _st[0] += 1
    assert k < 28
    e("s_memtime s[100:101]")
    e("s_waitcnt lgkmcnt(0)")
    if k < 20:
        e(f"s_mov_b32 s{80+k}, s100")
    else:
        e(f"v_mov_b32 v{250+k-20}, s100")
def stamp_flush():
    if not STAMP: return
    stamp()
    e("s_mov_b64 exec, 1")
    e("s_memrealtime s[100:101]")
    srd(36, P_WS, 0x80000, DBG_OFF + KIDX[0] * 0x80000)
    e("v_readfirstlane_b32 s40, v0")
    e("s_lshr_b32 s40, s40, 6")
    e("s_lshl_b32 s41, s2, 2")
    e("s_add_u32 s40, s40, s41")
    e("s_lshl_b32 s40, s40, 7")
    e("v_mov_b32 v1, 0")
    e("s_waitcnt lgkmcnt(0)")
    e("v_mov_b32 v2, s100")
    e("v_mov_b32 v3, s78")
    e(f"v_mov_b32 v4, {_st[0]}")
    e("buffer_store_dwordx3 v[2:4], v1, s[36:39], s40 offen")
    for k in range(_st[0]):
        e(f"v_mov_b32 v5, s{80+k}" if k < 20 else f"v_mov_b32 v5, v{250+k-20}")
        e(f"buffer_store_dword v5, v1, s[36:39], s40 offen offset:{16+4*k}")
        e("s_nop 1")
    e("s_mov_b64 exec, -1")

def kernel_begin(name):
    L.append(f".globl {name}")
    L.append(".p2align 8")
    L.append(f".type {name},@function")
    lab(name)

def kd(name, vgpr, sgpr, accum):
    return f""".p2align 6
.amdhsa_kernel {name}
  .amdhsa_next_free_vgpr {vgpr}
  .amdhsa_next_free_sgpr {sgpr}
  .amdhsa_accum_offset {accum}
  .amdhsa_group_segment_fixed_size 0
  .amdhsa_kernarg_size 120
  .amdhsa_user_sgpr_count 2
  .amdhsa_user_sgpr_kernarg_segment_ptr 1
  .amdhsa_system_sgpr_workgroup_id_x 1
.end_amdhsa_kernel
"""

def cmul(d, x, y, t):
    e(f"v_pk_mul_f32 v[{t}:{t+1}], v[{x}:{x+1}], v[{y}:{y+1}] op_sel:[0,0] op_sel_hi:[0,1]")
    e(f"v_pk_fma_f32 v[{d}:{d+1}], v[{x}:{x+1}], v[{y}:{y+1}], v[{t}:{t+1}] op_sel:[1,1,0] op_sel_hi:[1,0,1] neg_lo:[1,0,0]")

_uid = [0]
def poll(srd_r, voff, soff, nlanes, vt, tag, ndw=1, sleep=4):
    _uid[0] += 1
    lb = f"POLL_{tag}_{_uid[0]}"
    e(f"s_mov_b32 s76, {SPIN_MAX}")
    if nlanes < 64:
        e(f"s_mov_b32 s74, 0x{(1 << nlanes) - 1:x}")
        e("s_mov_b32 s75, 0")
    else:
        e("s_mov_b64 s[74:75], -1")
    lab(lb)
    for k in range(ndw):
        e(f"buffer_load_dword v{vt+k}, v{voff}, s[{srd_r}:{srd_r+3}], {soff} offen offset:{256*k} sc1")
    e("s_waitcnt vmcnt(0)")
    for k in range(1, ndw):
        e(f"v_xor_b32 v{vt+k}, s34, v{vt+k}")
    e(f"v_xor_b32 v{vt}, s34, v{vt}")
    for k in range(1, ndw):
        e(f"v_or_b32 v{vt}, v{vt}, v{vt+k}")
    e(f"v_cmp_ne_u32 vcc, 0, v{vt}")
    e("s_and_b64 vcc, vcc, s[74:75]")
    e(f"s_cbranch_scc0 {lb}_D")
    e(f"s_sleep {sleep}")
    e("s_sub_u32 s76, s76, 1")
    e("s_cmp_lg_u32 s76, 0")
    e(f"s_cbranch_scc1 {lb}")
    lab(lb + "_D")

def nonce():
    e("s_mul_i32 s34, s35, 0x9E3779B1")
    e("s_xor_b32 s34, s34, 0x85EBCA6B")

def publish(px, tag, soff_code, vt):
    e("s_cmp_eq_u32 s60, 0")
    e(f"s_cbranch_scc0 {px}_{tag}")
    soff_code()
    e(f"v_mov_b32 v{vt}, 0")
    e(f"v_mov_b32 v{vt+1}, s34")
    e("s_mov_b64 exec, 1")
    e(f"buffer_store_dword v{vt+1}, v{vt}, s[52:55], s70 offen sc1")
    e("s_mov_b64 exec, -1")

def dpp_reduce(regs, op):
    steps = ["quad_perm:[1,0,3,2] row_mask:0xf bank_mask:0xf", "quad_perm:[2,3,0,1] row_mask:0xf bank_mask:0xf",
             "row_half_mirror row_mask:0xf bank_mask:0xf", "row_mirror row_mask:0xf bank_mask:0xf",
             "row_bcast:15 row_mask:0xa bank_mask:0xf", "row_bcast:31 row_mask:0xc bank_mask:0xf"]
    for st in steps:
        e(f"s_nop {1 if len(regs) < 2 else 0}" if len(regs) < 3 else "s_nop 0")
        for r in regs:
            e(f"{op}_dpp v{r}, v{r}, v{r} {st}")
    e("s_nop 0")

class VM:
    def __init__(self): self.ops = []
    def add(self, tag, n=1): self.ops += [tag] * n
    def wait(self, *tags):
        idx = [i for i, o in enumerate(self.ops) if o in tags]
        if not idx: return
        n = len(self.ops) - 1 - max(idx)
        assert n < 64
        e(f"s_waitcnt vmcnt({n})")
    def drained(self): self.ops = []

def gen_G(px):
    vm = VM()
    stamp(True)
    e("s_setprio 2")
    e("s_and_b32 s61, s2, 7")
    e("s_lshr_b32 s62, s2, 3")
    e("s_lshr_b32 s63, s61, 1")
    e("s_lshl_b32 s63, s63, 2")
    e("s_lshr_b32 s67, s62, 3")
    e("s_add_u32 s63, s63, s67")
    e("s_and_b32 s64, s61, 1")
    e("s_lshl_b32 s64, s64, 3")
    e("s_and_b32 s66, s62, 7")
    e("s_add_u32 s64, s64, s66")
    e("s_lshl_b32 s65, s61, 2")
    e("s_add_u32 s65, s65, s67")
    SB = 14336
    srd(36, P_X, 0x200000)
    e("s_lshl_b32 s67, s2, 13")
    e("s_lshl_b32 s68, s60, 11")
    e("s_add_u32 s67, s67, s68")
    e("buffer_load_dwordx4 v[64:67], v2, s[36:39], s67 offen")
    e("buffer_load_dwordx4 v[68:71], v2, s[36:39], s67 offen offset:1024")
    vm.add("x", 2)
    srd(40, P_W1, 512 * 1792 * 2)
    srd(44, P_WS, XNF_SZ, XNF_OFF)
    srd(48, P_WS, XNB_SZ, XNB_OFF)
    srd(52, P_WS, FL_SZ, FL_OFF)
    srd(56, P_B2, 1024)
    e("s_mul_i32 s70, s60, 224")
    e("s_mov_b32 s72, 4682")
    for q in range(4):
        e(f"v_add_u32 v{60+q}, s70, v1")
        if q:
            e(f"v_add_u32 v{60+q}, {64*q}, v{60+q}")
        e(f"v_mul_lo_u32 v230, v{60+q}, s72")
        e("v_lshrrev_b32 v230, 16, v230")
        e("v_mul_u32_u24 v231, 14, v230")
        e(f"v_sub_u32 v231, v{60+q}, v231")
        e("v_mul_u32_u24 v230, 3584, v230")
        e(f"v_lshl_add_u32 v{60+q}, v231, 4, v230")
    e("s_mul_i32 s61, s64, 224")
    e("s_mul_i32 s62, s60, 3584")
    e("s_mov_b32 s72, 0xffff0000")
    ROT = os.environ.get("ROT")
    def dma(s, buf):
        if ROT:
            e(f"s_add_u32 s68, s66, {s}")
            e("s_and_b32 s68, s68, 7")
            e(f"s_mul_i32 s68, s68, {64*3584}")
            e("s_add_u32 s68, s68, s61")
        else:
            e(f"s_add_u32 s68, s61, {s*64*3584}")
        for q in range(4):
            e(f"s_add_u32 s70, s62, {buf*SB + q*1024}")
            e("s_mov_b32 m0, s70")
            if q == 3:
                e("s_mov_b32 exec_hi, 0")
            else:
                e("s_nop 0")
            e(f"buffer_load_dwordx4 v{60+q}, s[40:43], s68 offen lds")
        e("s_mov_b64 exec, -1")
        vm.add(("D", s), 4)
    def bload(s):
        R = 64 + 16 * (s % 6)
        if ROT:
            e(f"s_add_u32 s70, s66, {s}")
            e("s_and_b32 s70, s70, 7")
            e("s_lshl_b32 s70, s70, 11")
            e("s_add_u32 s70, s70, s73")
            e("s_add_u32 s71, s70, 16384")
        else:
            e(f"s_add_u32 s70, s73, {s*2048}")
            e(f"s_add_u32 s71, s73, {s*2048 + 16384}")
        for j in range(2):
            for k in range(2):
                r = R + 8 * j + 4 * k
                e(f"buffer_load_dwordx4 v[{r}:{r+3}], v2, s[44:47], s{70 if j == 0 else 71} offen offset:{1024*k}{LSC}")
        vm.add(("B", s), 4)
    ED = int(os.environ.get("ED", "2"))
    for s in range(ED):
        dma(s, s)
    srd(36, P_B1, 1792 * 2)
    e("v_lshrrev_b32 v235, 4, v1")
    e("v_lshlrev_b32 v235, 3, v235")
    for i in range(7):
        e(f"buffer_load_dwordx2 v[{216+2*i}:{217+2*i}], v235, s[36:39], s61 offen offset:{32*i}")
    vm.add("b1", 7)
    LT = 4 * SB; LP = 1040; T2 = LT + 8 * LP
    e(f"s_mov_b32 s73, {f2u(1.0/512)}")
    stamp()
    vm.wait("x")
    stamp()
    for i in range(2):
        for j in range(4):
            e(f"v_lshlrev_b32 v{72+8*i+2*j}, 16, v{64+4*i+j}")
            e(f"v_and_b32 v{73+8*i+2*j}, s72, v{64+4*i+j}")
    for i in range(2):
        b = 72 + 8 * i; t = 88 + 4 * i
        e(f"v_pk_add_f32 v[{t}:{t+1}], v[{b}:{b+1}], v[{b+2}:{b+3}]")
        e(f"v_pk_add_f32 v[{t+2}:{t+3}], v[{b+4}:{b+5}], v[{b+6}:{b+7}]")
    for i in range(2):
        t = 88 + 4 * i
        e(f"v_pk_add_f32 v[{t}:{t+1}], v[{t}:{t+1}], v[{t+2}:{t+3}]")
    for i in range(2):
        t = 88 + 4 * i
        e(f"v_add_f32 v{t}, v{t}, v{t+1}")
    dpp_reduce([88, 92], "v_add_f32")
    e("v_readlane_b32 s70, v88, 63")
    e("v_readlane_b32 s71, v92, 63")
    e("v_mov_b32 v90, s73")
    e("s_nop 0")
    e("v_mul_f32 v89, s70, v90")
    e("v_mul_f32 v93, s71, v90")
    for i in range(2):
        b = 72 + 8 * i; m = 88 + 4 * i; d = 96 + 8 * i
        for j in range(4):
            e(f"v_pk_add_f32 v[{d+2*j}:{d+2*j+1}], v[{b+2*j}:{b+2*j+1}], v[{m}:{m+1}] op_sel:[0,1] op_sel_hi:[1,1] neg_lo:[0,1] neg_hi:[0,1]")
    for i in range(2):
        d = 96 + 8 * i; t = 112 + 2 * i
        e(f"v_pk_mul_f32 v[{t}:{t+1}], v[{d}:{d+1}], v[{d}:{d+1}]")
    for j in range(1, 4):
        for i in range(2):
            d = 96 + 8 * i; t = 112 + 2 * i
            e(f"v_pk_fma_f32 v[{t}:{t+1}], v[{d+2*j}:{d+2*j+1}], v[{d+2*j}:{d+2*j+1}], v[{t}:{t+1}]")
    e("v_add_f32 v112, v112, v113")
    e("v_add_f32 v114, v114, v115")
    dpp_reduce([112, 114], "v_add_f32")
    e("v_readlane_b32 s70, v112, 63")
    e("v_readlane_b32 s71, v114, 63")
    e(f"s_mov_b32 s73, {f2u(1e-5)}")
    e("v_cvt_pk_bf16_f32 v116, v89, v93")
    e("v_mul_f32 v112, s70, v90")
    e("v_mul_f32 v113, s71, v90")
    e("v_lshlrev_b32 v89, 16, v116")
    e("v_and_b32 v93, s72, v116")
    def rnd2(a, b):
        e(f"v_cvt_pk_bf16_f32 v116, v{a}, v{b}")
        e(f"v_lshlrev_b32 v{a}, 16, v116")
        e(f"v_and_b32 v{b}, s72, v116")
    rnd2(112, 113)
    e("v_add_f32 v112, s73, v112")
    e("v_add_f32 v113, s73, v113")
    rnd2(112, 113)
    e("v_sqrt_f32 v112, v112")
    e("v_sqrt_f32 v113, v113")
    e("s_nop 0")
    rnd2(112, 113)
    e("v_rcp_f32 v91, v112")
    e("v_rcp_f32 v95, v113")
    e("s_nop 0")
    e("v_fma_f32 v114, -v112, v91, 1.0")
    e("v_fma_f32 v115, -v113, v95, 1.0")
    e("v_fmac_f32 v91, v91, v114")
    e("v_fmac_f32 v95, v95, v115")
    for i in range(2):
        b = 72 + 8 * i; m = 88 + 4 * i; d = 96 + 8 * i; P = 64 + 4 * i; H = 120 + 4 * i
        for j in range(4):
            e(f"v_pk_add_f32 v[{d+2*j}:{d+2*j+1}], v[{b+2*j}:{b+2*j+1}], v[{m}:{m+1}] op_sel:[0,1] op_sel_hi:[1,1] neg_lo:[0,1] neg_hi:[0,1]")
        for j in range(4):
            e(f"v_cvt_pk_bf16_f32 v{P+j}, v{d+2*j}, v{d+2*j+1}")
        for j in range(4):
            e(f"v_lshlrev_b32 v{d+2*j}, 16, v{P+j}")
            e(f"v_and_b32 v{d+2*j+1}, s72, v{P+j}")
        for j in range(4):
            e(f"v_pk_mul_f32 v[{d+2*j}:{d+2*j+1}], v[{d+2*j}:{d+2*j+1}], v[{m+2}:{m+3}] op_sel:[0,1] op_sel_hi:[1,1]")
        for j in range(4):
            e(f"v_cvt_pk_bf16_f32 v{P+j}, v{d+2*j}, v{d+2*j+1}")
        for j in range(4):
            e(f"v_lshlrev_b32 v{d+2*j}, 16, v{P+j}")
            e(f"v_and_b32 v{d+2*j+1}, s72, v{P+j}")
        for j in range(4):
            e(f"v_cvt_pk_f16_f32 v{H+j}, v{d+2*j}, v{d+2*j+1}")
    e(f"s_mul_i32 s70, s60, {2*LP}")
    e(f"s_add_u32 s70, s70, {LT}")
    e("v_add_u32 v230, s70, v2")
    for i in range(2):
        e(f"ds_write_b128 v230, v[{64+4*i}:{67+4*i}] offset:{LP*i}")
        e(f"ds_write_b128 v230, v[{120+4*i}:{123+4*i}] offset:{T2 - LT + LP*i}")
    stamp()
    e("s_waitcnt lgkmcnt(0)")
    nonce()
    e("s_barrier")
    e("s_cmp_ge_u32 s60, 2")
    e(f"s_cbranch_scc1 {px}_LNB")
    e("v_and_b32 v230, 7, v1")
    e("v_lshrrev_b32 v231, 5, v1")
    e("v_bfe_u32 v232, v1, 3, 2")
    e(f"v_mul_u32_u24 v233, {LP}, v230")
    e("v_lshl_add_u32 v233, v231, 6, v233")
    e("v_lshl_add_u32 v233, v232, 3, v233")
    e("s_lshl_b32 s70, s60, 9")
    e("v_add_u32 v233, s70, v233")
    e("v_lshlrev_b32 v234, 10, v231")
    e("v_lshl_add_u32 v234, v232, 8, v234")
    e("v_lshl_add_u32 v234, v230, 4, v234")
    for q in range(4):
        e(f"ds_read_b64 v[{64+4*q}:{65+4*q}], v233 offset:{LT + 128*q}")
        e(f"ds_read_b64 v[{66+4*q}:{67+4*q}], v233 offset:{LT + 128*q + 32}")
    e("s_lshr_b32 s70, s2, 1")
    e("s_lshl_b32 s70, s70, 14")
    e("s_and_b32 s71, s2, 1")
    e("s_lshl_b32 s71, s71, 7")
    e("s_add_u32 s70, s70, s71")
    e("s_lshl_b32 s71, s60, 13")
    e("s_add_u32 s70, s70, s71")
    for q in range(4):
        e(f"s_waitcnt lgkmcnt({6-2*q})")
        if q == 2:
            e("s_add_u32 s70, s70, 4096")
        e(f"buffer_store_dwordx4 v[{64+4*q}:{67+4*q}], v234, s[44:47], s70 offen offset:{2048*(q&1)} sc1")
    e(f"s_branch {px}_LNJ")
    lab(f"{px}_LNB")
    e("v_lshrrev_b32 v230, 4, v1")
    e("v_bfe_u32 v231, v1, 2, 2")
    e("v_and_b32 v232, 3, v1")
    e("v_sub_u32 v231, 3, v231")
    e(f"v_mul_u32_u24 v233, {LP}, v231")
    e("v_lshl_add_u32 v233, v230, 5, v233")
    e("v_lshl_add_u32 v233, v232, 3, v233")
    e("s_sub_u32 s71, s60, 2")
    e("s_lshl_b32 s70, s71, 9")
    e(f"s_add_u32 s70, s70, {T2}")
    e("v_add_u32 v233, s70, v233")
    for q in range(4):
        e(f"ds_read_b64_tr_b16 v[{64+4*q}:{65+4*q}], v233 offset:{4*LP + 128*q}")
        e(f"ds_read_b64_tr_b16 v[{66+4*q}:{67+4*q}], v233 offset:{128*q}")
    e("s_lshl_b32 s70, s2, 13")
    e("s_lshl_b32 s71, s71, 12")
    e("s_add_u32 s70, s70, s71")
    for q in range(4):
        e(f"s_waitcnt lgkmcnt({6-2*q})")
        e(f"buffer_store_dwordx4 v[{64+4*q}:{67+4*q}], v2, s[48:51], s70 offen offset:{1024*q} sc1")
    lab(f"{px}_LNJ")
    stamp()
    e("s_waitcnt vmcnt(0)")
    vm.drained()
    e("s_barrier")
    stamp()
    def c_():
        e("s_lshl_b32 s70, s2, 2")
    publish(px, "LNF", c_, 230)
    lab(f"{px}_LNF")
    for s in range(ED, 5):
        dma(s, s)
    for i in range(7):
        for j in range(2):
            a = 4 + 8 * i + 4 * j
            e(f"v_lshlrev_b32 v{a}, 16, v{216+2*i}")
            e(f"v_and_b32 v{a+1}, s72, v{216+2*i}")
            e(f"v_lshlrev_b32 v{a+2}, 16, v{217+2*i}")
            e(f"v_and_b32 v{a+3}, s72, v{217+2*i}")
    e("v_lshrrev_b32 v230, 2, v1")
    e("v_mul_u32_u24 v3, 224, v230")
    e("v_and_b32 v230, 3, v1")
    e("v_lshl_add_u32 v3, v230, 3, v3")
    e("v_add_u32 v248, 0x8000, v3")
    e("v_lshlrev_b32 v245, 2, v1")
    e("s_lshl_b32 s67, s63, 3")
    e("s_lshl_b32 s70, s60, 1")
    e("s_add_u32 s67, s67, s70")
    e("s_lshl_b32 s73, s67, 14")
    srd(48, P_X, 0x200000)
    stamp()
    e("s_cmp_eq_u32 s60, 0")
    e(f"s_cbranch_scc0 {px}_W1")
    e("s_lshl_b32 s70, s63, 6")
    poll(52, 245, "s70", 16, 230, px, sleep=2)
    lab(f"{px}_W1")
    e("s_barrier")
    stamp()
    for s in range(4):
        bload(s)
    def xloads():
        e("v_lshrrev_b32 v231, 3, v1")
        e("v_and_b32 v232, 7, v1")
        e("v_lshlrev_b32 v233, 10, v231")
        e("v_lshl_add_u32 v233, v232, 4, v233")
        e("v_lshlrev_b32 v249, 12, v231")
        e("v_lshl_add_u32 v249, v232, 4, v249")
        e("s_lshl_b32 s70, s65, 16")
        e("s_lshl_b32 s71, s60, 14")
        e("s_add_u32 s70, s70, s71")
        e("s_lshl_b32 s71, s66, 7")
        e("s_add_u32 s70, s70, s71")
        e("s_lshl_b32 s71, s60, 11")
        e(f"s_add_u32 s71, s71, 73728")
        for q in range(2):
            e("s_mov_b32 m0, s71")
            e("s_nop 0")
            e("buffer_load_dwordx4 v233, s[48:51], s70 offen lds")
            if q == 0:
                e("s_add_u32 s70, s70, 8192")
                e("s_add_u32 s71, s71, 1024")
        vm.add("xt", 2)
        e("s_lshl_b32 s70, s66, 7")
        for i in range(4):
            e(f"buffer_load_dwordx2 v[{236+2*i}:{237+2*i}], v235, s[56:59], s70 offen offset:{32*i}")
        vm.add("b2", 4)
    AR = [160, 188]
    def lds_a_list(u):
        s, ksl = u >> 1, u & 1
        dst = AR[u & 1]
        out = []
        for i in range(7):
            for e2 in range(2):
                off = (s % 5)*SB + (32*ksl+16*e2)*224 + 32*i
                if off >= 0x8000:
                    out.append(f"ds_read_b64_tr_b16 v[{dst+4*i+2*e2}:{dst+4*i+2*e2+1}], v248 offset:{off - 0x8000}")
                else:
                    out.append(f"ds_read_b64_tr_b16 v[{dst+4*i+2*e2}:{dst+4*i+2*e2+1}], v3 offset:{off}")
        return out
    vm.wait(("D", 0), ("B", 0))
    e("s_barrier")
    stamp()
    for x in lds_a_list(0): e(x)
    for u in range(16):
        nxt = []
        if u + 1 < 16:
            if (u + 1) % 2 == 0:
                sn = (u + 1) >> 1
                if FINE and sn in (3, 5): stamp()
                vm.wait(("D", sn), ("B", sn))
                if FINE and sn in (3, 5): stamp()
                e("s_barrier")
                if sn == 4 or (FINE and sn in (3, 5)): stamp()
            nxt = lds_a_list(u + 1)
        e("s_waitcnt lgkmcnt(0)")
        s, ksl = u >> 1, u & 1
        R = 64 + 16 * (s % 6)
        A = AR[u & 1]
        for i in range(7):
            for j in range(2):
                a = 4 + 8 * i + 4 * j
                b = R + 8 * j + 4 * ksl
                e(f"v_mfma_f32_16x16x32_bf16 v[{a}:{a+3}], v[{A+4*i}:{A+4*i+3}], v[{b}:{b+3}], v[{a}:{a+3}]")
                if nxt: e(nxt.pop(0))
        if u % 2 == 1:
            sn = (u + 1) >> 1
            if sn >= 2 and sn + 3 < 8:
                dma(sn + 3, (sn + 3) % 5)
            if sn + 3 < 8:
                bload(sn + 3)
            if sn == 5:
                xloads()
    vm.drained()
    stamp()
    if os.environ.get("DEFER"):
        def c_():
            e("s_lshl_b32 s70, s2, 2")
            e(f"s_add_u32 s70, s70, {HINT}")
        publish(px, "HN", c_, 230)
        lab(f"{px}_HN")
    srd(36, P_WS, W2F_SZ, W2F_OFF)
    srd(40, P_WS, HF_SZ, HF_OFF)
    srd(44, P_WS, ST_SZ, ST_OFF)
    srd(48, P_OUT, 0x200000)
    NA, NB = 6, 4
    AREG = [68 + 16 * k for k in range(NA)]
    BREG = [164 + 16 * k for k in range(NB)]
    LA0, LA1 = NA, NA + 4
    def g2load(kind, k):
        fbl, q = k >> 2, k & 3
        R = (AREG[k % NA] if kind == "A" else BREG[k % NB])
        sr = 36 if kind == "A" else 40
        base = 68 if kind == "A" else 69
        sc = LSC
        e(f"s_add_u32 s70, s{base}, {fbl*14336 + q*4096}")
        for i in range(4):
            if q < 3:
                e(f"buffer_load_dwordx4 v[{R+4*i}:{R+4*i+3}], v2, s[{sr}:{sr+3}], s70 offen offset:{1024*i}{sc}")
            else:
                e(f"buffer_load_dwordx2 v[{R+4*i}:{R+4*i+1}], v244, s[{sr}:{sr+3}], s70 offen offset:{512*i}{sc}")
        vm.add((kind, k), 4)
    def g2dma(k):
        fbl, q = k >> 2, k & 3
        e(f"s_add_u32 s70, s68, {fbl*14336 + q*4096}")
        e(f"s_add_u32 s71, s35, {(k-LA0)*4096}")
        e("s_mov_b32 m0, s71")
        e("s_nop 0")
        n = 4 if q < 3 else 2
        for i in range(n):
            e(f"buffer_load_dwordx4 v2, s[36:39], s70 offen offset:{1024*i}{LSC} lds")
        vm.add(("L", k), n)
    def g2ldsread(k):
        q = k & 3
        R = AREG[k % NA]
        for i in range(4):
            if q < 3:
                e(f"ds_read_b128 v[{R+4*i}:{R+4*i+3}], v246 offset:{(k-LA0)*4096 + 1024*i}")
            else:
                e(f"ds_read_b64 v[{R+4*i}:{R+4*i+1}], v247 offset:{(k-LA0)*4096 + 512*i}")
    e("v_lshlrev_b32 v244, 3, v1")
    e("v_lshlrev_b32 v245, 2, v1")
    e("s_lshl_b32 s70, s66, 4")
    e("s_lshl_b32 s71, s60, 2")
    e("s_add_u32 s70, s70, s71")
    e("s_mul_i32 s68, s70, 14336")
    e("s_lshl_b32 s70, s65, 4")
    e("s_add_u32 s70, s70, s71")
    e("s_mul_i32 s69, s70, 14336")
    e(f"s_mov_b32 s74, {f2u(-GC2)}")
    e(f"s_mov_b32 s75, {f2u(-GC2)}")
    e(f"v_mov_b32 v246, {f2u(-GC1)}")
    e(f"v_mov_b32 v247, {f2u(-GC1)}")
    e("s_lshr_b32 s70, s67, 2")
    e("s_lshl_b32 s70, s70, 4")
    e("s_add_u32 s70, s70, s64")
    e("s_mul_i32 s70, s70, 14336")
    e("s_and_b32 s71, s67, 3")
    e("s_lshl_b32 s73, s71, 9")
    e("s_add_u32 s73, s73, s70")
    e("s_add_u32 s73, s73, 12288")
    e("s_lshl_b32 s71, s71, 10")
    e("s_add_u32 s70, s70, s71")
    def gelu_pairs(pairs, outs):
        T = [164 + 2 * k for k in range(len(pairs))]
        for a, t in zip(pairs, T):
            e(f"v_pk_mul_f32 v[{t}:{t+1}], v[{a}:{a+1}], v[{a}:{a+1}]")
        for a, t in zip(pairs, T):
            e(f"v_pk_fma_f32 v[{t}:{t+1}], v[{t}:{t+1}], s[74:75], v[246:247]")
        for a, t in zip(pairs, T):
            e(f"v_pk_mul_f32 v[{t}:{t+1}], v[{a}:{a+1}], v[{t}:{t+1}]")
        for t in T:
            e(f"v_exp_f32 v{t}, v{t}")
            e(f"v_exp_f32 v{t+1}, v{t+1}")
        e("s_nop 0")
        for t in T:
            e(f"v_pk_add_f32 v[{t}:{t+1}], v[{t}:{t+1}], 1.0 op_sel_hi:[1,0]")
        for t in T:
            e(f"v_rcp_f32 v{t}, v{t}")
            e(f"v_rcp_f32 v{t+1}, v{t+1}")
        e("s_nop 0")
        for a, t in zip(pairs, T):
            e(f"v_pk_mul_f32 v[{t}:{t+1}], v[{a}:{a+1}], v[{t}:{t+1}]")
        for t, o in zip(T, outs):
            e(f"v_cvt_pk_bf16_f32 v{o}, v{t}, v{t+1}")
    cnt = 0
    for q in range(3):
        for j in range(2):
            a0 = 4 + 8 * (2 * q) + 4 * j; a1 = 4 + 8 * (2 * q + 1) + 4 * j
            O = 176 + 4 * (cnt % 8); cnt += 1
            gelu_pairs([a0, a0 + 2, a1, a1 + 2], [O, O + 1, O + 2, O + 3])
            e(f"buffer_store_dwordx4 v[{O}:{O+3}], v2, s[40:43], s70 offen offset:{1024*j} sc1")
        if q < 2:
            e("s_add_u32 s70, s70, 4096")
    a0 = 4 + 48; a1 = 4 + 48 + 4
    O = 176 + 4 * (cnt % 8)
    gelu_pairs([a0, a0 + 2, a1, a1 + 2], [O, O + 1, O + 2, O + 3])
    e(f"buffer_store_dwordx2 v[{O}:{O+1}], v244, s[40:43], s73 offen sc1")
    e(f"buffer_store_dwordx2 v[{O+2}:{O+3}], v244, s[40:43], s73 offen offset:512 sc1")
    stamp()
    e("s_waitcnt vmcnt(0)")
    e("s_barrier")
    stamp()
    def c_():
        e("s_lshl_b32 s70, s63, 5")
        e("s_add_u32 s70, s70, s64")
        e("s_lshl_b32 s70, s70, 2")
        e(f"s_add_u32 s70, s70, {HFL}")
    publish(px, "HF", c_, 230)
    lab(f"{px}_HF")
    e("s_lshl_b32 s70, s66, 7")
    e(f"s_add_u32 s70, s70, {RFL}")
    poll(52, 245, "s70", 32, 230, px)
    e("s_lshl_b32 s35, s60, 14")
    e("v_add_u32 v246, s35, v2")
    e("v_add_u32 v247, s35, v244")
    e("s_cmp_eq_u32 s60, 0")
    e(f"s_cbranch_scc0 {px}_HW")
    e("s_lshr_b32 s70, s65, 1")
    e("s_lshl_b32 s70, s70, 7")
    e(f"s_add_u32 s70, s70, {HFL}")
    poll(52, 245, "s70", 16, 230, px, sleep=2)
    lab(f"{px}_HW")
    for k in range(NA):
        g2load("A", k)
    for k in range(LA0, LA1):
        g2dma(k)
    for i in range(64):
        e(f"v_mov_b32 v{4+i}, 0")
    e("s_barrier")
    stamp()
    for k in range(NB):
        g2load("B", k)
    for k in range(16):
        vm.wait(("A", k), ("B", k))
        if LA0 <= k < LA1:
            e("s_waitcnt lgkmcnt(0)")
        if k in (0, 8): stamp()
        q = k & 3
        A = AREG[k % NA]; B = BREG[k % NB]
        for i in range(4):
            for j in range(4):
                a = 4 + 16 * j + 4 * i
                if q < 3:
                    e(f"v_mfma_f32_16x16x32_bf16 v[{a}:{a+3}], v[{A+4*i}:{A+4*i+3}], v[{B+4*j}:{B+4*j+3}], v[{a}:{a+3}]")
                else:
                    e(f"v_mfma_f32_16x16x16_bf16 v[{a}:{a+3}], v[{A+4*i}:{A+4*i+1}], v[{B+4*j}:{B+4*j+1}], v[{a}:{a+3}]")
        if k + NB < 16:
            g2load("B", k + NB)
        if k + NA < 16:
            if LA0 <= k + NA < LA1:
                g2ldsread(k + NA)
            else:
                g2load("A", k + NA)
    vm.drained()
    stamp()
    e("s_cmp_eq_u32 s60, 0")
    e(f"s_cbranch_scc0 {px}_SW")
    e("s_lshl_b32 s70, s66, 7")
    e(f"s_add_u32 s70, s70, {SFL}")
    poll(52, 245, "s70", 32, 230, px)
    lab(f"{px}_SW")
    e("s_barrier")
    e("s_lshl_b32 s70, s66, 18")
    e("s_lshl_b32 s71, s60, 16")
    e("s_add_u32 s70, s70, s71")
    e("s_lshl_b32 s71, s65, 7")
    e("s_add_u32 s70, s70, s71")
    e("s_lshl_b32 s71, s60, 11")
    e("s_add_u32 s71, s71, 65536")
    for q in range(2):
        e("s_mov_b32 m0, s71")
        e("s_nop 0")
        e(f"buffer_load_dwordx4 v249, s[44:47], s70 offen{LSC} lds")
        if q == 0:
            e("s_add_u32 s70, s70, 32768")
            e("s_add_u32 s71, s71, 1024")
    for j in range(4):
        for i in range(4):
            a = 4 + 16 * j + 4 * i
            e(f"ds_write_b128 v246, v[{a}:{a+3}] offset:{(4*j+i)*1024}")
    e("v_and_b32 v230, 15, v1")
    e("v_lshrrev_b32 v231, 4, v1")
    e("s_lshl_b32 s71, s60, 4")
    e("v_add_u32 v232, s71, v230")
    e("v_lshlrev_b32 v234, 7, v232")
    e("v_lshl_add_u32 v234, v231, 3, v234")
    e("v_add_u32 v234, 0x12000, v234")
    e("v_lshlrev_b32 v235, 9, v231")
    e("v_lshl_add_u32 v235, v232, 1, v235")
    e("v_add_u32 v235, 0x10000, v235")
    e("s_lshl_b32 s70, s65, 6")
    e("v_add_u32 v232, s70, v232")
    e("v_lshlrev_b32 v233, 10, v232")
    e("v_lshl_add_u32 v233, v231, 3, v233")
    e("s_lshl_b32 s73, s66, 7")
    e("s_lshl_b32 s70, s60, 12")
    e("v_add_u32 v246, s70, v2")
    e(f"s_mov_b32 s74, {f2u(-LOG2E)}")
    e("s_waitcnt vmcnt(0) lgkmcnt(0)")
    e("s_barrier")
    stamp()
    for ww in range(4):
        for i in range(4):
            r = 68 + 16 * ww + 4 * i
            e(f"ds_read_b128 v[{r}:{r+3}], v246 offset:{ww*16384 + i*1024}")
    e("s_waitcnt lgkmcnt(8)")
    for i in range(4):
        e(f"ds_read_b64 v[{132+2*i}:{133+2*i}], v234 offset:{32*i}")
    for q in range(8):
        e(f"v_pk_add_f32 v[{68+2*q}:{69+2*q}], v[{68+2*q}:{69+2*q}], v[{84+2*q}:{85+2*q}]")
    e("s_waitcnt lgkmcnt(4)")
    for i in range(4):
        for r in range(4):
            if i < 2:
                e(f"ds_read_u16 v{148+4*i+r}, v235 offset:{(16*i+r)*128}")
    for q in range(8):
        e(f"v_pk_add_f32 v[{100+2*q}:{101+2*q}], v[{100+2*q}:{101+2*q}], v[{116+2*q}:{117+2*q}]")
    for q in range(8):
        e(f"v_pk_add_f32 v[{68+2*q}:{69+2*q}], v[{68+2*q}:{69+2*q}], v[{100+2*q}:{101+2*q}]")
    e("s_waitcnt lgkmcnt(4)")
    for i in range(2, 4):
        for r in range(4):
            e(f"ds_read_u16 v{148+4*i+r}, v235 offset:{(16*i+r)*128}")
    def rnd(a, n, T):
        for k in range(n // 2):
            e(f"v_cvt_pk_bf16_f32 v{T+k}, v{a+2*k}, v{a+2*k+1}")
        for k in range(n // 2):
            e(f"v_lshlrev_b32 v{a+2*k}, 16, v{T+k}")
            e(f"v_and_b32 v{a+2*k+1}, s72, v{T+k}")
    def unp(dst, src, n):
        for k in range(n // 2):
            e(f"v_lshlrev_b32 v{dst+2*k}, 16, v{src+k}")
            e(f"v_and_b32 v{dst+2*k+1}, s72, v{src+k}")
    a = 68
    rnd(a, 16, 4)
    unp(16, 236, 16)
    for k in range(8):
        e(f"v_pk_add_f32 v[{a+2*k}:{a+2*k+1}], v[{a+2*k}:{a+2*k+1}], v[{16+2*k}:{17+2*k}]")
    rnd(a, 16, 4)
    for r in range(16):
        e(f"v_mul_f32 v{16+r}, s74, v{a+r}")
    for r in range(16):
        e(f"v_exp_f32 v{16+r}, v{16+r}")
    for k in range(8):
        e(f"v_pk_add_f32 v[{16+2*k}:{17+2*k}], v[{16+2*k}:{17+2*k}], 1.0 op_sel_hi:[1,0]")
    for r in range(16):
        e(f"v_rcp_f32 v{16+r}, v{16+r}")
    for k in range(8):
        e(f"v_pk_mul_f32 v[{a+2*k}:{a+2*k+1}], v[{a+2*k}:{a+2*k+1}], v[{16+2*k}:{17+2*k}]")
    rnd(a, 16, 4)
    e("s_waitcnt lgkmcnt(0)")
    for r in range(16):
        e(f"v_lshlrev_b32 v{16+r}, 16, v{148+r}")
    for k in range(8):
        e(f"v_pk_mul_f32 v[{a+2*k}:{a+2*k+1}], v[{a+2*k}:{a+2*k+1}], v[{16+2*k}:{17+2*k}]")
    rnd(a, 16, 4)
    unp(16, 132, 16)
    for k in range(8):
        e(f"v_pk_add_f32 v[{a+2*k}:{a+2*k+1}], v[{a+2*k}:{a+2*k+1}], v[{16+2*k}:{17+2*k}]")
    for k in range(8):
        e(f"v_cvt_pk_bf16_f32 v{32+k}, v{a+2*k}, v{a+2*k+1}")
    for i in range(4):
        e(f"buffer_store_dwordx2 v[{32+2*i}:{33+2*i}], v233, s[48:51], s73 offen offset:{32*i}")
    if STAMP:
        stamp()
        e("s_waitcnt vmcnt(0)")
    stamp_flush()
    e("s_endpgm")


def gen_C(px, rep=True, kc=True, waits='LH'):
    CH = 38400; CS = 4160; KB = 8 * CS
    SL = " sc1" if "L" in waits else ""
    SH = " sc1" if "H" in waits else ""
    stamp(True)
    e("s_sub_u32 s61, s2, 256")
    e("s_and_b32 s62, s61, 7")
    e("s_lshr_b32 s61, s61, 3")
    e("s_lshl_b32 s62, s62, 5")
    e("s_add_u32 s61, s61, s62")
    e("s_lshr_b32 s62, s60, 1")
    e("s_and_b32 s63, s60, 1")
    e("s_lshl_b32 s64, s61, 1")
    e("s_add_u32 s64, s64, s62")
    e(f"s_mul_i32 s65, s62, {CH}")
    e("v_and_b32 v6, 15, v1")
    e("v_lshrrev_b32 v7, 4, v1")
    srd(36, P_W2, 512 * 1792 * 2)
    srd(40, P_WS, W2F_SZ, W2F_OFF)
    srd(44, P_WS, XNB_SZ, XNB_OFF)
    srd(48, P_WS, ST_SZ, ST_OFF)
    srd(52, P_WS, FL_SZ, FL_OFF)
    e("s_mov_b32 s72, 0xffff0000")
    def uloads():
        e("s_lshl_b32 s70, s63, 7")
        e("v_add_u32 v34, s70, v1")
        e("v_sub_u32 v35, 255, v34")
        e("v_lshlrev_b32 v35, 13, v35")
        e("s_lshl_b32 s70, s64, 4")
        e("v_add_u32 v35, s70, v35")
        e("v_subrev_u32 v36, 0x2000, v35")
        e("v_subrev_u32 v37, 0x80000, v35")
        e("v_subrev_u32 v38, 0x82000, v35")
        e(f"buffer_load_dwordx4 v[168:171], v35, s[44:47], 0 offen{LSC}")
        e(f"buffer_load_dwordx4 v[172:175], v36, s[44:47], 0 offen{LSC}")
        e(f"buffer_load_dwordx4 v[176:179], v37, s[44:47], 0 offen{LSC}")
        e(f"buffer_load_dwordx4 v[180:183], v38, s[44:47], 0 offen{LSC}")
    if kc:
        e("s_lshl_b32 s66, s64, 8")
        e("s_lshl_b32 s67, s63, 7")
        e("s_add_u32 s66, s66, s67")
        e("v_lshl_add_u32 v8, v1, 1, s66")
        e("s_lshl_b32 s67, s64, 1")
        e("v_mov_b32 v9, s67")
        e(f"global_load_ushort v10, v8, s[{P_LAR}:{P_LAR+1}]")
        e(f"global_load_ushort v11, v8, s[{P_AIM}:{P_AIM+1}]")
        e(f"global_load_ushort v12, v8, s[{P_CR}:{P_CR+1}]")
        e(f"global_load_ushort v13, v8, s[{P_CI}:{P_CI+1}]")
        e(f"global_load_ushort v14, v9, s[{P_LDT}:{P_LDT+1}]")
        e(f"global_load_ushort v15, v9, s[{P_DSK}:{P_DSK+1}]")
        if "L" not in waits:
            uloads()
    def rep_loads():
        e("s_lshr_b32 s66, s64, 4")
        e("s_and_b32 s67, s64, 15")
        e("v_lshlrev_b32 v16, 12, v7")
        e("v_lshl_add_u32 v16, v6, 1, v16")
        e(f"s_mul_i32 s68, s67, {112*1024}")
        e("s_lshl_b32 s69, s66, 5")
        e("s_add_u32 s68, s68, s69")
        e("s_lshl_b32 s69, s63, 16")
        e("s_add_u32 s68, s68, s69")
        for k in range(4):
            e(f"s_add_u32 s{73}, s68, {k*16384}")
            for el in range(4):
                e(f"buffer_load_ushort v{200+4*k+el}, v16, s[36:39], s73 offen offset:{1024*el}")
    if rep and not kc:
        e("s_sub_u32 s35, s2, 256")
        e("s_lshl_b32 s35, s35, 2")
        e("s_add_u32 s35, s35, s60")
        e("s_cmp_ge_u32 s35, 896")
        e(f"s_cbranch_scc1 {px}_W1L")
        srd(44, P_W1, 512 * 1792 * 2)
        e(f"v_mul_u32_u24 v18, {4*3584}, v7")
        e("v_lshl_add_u32 v18, v6, 1, v18")
        for k in range(2):
            e("s_lshl_b32 s67, s35, 1")
            if k: e("s_add_u32 s67, s67, 1")
            e("s_mul_i32 s68, s67, 9363")
            e("s_lshr_b32 s68, s68, 16")
            e("s_mul_i32 s69, s68, 7")
            e("s_sub_u32 s69, s67, s69")
            e("s_lshr_b32 s70, s68, 4")
            e("s_and_b32 s68, s68, 15")
            e("s_mul_i32 s70, s70, 7")
            e("s_add_u32 s70, s70, s69")
            e("s_lshl_b32 s70, s70, 5")
            e(f"s_mul_i32 s68, s68, {32*3584}")
            e("s_add_u32 s70, s70, s68")
            for ee in range(8):
                e(f"s_add_u32 s71, s70, {(16*(ee>>2) + (ee&3))*3584}")
                e(f"buffer_load_ushort v{100+8*k+ee}, v18, s[44:47], s71 offen")
        lab(f"{px}_W1L")
    if kc:
        for i in range(8):
            d = 230 + i
            e("v_lshlrev_b32 v17, 3, v0")
            if i:
                e(f"v_add_u32 v17, {i}, v17")
            e("v_cvt_f32_u32 v17, v17")
            e("v_cvt_pk_bf16_f32 v17, v17, v17")
            e("v_lshlrev_b32 v17, 16, v17")
            e("v_cvt_u32_f32 v18, v17")
            e("v_lshrrev_b32 v17, 23, v17")
            e("v_subrev_u32 v17, 134, v17")
            e("v_med3_i32 v17, v17, 0, 3")
            e("v_lshrrev_b32 v19, 7, v18")
            e("v_and_b32 v20, 7, v18")
            e("v_lshl_add_u32 v19, v19, 3, v20")
            e("v_lshrrev_b32 v19, v17, v19")
            e("v_lshl_add_u32 v19, v17, 3, v19")
            e("v_bfe_u32 v20, v18, 3, 4")
            e("v_lshrrev_b32 v21, 4, v19")
            e("v_and_b32 v19, 15, v19")
            e("v_lshl_add_u32 v20, v21, 4, v20")
            e("v_lshl_add_u32 v19, v20, 4, v19")
            e(f"v_lshlrev_b32 v{d}, 1, v19")
    def rep_store():
        e("s_lshr_b32 s66, s64, 4")
        e("s_and_b32 s67, s64, 15")
        for k in range(4):
            e(f"v_lshl_or_b32 v{216+2*k}, v{201+4*k}, 16, v{200+4*k}")
            e(f"v_lshl_or_b32 v{217+2*k}, v{203+4*k}, 16, v{202+4*k}")
        e("s_lshr_b32 s68, s66, 2")
        e("s_lshl_b32 s68, s68, 4")
        e("s_add_u32 s68, s68, s67")
        e("s_mul_i32 s68, s68, 14336")
        e("s_and_b32 s69, s66, 3")
        e("s_lshl_b32 s70, s69, 10")
        e("s_add_u32 s70, s70, s68")
        e("s_lshl_b32 s71, s63, 13")
        e("s_add_u32 s70, s70, s71")
        e(f"buffer_store_dwordx4 v[216:219], v2, s[40:43], s70 offen{SL}")
        e("s_cmp_eq_u32 s63, 0")
        e(f"s_cbranch_scc0 {px}_RP1")
        e("s_add_u32 s70, s70, 4096")
        e(f"buffer_store_dwordx4 v[220:223], v2, s[40:43], s70 offen{SL}")
        e(f"s_branch {px}_RPJ")
        lab(f"{px}_RP1")
        e("s_lshl_b32 s70, s69, 9")
        e("s_add_u32 s70, s70, s68")
        e("s_add_u32 s70, s70, 12288")
        e("v_lshlrev_b32 v17, 3, v1")
        e(f"buffer_store_dwordx2 v[220:221], v17, s[40:43], s70 offen{SL}")
        lab(f"{px}_RPJ")
    stamp()
    e("s_waitcnt vmcnt(0)")
    stamp()
    if rep and not kc:
        rep_store()
        e("s_cmp_ge_u32 s35, 896")
        e(f"s_cbranch_scc1 {px}_W1E")
        srd(40, P_WS, W1F_SZ, W1F_OFF)
        e("s_lshl_b32 s67, s35, 11")
        for k in range(2):
            for j in range(4):
                e(f"v_lshl_or_b32 v{120+4*k+j}, v{101+8*k+2*j}, 16, v{100+8*k+2*j}")
            e(f"buffer_store_dwordx4 v[{120+4*k}:{123+4*k}], v2, s[40:43], s67 offen offset:{1024*k}")
        lab(f"{px}_W1E")
    if not kc:
        if not waits:
            pass
        stamp_flush()
        e("s_endpgm")
        return
    e(f"s_mov_b32 s66, {f2u(LOG2E_HI)}")
    e(f"s_mov_b32 s67, {f2u(LOG2E_LO)}")
    e(f"s_mov_b32 s68, {f2u(LN2)}")
    e(f"s_mov_b32 s69, {f2u(INV2PI)}")
    for r in (10, 11, 12, 13, 14, 15):
        e(f"v_lshlrev_b32 v{r}, 16, v{r}")
    def exp_acc(dst, x, t1, t2):
        e(f"v_mul_f32 v{t1}, s66, v{x}")
        e(f"v_fma_f32 v{t2}, v{x}, s66, -v{t1}")
        e(f"v_fmac_f32 v{t2}, s67, v{x}")
        e(f"v_exp_f32 v{dst}, v{t1}")
        e(f"v_mul_f32 v{t2}, s68, v{t2}")
        e(f"v_fmac_f32 v{dst}, v{dst}, v{t2}")
    exp_acc(16, 14, 17, 18)
    exp_acc(19, 10, 20, 21)
    e("v_cvt_pk_bf16_f32 v17, v16, v19")
    e("v_lshlrev_b32 v16, 16, v17")
    e("v_and_b32 v19, s72, v17")
    e("v_mul_f32 v19, v19, v16")
    e("v_mul_f32 v19, s66, v19")
    e("v_mul_f32 v20, v11, v16")
    e("v_mul_f32 v20, s69, v20")
    e("v_mul_f32 v22, v12, v16")
    e("v_mul_f32 v23, v13, v16")
    e("v_max_f32 v24, |v22|, |v23|")
    dpp_reduce([24], "v_max_f32")
    e("v_readlane_b32 s70, v24, 63")
    for k, (m, d) in enumerate(((1.0, 26), (8.0, 28), (128.0, 30))):
        e(f"v_mul_f32 v{32+k}, {f2u(-m)}, v19")
        e(f"v_mul_f32 v{36+k}, {f2u(m)}, v20")
    e("v_frexp_exp_i32_f32 v24, s70")
    for k in range(3):
        e(f"v_exp_f32 v{32+k}, v{32+k}")
        e(f"v_fract_f32 v{36+k}, v{36+k}")
    e("v_sub_u32 v25, 0, v24")
    for k in range(3):
        e(f"v_cos_f32 v{40+k}, v{36+k}")
        e(f"v_sin_f32 v{44+k}, v{36+k}")
    e("v_ldexp_f32 v22, v22, v25")
    e("v_ldexp_f32 v23, v23, v25")
    for k, d in enumerate((26, 28, 30)):
        e(f"v_mul_f32 v{d}, v{32+k}, v{40+k}")
        e(f"v_mul_f32 v{d+1}, v{32+k}, v{44+k}")
    e(f"s_mul_i32 s70, s63, 9216")
    e("s_add_u32 s70, s70, s65")
    e("v_lshlrev_b32 v32, 2, v1")
    e("v_add_u32 v32, s70, v32")
    e("v_mul_u32_u24 v33, 288, v6")
    e("v_lshl_add_u32 v33, v7, 4, v33")
    e("v_add_u32 v33, s70, v33")
    AT = 4608
    cur = 22
    for j in range(16):
        if j:
            nxt = 34 if cur != 34 else 36
            cmul(nxt, cur, 28, nxt)
            cur = nxt
        e(f"v_cvt_pk_f16_f32 v38, v{cur}, -v{cur+1}")
        e(f"ds_write_b32 v32, v38 offset:{288*j}")
    for ks in range(4):
        e(f"ds_read_b128 v[{120+4*ks}:{123+4*ks}], v33 offset:{64*ks}")
    e("v_mov_b32 v40, 1.0")
    e("v_mov_b32 v41, 0")
    e("v_mov_b32 v42, v26")
    e("v_mov_b32 v43, v27")
    for r in range(2, 8):
        cmul(40 + 2 * r, 40 + 2 * (r - 1), 26, 40 + 2 * r)
    e("v_mov_b32 v58, v30")
    e("v_mov_b32 v59, v31")
    for i in range(2, 17):
        cmul(56 + 2 * i, 56 + 2 * (i - 1), 30, 56 + 2 * i)
    def Rr(r): return 40 + 2 * r
    def Gi(i): return 56 + 2 * i
    tiles = [
        [(None, r) for r in range(8)] + [(1, r) for r in range(8)],
        [(2, 2 * r) for r in range(4)] + [(3, 2 * r) for r in range(4)] + [(4 + i, 4 * r) for i in range(4) for r in range(2)],
        [(8 + i, 0) for i in range(9)],
    ]
    for i in range(12):
        e(f"v_mov_b32 v{100+i}, 0")
    for T, rows in enumerate(tiles):
        for row, (gi, r) in enumerate(rows):
            tp = 92 + 2 * (row & 3)
            if gi is None:
                src = Rr(r)
            elif r == 0:
                src = Gi(gi)
            else:
                cmul(tp, Gi(gi), Rr(r), tp)
                src = tp
            e(f"v_cvt_pk_f16_f32 v{112 + (row & 3)}, v{src}, v{src+1}")
            e(f"ds_write_b32 v32, v{112 + (row & 3)} offset:{AT + 288*row}")
        for ks in range(4):
            e(f"ds_read_b128 v[{136+16*(T&1)+4*ks}:{139+16*(T&1)+4*ks}], v33 offset:{AT + 64*ks}")
        e("s_waitcnt lgkmcnt(0)")
        a = 100 + 4 * T
        for ks in range(4):
            A = 136 + 16 * (T & 1) + 4 * ks
            e(f"v_mfma_f32_16x16x32_f16 v[{a}:{a+3}], v[{A}:{A+3}], v[{120+4*ks}:{123+4*ks}], v[{a}:{a+3}]")
    stamp()
    rep_loads()
    e("s_mul_i32 s70, s63, 3072")
    e("s_add_u32 s70, s70, s65")
    e("v_lshlrev_b32 v34, 6, v6")
    e("v_lshl_add_u32 v34, v7, 4, v34")
    e("v_add_u32 v34, s70, v34")
    e("s_lshl_b32 s70, s63, 2")
    e("s_add_u32 s70, s70, s65")
    e("v_mov_b32 v35, s70")
    e("s_nop 3")
    for T in range(3):
        e(f"ds_write_b128 v34, v[{100+4*T}:{103+4*T}] offset:{18432 + 1024*T}")
    e(f"ds_write_b32 v35, v24 offset:{26112}")
    e("s_waitcnt lgkmcnt(0)")
    nonce()
    e("s_barrier")
    e("v_lshlrev_b32 v34, 4, v0")
    e("v_min_u32 v34, 3056, v34")
    e("v_mov_b32 v35, 0")
    for c in range(2):
        e(f"ds_read_b128 v[{40+16*c}:{43+16*c}], v34 offset:{c*CH + 18432}")
        e(f"ds_read_b128 v[{44+16*c}:{47+16*c}], v34 offset:{c*CH + 18432 + 3072}")
        e(f"ds_read_b64 v[{48+16*c}:{49+16*c}], v35 offset:{c*CH + 26112}")
    e("v_lshrrev_b32 v36, 1, v34")
    e("s_waitcnt lgkmcnt(0)")
    for c in range(2):
        b = 40 + 16 * c
        e(f"v_max_i32 v{b+10}, v{b+8}, v{b+9}")
        e(f"v_sub_u32 v{b+8}, v{b+8}, v{b+10}")
        e(f"v_sub_u32 v{b+9}, v{b+9}, v{b+10}")
        for j in range(4):
            e(f"v_ldexp_f32 v{b+j}, v{b+j}, v{b+8}")
            e(f"v_ldexp_f32 v{b+4+j}, v{b+4+j}, v{b+9}")
        for j in range(4):
            e(f"v_add_f32 v{b+j}, v{b+j}, v{b+4+j}")
        e(f"v_cvt_pk_f16_f32 v{b+12}, v{b}, v{b+1}")
        e(f"v_cvt_pk_f16_f32 v{b+13}, v{b+2}, v{b+3}")
        e(f"ds_write_b64 v36, v[{b+12}:{b+13}] offset:{c*CH + 24576}")
    e("s_cmp_eq_u32 s62, 0")
    e("s_cselect_b64 vcc, -1, 0")
    e("s_nop 1")
    e("v_cndmask_b32 v25, v66, v50, vcc")
    e("v_add_u32 v25, 1, v25")
    e("s_waitcnt lgkmcnt(0)")
    e("s_barrier")
    for c in range(2):
        for i in range(8):
            e(f"ds_read_u16 v{40+8*c+i}, v{230+i} offset:{c*CH + 24576}")
    e("v_lshrrev_b32 v34, 2, v0")
    e("v_lshlrev_b32 v34, 5, v34")
    e("v_bfe_u32 v35, v0, 1, 1")
    e("v_mul_u32_u24 v35, 2560, v35")
    e("v_and_b32 v36, 1, v0")
    e("v_lshl_add_u32 v34, v36, 4, v34")
    e("v_add_u32 v34, v34, v35")
    e("v_bfe_u32 v35, v0, 5, 1")
    e("v_mul_u32_u24 v35, 2560, v35")
    e("v_and_b32 v36, 31, v0")
    e("v_lshl_add_u32 v35, v36, 4, v35")
    e("v_bfe_u32 v36, v0, 6, 1")
    e(f"v_mul_u32_u24 v36, {CH}, v36")
    e("v_add_u32 v35, v35, v36")
    for j in range(4):
        e(f"v_mov_b32 v{64+j}, 0")
    e(f"ds_write_b128 v35, v[64:67] offset:{KB}")
    e("s_waitcnt lgkmcnt(1)")
    for c in range(2):
        for j in range(4):
            e(f"v_lshl_or_b32 v{56+4*c+j}, v{41+8*c+2*j}, 16, v{40+8*c+2*j}")
        if c == 1:
            e(f"v_add_u32 v37, {CH}, v34")
        e(f"ds_write_b128 v{34 if c == 0 else 37}, v[{56+4*c}:{59+4*c}] offset:{KB + 512}")
    if DUMPK:
        srd(36, P_WS, KP_SZ, KP_OFF)
        e("s_mul_i32 s70, s61, 10240")
        e("buffer_store_dwordx4 v[56:59], v34, s[36:39], s70 offen offset:512")
        e("s_add_u32 s70, s70, 5120")
        e("buffer_store_dwordx4 v[60:63], v34, s[36:39], s70 offen offset:512")
        e("s_lshl_b32 s70, s64, 2")
        e(f"s_add_u32 s70, s70, {KP_SZ - 4096}")
        e("v_mov_b32 v36, 0")
        e("buffer_store_dword v25, v36, s[36:39], s70 offen")
    stamp()
    e("s_waitcnt vmcnt(0) lgkmcnt(0)")
    rep_store()
    e("s_cmp_eq_u32 s60, 0")
    e(f"s_cbranch_scc0 {px}_W1")
    e("v_lshlrev_b32 v34, 2, v1")
    poll(52, 34, "0", 64, 36, px, ndw=4, sleep=8)
    lab(f"{px}_W1")
    e("s_barrier")
    stamp()
    if "L" in waits:
        uloads()
    e("s_lshl_b32 s70, s63, 7")
    e("v_add_u32 v34, s70, v1")
    e("v_lshlrev_b32 v34, 4, v34")
    e("v_add_u32 v34, s65, v34")
    e("v_lshrrev_b32 v35, 2, v1")
    e(f"v_mul_u32_u24 v35, {CS}, v35")
    e("v_and_b32 v36, 3, v1")
    e("v_lshl_add_u32 v35, v36, 4, v35")
    e(f"s_mul_i32 s70, s63, {4*CS}")
    e("s_add_u32 s70, s70, s65")
    e("v_add_u32 v35, s70, v35")
    for j in range(4):
        e(f"v_mov_b32 v{88+j}, 0")
    e("s_mov_b64 exec, 0xffff")
    e("ds_write_b128 v35, v[88:91] offset:4096")
    e("s_mov_b64 exec, -1")
    e("v_and_b32 v35, 3, v6")
    e("v_sub_u32 v35, 7, v35")
    e(f"v_mul_u32_u24 v35, {CS}, v35")
    e("v_lshrrev_b32 v36, 2, v6")
    e("v_sub_u32 v36, v7, v36")
    e("v_lshl_add_u32 v35, v36, 4, v35")
    e("s_lshl_b32 s70, s63, 6")
    e("s_sub_u32 s70, s65, s70")
    e(f"s_add_u32 s70, s70, {4080 - 64*62}")
    e("v_add_u32 v12, s70, v35")
    e(f"v_subrev_u32 v13, {4*CS}, v12")
    e("v_lshrrev_b32 v35, 1, v7")
    e("v_mul_u32_u24 v35, 2560, v35")
    e("v_lshl_add_u32 v35, v6, 5, v35")
    e("v_and_b32 v36, 1, v7")
    e("v_lshl_add_u32 v35, v36, 4, v35")
    e("s_lshl_b32 s70, s63, 5")
    e("s_sub_u32 s70, s65, s70")
    e(f"s_add_u32 s70, s70, {KB+32}")
    e("v_add_u32 v14, s70, v35")
    for it in range(2):
        I = 168 + 8 * it
        O = 48 + 24 * it
        e(f"s_waitcnt vmcnt({2 - 2*it})")
        for j in range(7):
            e(f"v_alignbit_b32 v{O+j}, v{I+j+1}, v{I+j}, 16")
        off = 1024 * it
        e(f"ds_write_b128 v34, v[{I}:{I+3}] offset:{off}")
        e(f"ds_write_b128 v34, v[{I+2}:{I+5}] offset:{off + 4*CS}")
        e(f"ds_write_b128 v34, v[{O}:{O+3}] offset:{off + 1*CS}")
        e(f"ds_write_b128 v34, v[{O+2}:{O+5}] offset:{off + 5*CS}")
        M = 92 + 16 * it
        for k, (src, s) in enumerate(((I + 1, 2), (I + 3, 6), (O + 1, 3), (O + 3, 7))):
            e(f"v_pk_mov_b32 v[{M+4*k}:{M+4*k+1}], v[{src-1}:{src}], v[{src+1}:{src+2}] op_sel:[1,0]")
            e(f"v_pk_mov_b32 v[{M+4*k+2}:{M+4*k+3}], v[{src+1}:{src+2}], v[{src+3}:{src+4}] op_sel:[1,0]")
            e(f"ds_write_b128 v34, v[{M+4*k}:{M+4*k+3}] offset:{off + s*CS}")
    ACC = 16
    e("v_mov_b32 v10, v25")
    e("v_mov_b32 v11, v15")
    for i in range(32):
        e(f"v_mov_b32 v{ACC+i}, 0")
    stamp()
    e("s_waitcnt vmcnt(0) lgkmcnt(0)")
    e("s_barrier")
    stamp()
    def c_():
        e("s_lshl_b32 s70, s61, 2")
        e(f"s_add_u32 s70, s70, {RFL}")
    publish(px, "RF", c_, 8)
    if os.environ.get("DEFER"):
        e("s_sub_u32 s70, s2, 256")
        e("s_lshl_b32 s70, s70, 2")
        e(f"s_add_u32 s70, s70, {HINT}")
        e("v_mov_b32 v8, 0")
        poll(52, 8, "s70", 1, 9, px, sleep=3)
    lab(f"{px}_RF")
    if os.environ.get("DEFER"):
        e("s_barrier")
    stamp()
    NB = 3
    FR = [48 + 24 * b for b in range(NB)]
    def nI(pp):
        return 4 - (2 * pp) // 16
    def issue_list(pp):
        R = FR[pp % NB]
        out = []
        for h in range(2):
            out.append(f"ds_read_b128 v[{R+4*h}:{R+4*h+3}], v{12+h} offset:{64*(62-2*pp)}")
        for I in range(4 - nI(pp), 4):
            out.append(f"ds_read_b128 v[{R+8+4*I}:{R+11+4*I}], v14 offset:{32*(16*I-2*pp+15)}")
        return out
    cnts = {}
    for pp in range(NB - 1):
        l_ = issue_list(pp); cnts[pp] = len(l_)
        for x in l_: e(x)
    for pp in range(32):
        nxt = issue_list(pp + NB - 1) if pp + NB - 1 < 32 else []
        pend = sum(cnts[k] for k in range(pp + 1, min(32, pp + NB - 1)))
        cnts[pp + NB - 1] = len(nxt)
        e(f"s_waitcnt lgkmcnt({pend})")
        R = FR[pp % NB]
        for I in range(4 - nI(pp), 4):
            for h in range(2):
                a = ACC + 8 * I + 4 * h
                e(f"v_mfma_f32_16x16x32_f16 v[{a}:{a+3}], v[{R+4*h}:{R+4*h+3}], v[{R+8+4*I}:{R+11+4*I}], v[{a}:{a+3}]")
                if nxt: e(nxt.pop(0))
        for x in nxt: e(x)
    e("s_nop 7")
    stamp()
    e("s_barrier")
    e("s_lshl_b32 s70, s63, 12")
    e("s_add_u32 s70, s70, s65")
    e(f"s_add_u32 s70, s70, {CS}")
    e("v_add_u32 v8, s70, v2")
    e("s_xor_b32 s71, s63, 1")
    e("s_lshl_b32 s70, s71, 12")
    e("s_add_u32 s70, s70, s65")
    e(f"s_add_u32 s70, s70, {CS}")
    e("v_add_u32 v9, s70, v2")
    e("s_cmp_eq_u32 s63, 0")
    e(f"s_cbranch_scc1 {px}_P0")
    for t in range(4):
        e(f"ds_write_b128 v8, v[{ACC+4*t}:{ACC+4*t+3}] offset:{1024*t}")
    for i in range(8):
        e(f"v_pk_mov_b32 v[{48+2*i}:{49+2*i}], v[{ACC+16+2*i}:{ACC+17+2*i}], v[{ACC+16+2*i}:{ACC+17+2*i}] op_sel:[0,1]")
    e(f"s_branch {px}_PJ")
    lab(f"{px}_P0")
    for t in range(4):
        e(f"ds_write_b128 v8, v[{ACC+16+4*t}:{ACC+16+4*t+3}] offset:{1024*t}")
    for i in range(8):
        e(f"v_pk_mov_b32 v[{48+2*i}:{49+2*i}], v[{ACC+2*i}:{ACC+1+2*i}], v[{ACC+2*i}:{ACC+1+2*i}] op_sel:[0,1]")
    lab(f"{px}_PJ")
    e("s_waitcnt lgkmcnt(0)")
    e("s_barrier")
    for t in range(4):
        e(f"ds_read_b128 v[{64+4*t}:{67+4*t}], v9 offset:{1024*t}")
    e("v_lshlrev_b32 v5, 6, v6")
    e("v_lshl_add_u32 v5, v7, 4, v5")
    e("s_lshl_b32 s70, s63, 11")
    e("s_sub_u32 s70, s65, s70")
    e(f"s_add_u32 s70, s70, {4080-1024}")
    e("v_sub_u32 v8, s70, v5")
    for Il in range(2):
        e(f"ds_read_b128 v[{80+4*Il}:{83+4*Il}], v8 offset:{1024*(1-Il)}")
    e("s_lshl_b32 s70, s64, 12")
    e("s_lshl_b32 s71, s63, 11")
    e("s_add_u32 s70, s70, s71")
    e("s_waitcnt lgkmcnt(0)")
    for Il in range(2):
        a = 48 + 8 * Il
        for k in range(4):
            e(f"v_pk_add_f32 v[{a+2*k}:{a+2*k+1}], v[{a+2*k}:{a+2*k+1}], v[{64+8*Il+2*k}:{65+8*Il+2*k}]")
        for k in range(8):
            e(f"v_ldexp_f32 v{a+k}, v{a+k}, v10")
        for k in range(4):
            e(f"v_cvt_pk_bf16_f32 v{88+k}, v{a+2*k}, v{a+2*k+1}")
        for k in range(4):
            e(f"v_lshlrev_b32 v{a+2*k}, 16, v{88+k}")
            e(f"v_and_b32 v{a+2*k+1}, s72, v{88+k}")
        U = 80 + 4 * Il
        for k in range(4):
            src = U + 3 - k
            e(f"v_cvt_f32_f16_sdwa v{92+2*k}, v{src} dst_sel:DWORD dst_unused:UNUSED_PAD src0_sel:WORD_1")
            e(f"v_cvt_f32_f16 v{93+2*k}, v{src}")
        for k in range(8):
            e(f"v_mul_f32 v{92+k}, v{92+k}, v11")
        for k in range(4):
            e(f"v_cvt_pk_bf16_f32 v{88+k}, v{92+2*k}, v{93+2*k}")
        for k in range(4):
            e(f"v_lshlrev_b32 v{92+2*k}, 16, v{88+k}")
            e(f"v_and_b32 v{93+2*k}, s72, v{88+k}")
        for k in range(4):
            e(f"v_pk_add_f32 v[{a+2*k}:{a+2*k+1}], v[{a+2*k}:{a+2*k+1}], v[{92+2*k}:{93+2*k}]")
        for k in range(4):
            e(f"v_cvt_pk_bf16_f32 v{100+4*Il+k}, v{a+2*k}, v{a+2*k+1}")
        e(f"buffer_store_dwordx4 v[{100+4*Il}:{103+4*Il}], v5, s[48:51], s70 offen offset:{1024*Il}{SH}")
    stamp()
    e("s_waitcnt vmcnt(0)")
    e("s_barrier")
    def c_():
        e("s_lshl_b32 s70, s61, 2")
        e(f"s_add_u32 s70, s70, {SFL}")
    publish(px, "SF", c_, 36)
    e("s_cmp_eq_u32 s61, 0")
    e(f"s_cbranch_scc0 {px}_SF")
    e("v_lshlrev_b32 v34, 2, v1")
    e(f"s_mov_b32 s70, {RFL}")
    poll(52, 34, "s70", 64, 36, px, ndw=4, sleep=8)
    e("s_add_u32 s35, s35, 1")
    e("v_mov_b32 v34, 0")
    e("v_mov_b32 v35, s35")
    e(f"s_mov_b32 s70, {EPO}")
    e("s_mov_b64 exec, 1")
    e("buffer_store_dword v35, v34, s[52:55], s70 offen sc1")
    e("s_mov_b64 exec, -1")
    lab(f"{px}_SF")
    stamp_flush()
    e("s_endpgm")


def gen_kernel(name, px):
    kernel_begin(name)
    e("s_cmp_ge_u32 s2, 512")
    e(f"s_cbranch_scc1 {px}_END")
    e("s_load_dwordx16 s[4:19], s[0:1], 0")
    e("s_load_dwordx8 s[20:27], s[0:1], 64")
    e("s_load_dwordx4 s[28:31], s[0:1], 96")
    e("s_load_dwordx2 s[32:33], s[0:1], 112")
    e("v_and_b32 v1, 63, v0")
    e("v_readfirstlane_b32 s60, v0")
    e("v_lshlrev_b32 v2, 4, v1")
    e("s_lshr_b32 s60, s60, 6")
    e("s_waitcnt lgkmcnt(0)")
    e(f"s_add_u32 s36, s32, 0x{FL_OFF:x}")
    e("s_addc_u32 s37, s33, 0")
    e(f"s_load_dword s35, s[36:37], {EPO}")
    e("s_cmp_ge_u32 s2, 256")
    e(f"s_cbranch_scc1 {px}_C")
    gen_G(px + "G")
    lab(f"{px}_C")
    gen_C(px + "C")
    lab(f"{px}_END")
    e("s_endpgm")

LDS = 81920
KN = "pf_kernel" if os.environ.get("LIST") or len(sys.argv) > 1 else "recurrent_scan__ssm_conv_s4d__dense_activation_gelu__prompt_kernel"
gen_kernel(KN, "F")
hdr = "; S4D conv + FFN fused op, single launch (generated by gen/gen3.py)\n"
if KN == "pf_kernel":
    hdr += f"; @launch kernel=pf_kernel grid=(512,1,1) block=(256,1,1) lds={LDS}\n"
else:
    hdr += f"; @launch grid=(512,1,1) block=(256,1,1) lds={LDS}\n"
hdr += '.amdgcn_target "amdgcn-amd-amdhsa--gfx950"\n.text\n'
txt = hdr + "\n".join(L) + "\n" + '.section .rodata,"a"\n'
txt += kd(KN, 256, 102, 256)
open(OUT, "w").write(txt)
print("wrote", OUT, len(txt))
```

```python
import struct, sys, os

OUT = sys.argv[1] if len(sys.argv) > 1 else "recurrent_scan__ssm_conv_s4d__dense_activation_gelu__prompt.s"
SPLIT = os.environ.get("SPLIT", "") != ""
STAMP = os.environ.get("STAMP", "") != ""
DUMPK = os.environ.get("DUMPK", "") != ""

L = []
def e(s=""):
    L.append("    " + s)
def lab(s):
    L.append(s + ":")
def f2u(x):
    return "0x%08x" % struct.unpack("<I", struct.pack("<f", x))[0]

XNF_OFF = 0x0;        XNF_SZ = 0x200000
XNB_OFF = 0x200000;   XNB_SZ = 0x200000
W2F_OFF = 0x400000;   W2F_SZ = 8 * 16 * 14336
HF_OFF  = 0x600000;   HF_SZ = 32 * 16 * 14336
ST_OFF  = 0xD80000;   ST_SZ = 512 * 4096
FL_OFF  = 0xF80000;   FL_SZ = 8192
LNF, HFL, SFL, RFL, EPO, HINT = 0, 1024, 3072, 4096, 5120, 6144
W1F_OFF = 0x1400000;  W1F_SZ = 1792 * 1024
STAT_OFF = 0xF90000;  STAT_SZ = 16384
KP_OFF  = 0x1000000;  KP_SZ = 512 * 5120
DBG_OFF = 0x1800000

LOG2E = 1.4426950408889634
LOG2E_HI = struct.unpack("<f", struct.pack("<f", LOG2E))[0]
LOG2E_LO = LOG2E - LOG2E_HI
LN2 = 0.6931471805599453
INV2PI = 0.15915494309189535
GC1 = 2 * 0.7978845608028654 * LOG2E
GC2 = GC1 * 0.044715
SPIN_MAX = 1 << 20
FINE = os.environ.get("FINE")
LSC = " sc1" if os.environ.get("LSC") else ""

P_X, P_LAR, P_AIM, P_CR, P_CI, P_LDT, P_DSK = 4, 6, 8, 10, 12, 14, 16
P_W1, P_B1, P_W2, P_B2, P_OUT, P_DBG, P_WS = 20, 22, 24, 26, 28, 30, 32

def srd(dst, ptr, size, off=0):
    if off:
        e(f"s_add_u32 s{dst}, s{ptr}, 0x{off:x}")
        e(f"s_addc_u32 s{dst+1}, s{ptr+1}, 0")
    else:
        e(f"s_mov_b32 s{dst}, s{ptr}")
        e(f"s_mov_b32 s{dst+1}, s{ptr+1}")
    e(f"s_mov_b32 s{dst+2}, 0x{size:x}")
    e(f"s_mov_b32 s{dst+3}, 0x00020000")

_st = [0]
KIDX = [0]
def stamp(reset=False):
    if not STAMP: return
    if reset:
        _st[0] = 0
        e("s_memrealtime s[78:79]")
    k = _st[0]; _st[0] += 1
    assert k < 28
    e("s_memtime s[100:101]")
    e("s_waitcnt lgkmcnt(0)")
    if k < 20:
        e(f"s_mov_b32 s{80+k}, s100")
    else:
        e(f"v_mov_b32 v{254+(k-20)%2}, s100")
def stamp_flush():
    if not STAMP: return
    stamp()
    e("s_mov_b64 exec, 1")
    e("s_memrealtime s[100:101]")
    srd(36, P_WS, 0x80000, DBG_OFF + KIDX[0] * 0x80000)
    e("v_readfirstlane_b32 s40, v0")
    e("s_lshr_b32 s40, s40, 6")
    e("s_lshl_b32 s41, s2, 2")
    e("s_add_u32 s40, s40, s41")
    e("s_lshl_b32 s40, s40, 7")
    e("v_mov_b32 v1, 0")
    e("s_waitcnt lgkmcnt(0)")
    e("v_mov_b32 v2, s100")
    e("v_mov_b32 v3, s78")
    e(f"v_mov_b32 v4, {_st[0]}")
    e("buffer_store_dwordx3 v[2:4], v1, s[36:39], s40 offen")
    for k in range(_st[0]):
        e(f"v_mov_b32 v5, s{80+k}" if k < 20 else f"v_mov_b32 v5, v{254+(k-20)%2}")
        e(f"buffer_store_dword v5, v1, s[36:39], s40 offen offset:{16+4*k}")
        e("s_nop 1")
    e("s_mov_b64 exec, -1")

def kernel_begin(name):
    L.append(f".globl {name}")
    L.append(".p2align 8")
    L.append(f".type {name},@function")
    lab(name)

def kd(name, vgpr, sgpr, accum):
    return f""".p2align 6
.amdhsa_kernel {name}
  .amdhsa_next_free_vgpr {vgpr}
  .amdhsa_next_free_sgpr {sgpr}
  .amdhsa_accum_offset {accum}
  .amdhsa_group_segment_fixed_size 0
  .amdhsa_kernarg_size 120
  .amdhsa_user_sgpr_count 2
  .amdhsa_user_sgpr_kernarg_segment_ptr 1
  .amdhsa_system_sgpr_workgroup_id_x 1
.end_amdhsa_kernel
"""

def cmul(d, x, y, t):
    e(f"v_pk_mul_f32 v[{t}:{t+1}], v[{x}:{x+1}], v[{y}:{y+1}] op_sel:[0,0] op_sel_hi:[0,1]")
    e(f"v_pk_fma_f32 v[{d}:{d+1}], v[{x}:{x+1}], v[{y}:{y+1}], v[{t}:{t+1}] op_sel:[1,1,0] op_sel_hi:[1,0,1] neg_lo:[1,0,0]")

_uid = [0]
def poll(srd_r, voff, soff, nlanes, vt, tag, ndw=1, sleep=4, step=256):
    _uid[0] += 1
    lb = f"POLL_{tag}_{_uid[0]}"
    e(f"s_mov_b32 s76, {SPIN_MAX}")
    if nlanes < 64:
        e(f"s_mov_b32 s74, 0x{(1 << nlanes) - 1:x}")
        e("s_mov_b32 s75, 0")
    else:
        e("s_mov_b64 s[74:75], -1")
    lab(lb)
    for k in range(ndw):
        e(f"buffer_load_dword v{vt+k}, v{voff}, s[{srd_r}:{srd_r+3}], {soff} offen offset:{step*k} sc1")
    e("s_waitcnt vmcnt(0)")
    for k in range(1, ndw):
        e(f"v_xor_b32 v{vt+k}, s34, v{vt+k}")
    e(f"v_xor_b32 v{vt}, s34, v{vt}")
    for k in range(1, ndw):
        e(f"v_or_b32 v{vt}, v{vt}, v{vt+k}")
    e(f"v_cmp_ne_u32 vcc, 0, v{vt}")
    e("s_and_b64 vcc, vcc, s[74:75]")
    e(f"s_cbranch_scc0 {lb}_D")
    e(f"s_sleep {sleep}")
    e("s_sub_u32 s76, s76, 1")
    e("s_cmp_lg_u32 s76, 0")
    e(f"s_cbranch_scc1 {lb}")
    lab(lb + "_D")

def nonce():
    e("s_mul_i32 s34, s35, 0x9E3779B1")
    e("s_xor_b32 s34, s34, 0x85EBCA6B")

def publish(px, tag, soff_code, vt):
    e("s_cmp_eq_u32 s60, 0")
    e(f"s_cbranch_scc0 {px}_{tag}")
    soff_code()
    e(f"v_mov_b32 v{vt}, 0")
    e(f"v_mov_b32 v{vt+1}, s34")
    e("s_mov_b64 exec, 1")
    e(f"buffer_store_dword v{vt+1}, v{vt}, s[52:55], s70 offen sc1")
    e("s_mov_b64 exec, -1")

def dpp_reduce(regs, op):
    steps = ["quad_perm:[1,0,3,2] row_mask:0xf bank_mask:0xf", "quad_perm:[2,3,0,1] row_mask:0xf bank_mask:0xf",
             "row_half_mirror row_mask:0xf bank_mask:0xf", "row_mirror row_mask:0xf bank_mask:0xf",
             "row_bcast:15 row_mask:0xa bank_mask:0xf", "row_bcast:31 row_mask:0xc bank_mask:0xf"]
    for st in steps:
        e(f"s_nop {1 if len(regs) < 2 else 0}" if len(regs) < 3 else "s_nop 0")
        for r in regs:
            e(f"{op}_dpp v{r}, v{r}, v{r} {st}")
    e("s_nop 0")

class VM:
    def __init__(self): self.ops = []
    def add(self, tag, n=1): self.ops += [tag] * n
    def wait(self, *tags):
        idx = [i for i, o in enumerate(self.ops) if o in tags]
        if not idx: return
        n = len(self.ops) - 1 - max(idx)
        assert n < 64
        e(f"s_waitcnt vmcnt({n})")
    def drained(self): self.ops = []

def gen_G(px):
    vm = VM()
    stamp(True)
    e("s_setprio 2")
    e("s_and_b32 s61, s2, 7")
    e("s_lshr_b32 s62, s2, 3")
    e("s_lshr_b32 s63, s61, 1")
    e("s_lshl_b32 s63, s63, 2")
    e("s_lshr_b32 s67, s62, 3")
    e("s_add_u32 s63, s63, s67")
    e("s_and_b32 s64, s61, 1")
    e("s_lshl_b32 s64, s64, 3")
    e("s_and_b32 s66, s62, 7")
    e("s_add_u32 s64, s64, s66")
    e("s_lshl_b32 s65, s61, 2")
    e("s_add_u32 s65, s65, s67")
    SB = 14336
    srd(36, P_B1, 1792 * 2)
    srd(40, P_W1, 512 * 1792 * 2)
    srd(44, P_WS, STAT_SZ, STAT_OFF)
    srd(48, P_X, 0x200000)
    srd(52, P_WS, FL_SZ, FL_OFF)
    srd(56, P_B2, 1024)
    e("s_lshl_b32 s67, s63, 3")
    e("s_lshl_b32 s70, s60, 1")
    e("s_add_u32 s67, s67, s70")
    e("s_lshl_b32 s73, s67, 14")
    e("v_and_b32 v230, 15, v1")
    e("v_lshrrev_b32 v231, 4, v1")
    e("v_lshlrev_b32 v235, 10, v230")
    e("v_lshl_add_u32 v235, v231, 4, v235")
    e("v_lshlrev_b32 v234, 3, v231")
    def bload(s):
        R = 64 + 16 * (s % 5)
        e(f"s_add_u32 s70, s73, {s*128}")
        e(f"s_add_u32 s71, s73, {s*128 + 16384}")
        for j in range(2):
            for k in range(2):
                r = R + 8 * j + 4 * k
                e(f"buffer_load_dwordx4 v[{r}:{r+3}], v235, s[48:51], s{70 if j == 0 else 71} offen offset:{64*k}")
        vm.add(("B", s), 4)
    bload(0)
    e("s_mul_i32 s70, s60, 224")
    e("s_mov_b32 s72, 4682")
    for q in range(4):
        e(f"v_add_u32 v{60+q}, s70, v1")
        if q:
            e(f"v_add_u32 v{60+q}, {64*q}, v{60+q}")
        e(f"v_mul_lo_u32 v230, v{60+q}, s72")
        e("v_lshrrev_b32 v230, 16, v230")
        e("v_mul_u32_u24 v231, 14, v230")
        e(f"v_sub_u32 v231, v{60+q}, v231")
        e("v_and_b32 v232, 35, v230")
        e("v_bfe_u32 v233, v230, 2, 2")
        e("v_lshl_or_b32 v232, v233, 3, v232")
        e("v_bfe_u32 v233, v230, 4, 1")
        e("v_lshl_or_b32 v232, v233, 2, v232")
        e("v_mul_u32_u24 v230, 3584, v232")
        e(f"v_lshl_add_u32 v{60+q}, v231, 4, v230")
    e("s_mul_i32 s61, s64, 224")
    e("s_mul_i32 s62, s60, 3584")
    e("s_mov_b32 s72, 0xffff0000")
    def dma(s, buf):
        e(f"s_add_u32 s68, s61, {s*64*3584}")
        for q in range(4):
            e(f"s_add_u32 s70, s62, {buf*SB + q*1024}")
            e("s_mov_b32 m0, s70")
            if q == 3:
                e("s_mov_b32 exec_hi, 0")
            else:
                e("s_nop 0")
            e(f"buffer_load_dwordx4 v{60+q}, s[40:43], s68 offen lds")
        e("s_mov_b64 exec, -1")
        vm.add(("D", s), 4)
    PD = int(os.environ.get("PD", "3"))
    dma(0, 0)
    for s in range(1, PD):
        bload(s)
        dma(s, s)
    for i in range(7):
        e(f"buffer_load_dwordx2 v[{216+2*i}:{217+2*i}], v234, s[36:39], s61 offen offset:{32*i}")
    vm.add("b1", 7)
    for i in range(56):
        e(f"v_mov_b32 v{4+i}, 0")
    for i in range(8):
        e(f"v_mov_b32 v{236+i}, 0")
    for i in range(4):
        e(f"v_mov_b32 v{250+i}, 0x3f803f80")
    e("v_lshrrev_b32 v230, 2, v1")
    e("v_mul_u32_u24 v3, 224, v230")
    e("v_and_b32 v230, 3, v1")
    e("v_lshl_add_u32 v3, v230, 3, v3")
    e("v_add_u32 v248, 0x8000, v3")
    e("s_lshl_b32 s70, s60, 5")
    e("v_add_u32 v246, s70, v3")
    e("v_add_u32 v247, 0x8000, v246")
    e("v_lshlrev_b32 v245, 2, v1")
    def xloads():
        e("v_lshrrev_b32 v231, 3, v1")
        e("v_and_b32 v232, 7, v1")
        e("v_lshlrev_b32 v233, 10, v231")
        e("v_lshl_add_u32 v233, v232, 4, v233")
        e("v_lshlrev_b32 v249, 12, v231")
        e("v_lshl_add_u32 v249, v232, 4, v249")
        e("s_lshl_b32 s70, s65, 16")
        e("s_lshl_b32 s71, s60, 14")
        e("s_add_u32 s70, s70, s71")
        e("s_lshl_b32 s71, s66, 7")
        e("s_add_u32 s70, s70, s71")
        e("s_lshl_b32 s71, s60, 11")
        e(f"s_add_u32 s71, s71, 73728")
        for q in range(2):
            e("s_mov_b32 m0, s71")
            e("s_nop 0")
            e("buffer_load_dwordx4 v233, s[48:51], s70 offen lds")
            if q == 0:
                e("s_add_u32 s70, s70, 8192")
                e("s_add_u32 s71, s71, 1024")
        vm.add("xt", 2)
    AR = [160, 188]
    CR = [144, 152]
    def lds_a_list(u):
        s, ksl = u >> 1, u & 1
        out = []
        def rd(dst, off, b0, b1_):
            if off >= 0x8000:
                out.append(f"ds_read_b64_tr_b16 v[{dst}:{dst+1}], v{b1_} offset:{off - 0x8000}")
            else:
                out.append(f"ds_read_b64_tr_b16 v[{dst}:{dst+1}], v{b0} offset:{off}")
        for i in range(7):
            for e2 in range(2):
                rd(AR[u & 1] + 4*i + 2*e2, (s % 5)*SB + (32*ksl+16*e2)*224 + 32*i, 3, 248)
        for i in range(2):
            for e2 in range(2):
                rd(CR[u & 1] + 4*i + 2*e2, (s % 5)*SB + (32*ksl+16*e2)*224 + 128*i, 246, 247)
        return out
    stamp()
    vm.wait(("D", 0), ("B", 0))
    e("s_barrier")
    stamp()
    for x in lds_a_list(0): e(x)
    for u in range(16):
        nxt = []
        if u + 1 < 16:
            if (u + 1) % 2 == 0:
                sn = (u + 1) >> 1
                if FINE and sn in (3,): stamp()
                vm.wait(("D", sn), ("B", sn))
                if FINE and sn in (3,): stamp()
                e("s_barrier")
                if sn == 4 or (FINE and sn == 3): stamp()
            nxt = lds_a_list(u + 1)
        e("s_waitcnt lgkmcnt(0)")
        s, ksl = u >> 1, u & 1
        R = 64 + 16 * (s % 5)
        A = AR[u & 1]
        for i in range(7):
            for j in range(2):
                a = 4 + 8 * i + 4 * j
                b = R + 8 * j + 4 * ksl
                e(f"v_mfma_f32_16x16x32_bf16 v[{a}:{a+3}], v[{A+4*i}:{A+4*i+3}], v[{b}:{b+3}], v[{a}:{a+3}]")
                if nxt: e(nxt.pop(0))
        for i in range(2):
            c_ = CR[u & 1] + 4 * i
            e(f"v_mfma_f32_16x16x32_bf16 v[{236+4*i}:{239+4*i}], v[{c_}:{c_+3}], v[250:253], v[{236+4*i}:{239+4*i}]")
            for _ in range(2):
                if nxt: e(nxt.pop(0))
        if u % 2 == 1:
            sn = (u + 1) >> 1
            if sn - 1 + PD < 8:
                if FINE and sn in (2, 3): stamp()
                bload(sn - 1 + PD)
                if FINE and sn in (2, 3): stamp()
                dma(sn - 1 + PD, (sn - 1 + PD) % 5)
                if FINE and sn in (2, 3): stamp()
            if sn - 1 + PD == 8:
                xloads()
    vm.drained()
    stamp()
    nonce()
    if os.environ.get("DEFER"):
        def c_():
            e("s_lshl_b32 s70, s2, 2")
            e(f"s_add_u32 s70, s70, {HINT}")
        publish(px, "HN", c_, 230)
        lab(f"{px}_HN")
    srd(36, P_WS, W2F_SZ, W2F_OFF)
    srd(40, P_WS, HF_SZ, HF_OFF)
    srd(48, P_OUT, 0x200000)
    NA, NB = 6, 4
    AREG = [68 + 16 * k for k in range(NA)]
    BREG = [164 + 16 * k for k in range(NB)]
    LA0, LA1 = NA, NA + 4
    def g2load(kind, k):
        fbl, q = k >> 2, k & 3
        R = (AREG[k % NA] if kind == "A" else BREG[k % NB])
        sr = 36 if kind == "A" else 40
        base = 68 if kind == "A" else 69
        sc = LSC
        e(f"s_add_u32 s70, s{base}, {fbl*14336 + q*4096}")
        for i in range(4):
            if q < 3:
                e(f"buffer_load_dwordx4 v[{R+4*i}:{R+4*i+3}], v2, s[{sr}:{sr+3}], s70 offen offset:{1024*i}{sc}")
            else:
                e(f"buffer_load_dwordx2 v[{R+4*i}:{R+4*i+1}], v244, s[{sr}:{sr+3}], s70 offen offset:{512*i}{sc}")
        vm.add((kind, k), 4)
    def g2dma(k):
        fbl, q = k >> 2, k & 3
        e(f"s_add_u32 s70, s68, {fbl*14336 + q*4096}")
        e(f"s_add_u32 s71, s35, {(k-LA0)*4096}")
        e("s_mov_b32 m0, s71")
        e("s_nop 0")
        n = 4 if q < 3 else 2
        for i in range(n):
            e(f"buffer_load_dwordx4 v2, s[36:39], s70 offen offset:{1024*i}{LSC} lds")
        vm.add(("L", k), n)
    def g2ldsread(k):
        q = k & 3
        R = AREG[k % NA]
        for i in range(4):
            if q < 3:
                e(f"ds_read_b128 v[{R+4*i}:{R+4*i+3}], v246 offset:{(k-LA0)*4096 + 1024*i}")
            else:
                e(f"ds_read_b64 v[{R+4*i}:{R+4*i+1}], v247 offset:{(k-LA0)*4096 + 512*i}")
    e("v_lshlrev_b32 v244, 3, v1")
    e("v_lshlrev_b32 v245, 2, v1")
    e("s_lshl_b32 s70, s66, 4")
    e("s_lshl_b32 s71, s60, 2")
    e("s_add_u32 s70, s70, s71")
    e("s_mul_i32 s68, s70, 14336")
    e("s_lshl_b32 s70, s65, 4")
    e("s_add_u32 s70, s70, s71")
    e("s_mul_i32 s69, s70, 14336")
    e("s_barrier")
    e("v_lshrrev_b32 v230, 4, v1")
    e("v_lshlrev_b32 v230, 4, v230")
    e("s_lshl_b32 s70, s60, 6")
    e("v_add_u32 v231, s70, v230")
    e("ds_write_b128 v231, v[236:239] offset:0")
    e("ds_write_b128 v231, v[240:243] offset:256")
    e("s_waitcnt lgkmcnt(0)")
    nonce()
    e("s_cmp_eq_u32 s60, 0")
    e(f"s_cbranch_scc0 {px}_W1")
    e("s_lshl_b32 s70, s63, 6")
    poll(52, 245, "s70", 16, 232, px, sleep=2)
    lab(f"{px}_W1")
    e("s_barrier")
    stamp()
    e("v_and_b32 v231, 15, v1")
    e("v_lshlrev_b32 v231, 3, v231")
    e("s_lshl_b32 s70, s67, 7")
    e("buffer_load_dwordx2 v[120:121], v231, s[44:47], s70 offen sc1")
    e("buffer_load_dwordx2 v[122:123], v231, s[44:47], s70 offen offset:128 sc1")
    for i in range(7):
        e(f"ds_read_b128 v[{64+4*i}:{67+4*i}], v230 offset:{64*i}")
    for i in range(7):
        e(f"v_lshlrev_b32 v{92+4*i}, 16, v{216+2*i}")
        e(f"v_and_b32 v{93+4*i}, s72, v{216+2*i}")
        e(f"v_lshlrev_b32 v{94+4*i}, 16, v{217+2*i}")
        e(f"v_and_b32 v{95+4*i}, s72, v{217+2*i}")
    e("s_lshl_b32 s70, s66, 7")
    for i in range(4):
        e(f"buffer_load_dwordx2 v[{236+2*i}:{237+2*i}], v234, s[56:59], s70 offen offset:{32*i}")
    srd(44, P_WS, ST_SZ, ST_OFF)
    e("s_waitcnt vmcnt(4) lgkmcnt(0)")
    for j in range(2):
        e(f"v_sub_f32 v{124+4*j}, 0, v{120+2*j}")
        e(f"v_sub_f32 v{125+4*j}, 0, v{120+2*j}")
        e(f"v_mov_b32 v{126+4*j}, v{121+2*j}")
        e(f"v_mov_b32 v{127+4*j}, v{121+2*j}")
    for i in range(7):
        for j in range(2):
            for hh in range(2):
                a_ = 4 + 8 * i + 4 * j + 2 * hh
                e(f"v_pk_fma_f32 v[{a_}:{a_+1}], v[{64+4*i+2*hh}:{65+4*i+2*hh}], v[{124+4*j}:{125+4*j}], v[{a_}:{a_+1}]")
    for i in range(7):
        for j in range(2):
            for hh in range(2):
                a_ = 4 + 8 * i + 4 * j + 2 * hh
                e(f"v_pk_fma_f32 v[{a_}:{a_+1}], v[{a_}:{a_+1}], v[{126+4*j}:{127+4*j}], v[{92+4*i+2*hh}:{93+4*i+2*hh}]")
    e(f"s_mov_b32 s74, {f2u(-GC2)}")
    e(f"s_mov_b32 s75, {f2u(-GC2)}")
    e(f"v_mov_b32 v246, {f2u(-GC1)}")
    e(f"v_mov_b32 v247, {f2u(-GC1)}")
    e("s_lshr_b32 s70, s67, 2")
    e("s_lshl_b32 s70, s70, 4")
    e("s_add_u32 s70, s70, s64")
    e("s_mul_i32 s70, s70, 14336")
    e("s_and_b32 s71, s67, 3")
    e("s_lshl_b32 s73, s71, 9")
    e("s_add_u32 s73, s73, s70")
    e("s_add_u32 s73, s73, 12288")
    e("s_lshl_b32 s71, s71, 10")
    e("s_add_u32 s70, s70, s71")
    def gelu_pairs(pairs, outs):
        T = [164 + 2 * k for k in range(len(pairs))]
        for a, t in zip(pairs, T):
            e(f"v_pk_mul_f32 v[{t}:{t+1}], v[{a}:{a+1}], v[{a}:{a+1}]")
        for a, t in zip(pairs, T):
            e(f"v_pk_fma_f32 v[{t}:{t+1}], v[{t}:{t+1}], s[74:75], v[246:247]")
        for a, t in zip(pairs, T):
            e(f"v_pk_mul_f32 v[{t}:{t+1}], v[{a}:{a+1}], v[{t}:{t+1}]")
        for t in T:
            e(f"v_exp_f32 v{t}, v{t}")
            e(f"v_exp_f32 v{t+1}, v{t+1}")
        e("s_nop 0")
        for t in T:
            e(f"v_pk_add_f32 v[{t}:{t+1}], v[{t}:{t+1}], 1.0 op_sel_hi:[1,0]")
        for t in T:
            e(f"v_rcp_f32 v{t}, v{t}")
            e(f"v_rcp_f32 v{t+1}, v{t+1}")
        e("s_nop 0")
        for a, t in zip(pairs, T):
            e(f"v_pk_mul_f32 v[{t}:{t+1}], v[{a}:{a+1}], v[{t}:{t+1}]")
        for t, o in zip(T, outs):
            e(f"v_cvt_pk_bf16_f32 v{o}, v{t}, v{t+1}")
    cnt = 0
    for q in range(3):
        for j in range(2):
            a0 = 4 + 8 * (2 * q) + 4 * j; a1 = 4 + 8 * (2 * q + 1) + 4 * j
            O = 176 + 4 * (cnt % 8); cnt += 1
            gelu_pairs([a0, a0 + 2, a1, a1 + 2], [O, O + 1, O + 2, O + 3])
            e(f"buffer_store_dwordx4 v[{O}:{O+3}], v2, s[40:43], s70 offen offset:{1024*j} sc1")
        if q < 2:
            e("s_add_u32 s70, s70, 4096")
    a0 = 4 + 48; a1 = 4 + 48 + 4
    O = 176 + 4 * (cnt % 8)
    gelu_pairs([a0, a0 + 2, a1, a1 + 2], [O, O + 1, O + 2, O + 3])
    e(f"buffer_store_dwordx2 v[{O}:{O+1}], v244, s[40:43], s73 offen sc1")
    e(f"buffer_store_dwordx2 v[{O+2}:{O+3}], v244, s[40:43], s73 offen offset:512 sc1")
    stamp()
    e("s_waitcnt vmcnt(0)")
    e("s_barrier")
    stamp()
    def c_():
        e("s_lshl_b32 s70, s63, 5")
        e("s_add_u32 s70, s70, s64")
        e("s_lshl_b32 s70, s70, 2")
        e(f"s_add_u32 s70, s70, {HFL}")
    publish(px, "HF", c_, 230)
    lab(f"{px}_HF")
    e("s_lshl_b32 s70, s66, 7")
    e(f"s_add_u32 s70, s70, {RFL}")
    poll(52, 245, "s70", 32, 230, px)
    e("s_lshl_b32 s35, s60, 14")
    e("v_add_u32 v246, s35, v2")
    e("v_add_u32 v247, s35, v244")
    e("s_cmp_eq_u32 s60, 0")
    e(f"s_cbranch_scc0 {px}_HW")
    e("s_lshr_b32 s70, s65, 1")
    e("s_lshl_b32 s70, s70, 7")
    e(f"s_add_u32 s70, s70, {HFL}")
    poll(52, 245, "s70", 16, 230, px, sleep=2)
    lab(f"{px}_HW")
    for k in range(NA):
        g2load("A", k)
    for k in range(LA0, LA1):
        g2dma(k)
    for i in range(64):
        e(f"v_mov_b32 v{4+i}, 0")
    e("s_barrier")
    stamp()
    for k in range(NB):
        g2load("B", k)
    for k in range(16):
        vm.wait(("A", k), ("B", k))
        if LA0 <= k < LA1:
            e("s_waitcnt lgkmcnt(0)")
        if k in (0, 8): stamp()
        q = k & 3
        A = AREG[k % NA]; B = BREG[k % NB]
        for i in range(4):
            for j in range(4):
                a = 4 + 16 * j + 4 * i
                if q < 3:
                    e(f"v_mfma_f32_16x16x32_bf16 v[{a}:{a+3}], v[{A+4*i}:{A+4*i+3}], v[{B+4*j}:{B+4*j+3}], v[{a}:{a+3}]")
                else:
                    e(f"v_mfma_f32_16x16x16_bf16 v[{a}:{a+3}], v[{A+4*i}:{A+4*i+1}], v[{B+4*j}:{B+4*j+1}], v[{a}:{a+3}]")
        if k + NB < 16:
            g2load("B", k + NB)
        if k + NA < 16:
            if LA0 <= k + NA < LA1:
                g2ldsread(k + NA)
            else:
                g2load("A", k + NA)
    vm.drained()
    stamp()
    e("s_cmp_eq_u32 s60, 0")
    e(f"s_cbranch_scc0 {px}_SW")
    e("s_lshl_b32 s70, s66, 7")
    e(f"s_add_u32 s70, s70, {SFL}")
    poll(52, 245, "s70", 32, 230, px)
    lab(f"{px}_SW")
    e("s_barrier")
    e("s_lshl_b32 s70, s66, 18")
    e("s_lshl_b32 s71, s60, 16")
    e("s_add_u32 s70, s70, s71")
    e("s_lshl_b32 s71, s65, 7")
    e("s_add_u32 s70, s70, s71")
    e("s_lshl_b32 s71, s60, 11")
    e("s_add_u32 s71, s71, 65536")
    for q in range(2):
        e("s_mov_b32 m0, s71")
        e("s_nop 0")
        e(f"buffer_load_dwordx4 v249, s[44:47], s70 offen{LSC} lds")
        if q == 0:
            e("s_add_u32 s70, s70, 32768")
            e("s_add_u32 s71, s71, 1024")
    for j in range(4):
        for i in range(4):
            a = 4 + 16 * j + 4 * i
            e(f"ds_write_b128 v246, v[{a}:{a+3}] offset:{(4*j+i)*1024}")
    e("v_and_b32 v230, 15, v1")
    e("v_lshrrev_b32 v231, 4, v1")
    e("s_lshl_b32 s71, s60, 4")
    e("v_add_u32 v232, s71, v230")
    e("v_lshlrev_b32 v234, 7, v232")
    e("v_lshl_add_u32 v234, v231, 3, v234")
    e("v_add_u32 v234, 0x12000, v234")
    e("v_lshlrev_b32 v235, 9, v231")
    e("v_lshl_add_u32 v235, v232, 1, v235")
    e("v_add_u32 v235, 0x10000, v235")
    e("s_lshl_b32 s70, s65, 6")
    e("v_add_u32 v232, s70, v232")
    e("v_lshlrev_b32 v233, 10, v232")
    e("v_lshl_add_u32 v233, v231, 3, v233")
    e("s_lshl_b32 s73, s66, 7")
    e("s_lshl_b32 s70, s60, 12")
    e("v_add_u32 v246, s70, v2")
    e(f"s_mov_b32 s74, {f2u(-LOG2E)}")
    e("s_waitcnt vmcnt(0) lgkmcnt(0)")
    e("s_barrier")
    stamp()
    for ww in range(4):
        for i in range(4):
            r = 68 + 16 * ww + 4 * i
            e(f"ds_read_b128 v[{r}:{r+3}], v246 offset:{ww*16384 + i*1024}")
    e("s_waitcnt lgkmcnt(8)")
    for i in range(4):
        e(f"ds_read_b64 v[{132+2*i}:{133+2*i}], v234 offset:{32*i}")
    for q in range(8):
        e(f"v_pk_add_f32 v[{68+2*q}:{69+2*q}], v[{68+2*q}:{69+2*q}], v[{84+2*q}:{85+2*q}]")
    e("s_waitcnt lgkmcnt(4)")
    for i in range(4):
        for r in range(4):
            if i < 2:
                e(f"ds_read_u16 v{148+4*i+r}, v235 offset:{(16*i+r)*128}")
    for q in range(8):
        e(f"v_pk_add_f32 v[{100+2*q}:{101+2*q}], v[{100+2*q}:{101+2*q}], v[{116+2*q}:{117+2*q}]")
    for q in range(8):
        e(f"v_pk_add_f32 v[{68+2*q}:{69+2*q}], v[{68+2*q}:{69+2*q}], v[{100+2*q}:{101+2*q}]")
    e("s_waitcnt lgkmcnt(4)")
    for i in range(2, 4):
        for r in range(4):
            e(f"ds_read_u16 v{148+4*i+r}, v235 offset:{(16*i+r)*128}")
    def rnd(a, n, T):
        for k in range(n // 2):
            e(f"v_cvt_pk_bf16_f32 v{T+k}, v{a+2*k}, v{a+2*k+1}")
        for k in range(n // 2):
            e(f"v_lshlrev_b32 v{a+2*k}, 16, v{T+k}")
            e(f"v_and_b32 v{a+2*k+1}, s72, v{T+k}")
    def unp(dst, src, n):
        for k in range(n // 2):
            e(f"v_lshlrev_b32 v{dst+2*k}, 16, v{src+k}")
            e(f"v_and_b32 v{dst+2*k+1}, s72, v{src+k}")
    a = 68
    rnd(a, 16, 4)
    unp(16, 236, 16)
    for k in range(8):
        e(f"v_pk_add_f32 v[{a+2*k}:{a+2*k+1}], v[{a+2*k}:{a+2*k+1}], v[{16+2*k}:{17+2*k}]")
    rnd(a, 16, 4)
    for r in range(16):
        e(f"v_mul_f32 v{16+r}, s74, v{a+r}")
    for r in range(16):
        e(f"v_exp_f32 v{16+r}, v{16+r}")
    for k in range(8):
        e(f"v_pk_add_f32 v[{16+2*k}:{17+2*k}], v[{16+2*k}:{17+2*k}], 1.0 op_sel_hi:[1,0]")
    for r in range(16):
        e(f"v_rcp_f32 v{16+r}, v{16+r}")
    for k in range(8):
        e(f"v_pk_mul_f32 v[{a+2*k}:{a+2*k+1}], v[{a+2*k}:{a+2*k+1}], v[{16+2*k}:{17+2*k}]")
    rnd(a, 16, 4)
    e("s_waitcnt lgkmcnt(0)")
    for r in range(16):
        e(f"v_lshlrev_b32 v{16+r}, 16, v{148+r}")
    for k in range(8):
        e(f"v_pk_mul_f32 v[{a+2*k}:{a+2*k+1}], v[{a+2*k}:{a+2*k+1}], v[{16+2*k}:{17+2*k}]")
    rnd(a, 16, 4)
    unp(16, 132, 16)
    for k in range(8):
        e(f"v_pk_add_f32 v[{a+2*k}:{a+2*k+1}], v[{a+2*k}:{a+2*k+1}], v[{16+2*k}:{17+2*k}]")
    for k in range(8):
        e(f"v_cvt_pk_bf16_f32 v{32+k}, v{a+2*k}, v{a+2*k+1}")
    for i in range(4):
        e(f"buffer_store_dwordx2 v[{32+2*i}:{33+2*i}], v233, s[48:51], s73 offen offset:{32*i}")
    if STAMP:
        stamp()
        e("s_waitcnt vmcnt(0)")
    stamp_flush()
    e("s_endpgm")


def gen_C(px, rep=True, kc=True, waits='LH'):
    CH = 38400; CS = 4160; KB = 8 * CS
    SL = " sc1" if "L" in waits else ""
    SH = " sc1" if "H" in waits else ""
    stamp(True)
    e("s_sub_u32 s61, s2, 256")
    e("s_and_b32 s62, s61, 7")
    e("s_lshr_b32 s61, s61, 3")
    e("s_lshl_b32 s62, s62, 5")
    e("s_add_u32 s61, s61, s62")
    e("s_lshr_b32 s62, s60, 1")
    e("s_and_b32 s63, s60, 1")
    e("s_lshl_b32 s64, s61, 1")
    e("s_add_u32 s64, s64, s62")
    e(f"s_mul_i32 s65, s62, {CH}")
    e("v_and_b32 v6, 15, v1")
    e("v_lshrrev_b32 v7, 4, v1")
    e("s_setprio 3")
    e("s_sub_u32 s59, s2, 256")
    srd(36, P_X, 0x200000)
    e("s_lshl_b32 s66, s59, 13")
    e("s_lshl_b32 s67, s60, 11")
    e("s_add_u32 s66, s66, s67")
    e("buffer_load_dwordx4 v[64:67], v2, s[36:39], s66 offen")
    e("buffer_load_dwordx4 v[68:71], v2, s[36:39], s66 offen offset:1024")
    srd(40, P_WS, STAT_SZ, STAT_OFF)
    srd(44, P_WS, XNB_SZ, XNB_OFF)
    srd(48, P_WS, ST_SZ, ST_OFF)
    srd(52, P_WS, FL_SZ, FL_OFF)
    e("s_mov_b32 s72, 0xffff0000")
    def uloads():
        e("s_lshl_b32 s70, s63, 7")
        e("v_add_u32 v34, s70, v1")
        e("v_sub_u32 v35, 255, v34")
        e("v_lshlrev_b32 v35, 13, v35")
        e("s_lshl_b32 s70, s64, 4")
        e("v_add_u32 v35, s70, v35")
        e("v_subrev_u32 v36, 0x2000, v35")
        e("v_subrev_u32 v37, 0x80000, v35")
        e("v_subrev_u32 v38, 0x82000, v35")
        e(f"buffer_load_dwordx4 v[168:171], v35, s[44:47], 0 offen{LSC}")
        e(f"buffer_load_dwordx4 v[172:175], v36, s[44:47], 0 offen{LSC}")
        e(f"buffer_load_dwordx4 v[176:179], v37, s[44:47], 0 offen{LSC}")
        e(f"buffer_load_dwordx4 v[180:183], v38, s[44:47], 0 offen{LSC}")
    if kc:
        e("s_lshl_b32 s66, s64, 8")
        e("s_lshl_b32 s67, s63, 7")
        e("s_add_u32 s66, s66, s67")
        e("v_lshl_add_u32 v8, v1, 1, s66")
        e("s_lshl_b32 s67, s64, 1")
        e("v_mov_b32 v9, s67")
        e(f"global_load_ushort v10, v8, s[{P_LAR}:{P_LAR+1}]")
        e(f"global_load_ushort v11, v8, s[{P_AIM}:{P_AIM+1}]")
        e(f"global_load_ushort v12, v8, s[{P_CR}:{P_CR+1}]")
        e(f"global_load_ushort v13, v8, s[{P_CI}:{P_CI+1}]")
        e(f"global_load_ushort v14, v9, s[{P_LDT}:{P_LDT+1}]")
        e(f"global_load_ushort v15, v9, s[{P_DSK}:{P_DSK+1}]")
        if "L" not in waits:
            uloads()
    def rep_loads():
        e("s_lshr_b32 s66, s64, 4")
        e("s_and_b32 s67, s64, 15")
        e("v_lshlrev_b32 v16, 12, v7")
        e("v_lshl_add_u32 v16, v6, 1, v16")
        e(f"s_mul_i32 s68, s67, {112*1024}")
        e("s_lshl_b32 s69, s66, 5")
        e("s_add_u32 s68, s68, s69")
        e("s_lshl_b32 s69, s63, 16")
        e("s_add_u32 s68, s68, s69")
        for k in range(4):
            e(f"s_add_u32 s{73}, s68, {k*16384}")
            for el in range(4):
                e(f"buffer_load_ushort v{200+4*k+el}, v16, s[36:39], s73 offen offset:{1024*el}")
    if rep and not kc:
        e("s_sub_u32 s35, s2, 256")
        e("s_lshl_b32 s35, s35, 2")
        e("s_add_u32 s35, s35, s60")
        e("s_cmp_ge_u32 s35, 896")
        e(f"s_cbranch_scc1 {px}_W1L")
        srd(44, P_W1, 512 * 1792 * 2)
        e(f"v_mul_u32_u24 v18, {4*3584}, v7")
        e("v_lshl_add_u32 v18, v6, 1, v18")
        for k in range(2):
            e("s_lshl_b32 s67, s35, 1")
            if k: e("s_add_u32 s67, s67, 1")
            e("s_mul_i32 s68, s67, 9363")
            e("s_lshr_b32 s68, s68, 16")
            e("s_mul_i32 s69, s68, 7")
            e("s_sub_u32 s69, s67, s69")
            e("s_lshr_b32 s70, s68, 4")
            e("s_and_b32 s68, s68, 15")
            e("s_mul_i32 s70, s70, 7")
            e("s_add_u32 s70, s70, s69")
            e("s_lshl_b32 s70, s70, 5")
            e(f"s_mul_i32 s68, s68, {32*3584}")
            e("s_add_u32 s70, s70, s68")
            for ee in range(8):
                e(f"s_add_u32 s71, s70, {(16*(ee>>2) + (ee&3))*3584}")
                e(f"buffer_load_ushort v{100+8*k+ee}, v18, s[44:47], s71 offen")
        lab(f"{px}_W1L")
    LP = 1040; T2 = 0
    e(f"s_mov_b32 s73, {f2u(1.0/512)}")
    stamp()
    e("s_waitcnt vmcnt(6)")
    stamp()
    for i in range(2):
        for j in range(4):
            e(f"v_lshlrev_b32 v{72+8*i+2*j}, 16, v{64+4*i+j}")
            e(f"v_and_b32 v{73+8*i+2*j}, s72, v{64+4*i+j}")
    for i in range(2):
        b = 72 + 8 * i; t = 88 + 4 * i
        e(f"v_pk_add_f32 v[{t}:{t+1}], v[{b}:{b+1}], v[{b+2}:{b+3}]")
        e(f"v_pk_add_f32 v[{t+2}:{t+3}], v[{b+4}:{b+5}], v[{b+6}:{b+7}]")
    for i in range(2):
        t = 88 + 4 * i
        e(f"v_pk_add_f32 v[{t}:{t+1}], v[{t}:{t+1}], v[{t+2}:{t+3}]")
    for i in range(2):
        t = 88 + 4 * i
        e(f"v_add_f32 v{t}, v{t}, v{t+1}")
    dpp_reduce([88, 92], "v_add_f32")
    e("v_readlane_b32 s70, v88, 63")
    e("v_readlane_b32 s71, v92, 63")
    e("v_mov_b32 v90, s73")
    e("s_nop 0")
    e("v_mul_f32 v89, s70, v90")
    e("v_mul_f32 v93, s71, v90")
    e("v_mov_b32 v88, v89")
    e("v_mov_b32 v92, v93")
    for i in range(2):
        b = 72 + 8 * i; m = 88 + 4 * i; d = 96 + 8 * i
        for j in range(4):
            e(f"v_pk_add_f32 v[{d+2*j}:{d+2*j+1}], v[{b+2*j}:{b+2*j+1}], v[{m}:{m+1}] neg_lo:[0,1] neg_hi:[0,1]")
    for i in range(2):
        d = 96 + 8 * i; t = 112 + 2 * i
        e(f"v_pk_mul_f32 v[{t}:{t+1}], v[{d}:{d+1}], v[{d}:{d+1}]")
    for j in range(1, 4):
        for i in range(2):
            d = 96 + 8 * i; t = 112 + 2 * i
            e(f"v_pk_fma_f32 v[{t}:{t+1}], v[{d+2*j}:{d+2*j+1}], v[{d+2*j}:{d+2*j+1}], v[{t}:{t+1}]")
    e("v_add_f32 v112, v112, v113")
    e("v_add_f32 v114, v114, v115")
    dpp_reduce([112, 114], "v_add_f32")
    e("v_readlane_b32 s70, v112, 63")
    e("v_readlane_b32 s71, v114, 63")
    e(f"s_mov_b32 s73, {f2u(1e-5)}")
    e("v_cvt_pk_bf16_f32 v116, v89, v93")
    e("v_mul_f32 v112, s70, v90")
    e("v_mul_f32 v113, s71, v90")
    e("v_lshlrev_b32 v89, 16, v116")
    e("v_and_b32 v93, s72, v116")
    e("v_lshlrev_b32 v88, 16, v116")
    e("v_and_b32 v92, s72, v116")
    def rnd2(a, b):
        e(f"v_cvt_pk_bf16_f32 v116, v{a}, v{b}")
        e(f"v_lshlrev_b32 v{a}, 16, v116")
        e(f"v_and_b32 v{b}, s72, v116")
    rnd2(112, 113)
    e("v_add_f32 v112, s73, v112")
    e("v_add_f32 v113, s73, v113")
    rnd2(112, 113)
    e("v_sqrt_f32 v112, v112")
    e("v_sqrt_f32 v113, v113")
    e("s_nop 0")
    rnd2(112, 113)
    e("v_rcp_f32 v91, v112")
    e("v_rcp_f32 v95, v113")
    e("s_nop 0")
    e("v_fma_f32 v114, -v112, v91, 1.0")
    e("v_fma_f32 v115, -v113, v95, 1.0")
    e("v_fmac_f32 v91, v91, v114")
    e("v_fmac_f32 v95, v95, v115")
    e("v_mov_b32 v90, v91")
    e("v_mov_b32 v94, v95")
    for i in range(2):
        b = 72 + 8 * i; m = 88 + 4 * i; d = 96 + 8 * i; P = 64 + 4 * i; H = 120 + 4 * i
        for j in range(4):
            e(f"v_pk_add_f32 v[{d+2*j}:{d+2*j+1}], v[{b+2*j}:{b+2*j+1}], v[{m}:{m+1}] neg_lo:[0,1] neg_hi:[0,1]")
        for j in range(4):
            e(f"v_cvt_pk_bf16_f32 v{P+j}, v{d+2*j}, v{d+2*j+1}")
        for j in range(4):
            e(f"v_lshlrev_b32 v{d+2*j}, 16, v{P+j}")
            e(f"v_and_b32 v{d+2*j+1}, s72, v{P+j}")
        for j in range(4):
            e(f"v_pk_mul_f32 v[{d+2*j}:{d+2*j+1}], v[{d+2*j}:{d+2*j+1}], v[{m+2}:{m+3}]")
        for j in range(4):
            e(f"v_cvt_pk_bf16_f32 v{P+j}, v{d+2*j}, v{d+2*j+1}")
        for j in range(4):
            e(f"v_lshlrev_b32 v{d+2*j}, 16, v{P+j}")
            e(f"v_and_b32 v{d+2*j+1}, s72, v{P+j}")
    for i in range(2):
        d = 96 + 8 * i; H = 120 + 4 * i
        for j in range(4):
            e(f"v_cvt_pk_f16_f32 v{H+j}, v{d+2*j}, v{d+2*j+1}")
    e("s_nop 3")
    e(f"s_mul_i32 s70, s60, {2*LP}")
    e("v_add_u32 v240, s70, v2")
    for i in range(2):
        e(f"ds_write_b128 v240, v[{120+4*i}:{123+4*i}] offset:{LP*i}")
    e("v_mov_b32 v96, v89")
    e("v_mov_b32 v97, v91")
    e("v_mov_b32 v98, v93")
    e("v_mov_b32 v99, v95")
    e("s_lshl_b32 s70, s59, 6")
    e("s_lshl_b32 s71, s60, 4")
    e("s_add_u32 s70, s70, s71")
    e("v_mov_b32 v240, 0")
    e("s_mov_b64 exec, 1")
    e("buffer_store_dwordx4 v[96:99], v240, s[40:43], s70 offen sc1")
    e("s_mov_b64 exec, -1")
    stamp()
    e("s_waitcnt lgkmcnt(0)")
    nonce()
    e("s_barrier")
    e("v_lshrrev_b32 v240, 4, v1")
    e("v_bfe_u32 v241, v1, 2, 2")
    e("v_and_b32 v242, 3, v1")
    e("v_sub_u32 v241, 3, v241")
    e(f"v_mul_u32_u24 v243, {LP}, v241")
    e("v_lshl_add_u32 v243, v240, 5, v243")
    e("v_lshl_add_u32 v243, v242, 3, v243")
    e("s_lshl_b32 s70, s60, 8")
    e("v_add_u32 v243, s70, v243")
    for q in range(2):
        e(f"ds_read_b64_tr_b16 v[{64+4*q}:{65+4*q}], v243 offset:{4*LP + 128*q}")
        e(f"ds_read_b64_tr_b16 v[{66+4*q}:{67+4*q}], v243 offset:{128*q}")
    e("s_lshl_b32 s70, s59, 13")
    e("s_lshl_b32 s71, s60, 11")
    e("s_add_u32 s70, s70, s71")
    for q in range(2):
        e(f"s_waitcnt lgkmcnt({2-2*q})")
        e(f"buffer_store_dwordx4 v[{64+4*q}:{67+4*q}], v2, s[44:47], s70 offen offset:{1024*q} sc1")
    if kc:
        for i in range(8):
            d = 230 + i
            e("v_lshlrev_b32 v17, 3, v0")
            if i:
                e(f"v_add_u32 v17, {i}, v17")
            e("v_cvt_f32_u32 v17, v17")
            e("v_cvt_pk_bf16_f32 v17, v17, v17")
            e("v_lshlrev_b32 v17, 16, v17")
            e("v_cvt_u32_f32 v18, v17")
            e("v_lshrrev_b32 v17, 23, v17")
            e("v_subrev_u32 v17, 134, v17")
            e("v_med3_i32 v17, v17, 0, 3")
            e("v_lshrrev_b32 v19, 7, v18")
            e("v_and_b32 v20, 7, v18")
            e("v_lshl_add_u32 v19, v19, 3, v20")
            e("v_lshrrev_b32 v19, v17, v19")
            e("v_lshl_add_u32 v19, v17, 3, v19")
            e("v_bfe_u32 v20, v18, 3, 4")
            e("v_lshrrev_b32 v21, 4, v19")
            e("v_and_b32 v19, 15, v19")
            e("v_lshl_add_u32 v20, v21, 4, v20")
            e("v_lshl_add_u32 v19, v20, 4, v19")
            e(f"v_lshlrev_b32 v{d}, 1, v19")
    def rep_store():
        e("s_lshr_b32 s66, s64, 4")
        e("s_and_b32 s67, s64, 15")
        for k in range(4):
            e(f"v_lshl_or_b32 v{216+2*k}, v{201+4*k}, 16, v{200+4*k}")
            e(f"v_lshl_or_b32 v{217+2*k}, v{203+4*k}, 16, v{202+4*k}")
        e("s_lshr_b32 s68, s66, 2")
        e("s_lshl_b32 s68, s68, 4")
        e("s_add_u32 s68, s68, s67")
        e("s_mul_i32 s68, s68, 14336")
        e("s_and_b32 s69, s66, 3")
        e("s_lshl_b32 s70, s69, 10")
        e("s_add_u32 s70, s70, s68")
        e("s_lshl_b32 s71, s63, 13")
        e("s_add_u32 s70, s70, s71")
        e(f"buffer_store_dwordx4 v[216:219], v2, s[40:43], s70 offen{SL}")
        e("s_cmp_eq_u32 s63, 0")
        e(f"s_cbranch_scc0 {px}_RP1")
        e("s_add_u32 s70, s70, 4096")
        e(f"buffer_store_dwordx4 v[220:223], v2, s[40:43], s70 offen{SL}")
        e(f"s_branch {px}_RPJ")
        lab(f"{px}_RP1")
        e("s_lshl_b32 s70, s69, 9")
        e("s_add_u32 s70, s70, s68")
        e("s_add_u32 s70, s70, 12288")
        e("v_lshlrev_b32 v17, 3, v1")
        e(f"buffer_store_dwordx2 v[220:221], v17, s[40:43], s70 offen{SL}")
        lab(f"{px}_RPJ")
    stamp()
    e("s_waitcnt vmcnt(0)")
    e("s_barrier")
    stamp()
    def c_():
        e("s_lshl_b32 s70, s59, 2")
    publish(px, "LNF", c_, 240)
    lab(f"{px}_LNF")
    e("s_setprio 0")
    srd(36, P_W2, 512 * 1792 * 2)
    srd(40, P_WS, W2F_SZ, W2F_OFF)
    rep_loads()
    if rep and not kc:
        rep_store()
        e("s_cmp_ge_u32 s35, 896")
        e(f"s_cbranch_scc1 {px}_W1E")
        srd(40, P_WS, W1F_SZ, W1F_OFF)
        e("s_lshl_b32 s67, s35, 11")
        for k in range(2):
            for j in range(4):
                e(f"v_lshl_or_b32 v{120+4*k+j}, v{101+8*k+2*j}, 16, v{100+8*k+2*j}")
            e(f"buffer_store_dwordx4 v[{120+4*k}:{123+4*k}], v2, s[40:43], s67 offen offset:{1024*k}")
        lab(f"{px}_W1E")
    if not kc:
        if not waits:
            pass
        stamp_flush()
        e("s_endpgm")
        return
    e(f"s_mov_b32 s66, {f2u(LOG2E_HI)}")
    e(f"s_mov_b32 s67, {f2u(LOG2E_LO)}")
    e(f"s_mov_b32 s68, {f2u(LN2)}")
    e(f"s_mov_b32 s69, {f2u(INV2PI)}")
    for r in (10, 11, 12, 13, 14, 15):
        e(f"v_lshlrev_b32 v{r}, 16, v{r}")
    def exp_acc(dst, x, t1, t2):
        e(f"v_mul_f32 v{t1}, s66, v{x}")
        e(f"v_fma_f32 v{t2}, v{x}, s66, -v{t1}")
        e(f"v_fmac_f32 v{t2}, s67, v{x}")
        e(f"v_exp_f32 v{dst}, v{t1}")
        e(f"v_mul_f32 v{t2}, s68, v{t2}")
        e(f"v_fmac_f32 v{dst}, v{dst}, v{t2}")
    exp_acc(16, 14, 17, 18)
    exp_acc(19, 10, 20, 21)
    e("v_cvt_pk_bf16_f32 v17, v16, v19")
    e("v_lshlrev_b32 v16, 16, v17")
    e("v_and_b32 v19, s72, v17")
    e("v_mul_f32 v19, v19, v16")
    e("v_mul_f32 v19, s66, v19")
    e("v_mul_f32 v20, v11, v16")
    e("v_mul_f32 v20, s69, v20")
    e("v_mul_f32 v22, v12, v16")
    e("v_mul_f32 v23, v13, v16")
    e("v_max_f32 v24, |v22|, |v23|")
    dpp_reduce([24], "v_max_f32")
    e("v_readlane_b32 s70, v24, 63")
    for k, (m, d) in enumerate(((1.0, 26), (8.0, 28), (128.0, 30))):
        e(f"v_mul_f32 v{32+k}, {f2u(-m)}, v19")
        e(f"v_mul_f32 v{36+k}, {f2u(m)}, v20")
    e("v_frexp_exp_i32_f32 v24, s70")
    for k in range(3):
        e(f"v_exp_f32 v{32+k}, v{32+k}")
        e(f"v_fract_f32 v{36+k}, v{36+k}")
    e("v_sub_u32 v25, 0, v24")
    for k in range(3):
        e(f"v_cos_f32 v{40+k}, v{36+k}")
        e(f"v_sin_f32 v{44+k}, v{36+k}")
    e("v_ldexp_f32 v22, v22, v25")
    e("v_ldexp_f32 v23, v23, v25")
    for k, d in enumerate((26, 28, 30)):
        e(f"v_mul_f32 v{d}, v{32+k}, v{40+k}")
        e(f"v_mul_f32 v{d+1}, v{32+k}, v{44+k}")
    e(f"s_mul_i32 s70, s63, 9216")
    e("s_add_u32 s70, s70, s65")
    e("v_lshlrev_b32 v32, 2, v1")
    e("v_add_u32 v32, s70, v32")
    e("v_mul_u32_u24 v33, 288, v6")
    e("v_lshl_add_u32 v33, v7, 4, v33")
    e("v_add_u32 v33, s70, v33")
    AT = 4608
    cur = 22
    for j in range(16):
        if j:
            nxt = 34 if cur != 34 else 36
            cmul(nxt, cur, 28, nxt)
            cur = nxt
        e(f"v_cvt_pk_f16_f32 v38, v{cur}, -v{cur+1}")
        e(f"ds_write_b32 v32, v38 offset:{288*j}")
    for ks in range(4):
        e(f"ds_read_b128 v[{120+4*ks}:{123+4*ks}], v33 offset:{64*ks}")
    e("v_mov_b32 v40, 1.0")
    e("v_mov_b32 v41, 0")
    e("v_mov_b32 v42, v26")
    e("v_mov_b32 v43, v27")
    for r in range(2, 8):
        cmul(40 + 2 * r, 40 + 2 * (r - 1), 26, 40 + 2 * r)
    e("v_mov_b32 v58, v30")
    e("v_mov_b32 v59, v31")
    for i in range(2, 17):
        cmul(56 + 2 * i, 56 + 2 * (i - 1), 30, 56 + 2 * i)
    def Rr(r): return 40 + 2 * r
    def Gi(i): return 56 + 2 * i
    tiles = [
        [(None, r) for r in range(8)] + [(1, r) for r in range(8)],
        [(2, 2 * r) for r in range(4)] + [(3, 2 * r) for r in range(4)] + [(4 + i, 4 * r) for i in range(4) for r in range(2)],
        [(8 + i, 0) for i in range(9)],
    ]
    for i in range(12):
        e(f"v_mov_b32 v{100+i}, 0")
    for T, rows in enumerate(tiles):
        for row, (gi, r) in enumerate(rows):
            tp = 92 + 2 * (row & 3)
            if gi is None:
                src = Rr(r)
            elif r == 0:
                src = Gi(gi)
            else:
                cmul(tp, Gi(gi), Rr(r), tp)
                src = tp
            e(f"v_cvt_pk_f16_f32 v{112 + (row & 3)}, v{src}, v{src+1}")
            e(f"ds_write_b32 v32, v{112 + (row & 3)} offset:{AT + 288*row}")
        for ks in range(4):
            e(f"ds_read_b128 v[{136+16*(T&1)+4*ks}:{139+16*(T&1)+4*ks}], v33 offset:{AT + 64*ks}")
        e("s_waitcnt lgkmcnt(0)")
        a = 100 + 4 * T
        for ks in range(4):
            A = 136 + 16 * (T & 1) + 4 * ks
            e(f"v_mfma_f32_16x16x32_f16 v[{a}:{a+3}], v[{A}:{A+3}], v[{120+4*ks}:{123+4*ks}], v[{a}:{a+3}]")
    stamp()
    e("s_waitcnt vmcnt(0)")
    rep_store()
    e("s_mul_i32 s70, s63, 3072")
    e("s_add_u32 s70, s70, s65")
    e("v_lshlrev_b32 v34, 6, v6")
    e("v_lshl_add_u32 v34, v7, 4, v34")
    e("v_add_u32 v34, s70, v34")
    e("s_lshl_b32 s70, s63, 2")
    e("s_add_u32 s70, s70, s65")
    e("v_mov_b32 v35, s70")
    e("s_nop 3")
    for T in range(3):
        e(f"ds_write_b128 v34, v[{100+4*T}:{103+4*T}] offset:{18432 + 1024*T}")
    e(f"ds_write_b32 v35, v24 offset:{26112}")
    e("s_waitcnt lgkmcnt(0)")
    nonce()
    e("s_barrier")
    e("v_lshlrev_b32 v34, 4, v0")
    e("v_min_u32 v34, 3056, v34")
    e("v_mov_b32 v35, 0")
    for c in range(2):
        e(f"ds_read_b128 v[{40+16*c}:{43+16*c}], v34 offset:{c*CH + 18432}")
        e(f"ds_read_b128 v[{44+16*c}:{47+16*c}], v34 offset:{c*CH + 18432 + 3072}")
        e(f"ds_read_b64 v[{48+16*c}:{49+16*c}], v35 offset:{c*CH + 26112}")
    e("v_lshrrev_b32 v36, 1, v34")
    e("s_waitcnt lgkmcnt(0)")
    for c in range(2):
        b = 40 + 16 * c
        e(f"v_max_i32 v{b+10}, v{b+8}, v{b+9}")
        e(f"v_sub_u32 v{b+8}, v{b+8}, v{b+10}")
        e(f"v_sub_u32 v{b+9}, v{b+9}, v{b+10}")
        for j in range(4):
            e(f"v_ldexp_f32 v{b+j}, v{b+j}, v{b+8}")
            e(f"v_ldexp_f32 v{b+4+j}, v{b+4+j}, v{b+9}")
        for j in range(4):
            e(f"v_add_f32 v{b+j}, v{b+j}, v{b+4+j}")
        e(f"v_cvt_pk_f16_f32 v{b+12}, v{b}, v{b+1}")
        e(f"v_cvt_pk_f16_f32 v{b+13}, v{b+2}, v{b+3}")
        e(f"ds_write_b64 v36, v[{b+12}:{b+13}] offset:{c*CH + 24576}")
    e("s_cmp_eq_u32 s62, 0")
    e("s_cselect_b64 vcc, -1, 0")
    e("s_nop 1")
    e("v_cndmask_b32 v25, v66, v50, vcc")
    e("v_add_u32 v25, 1, v25")
    e("s_waitcnt vmcnt(0) lgkmcnt(0)")
    e("s_barrier")
    def c_():
        e("s_lshl_b32 s70, s61, 2")
        e(f"s_add_u32 s70, s70, {RFL}")
    publish(px, "RF2", c_, 36)
    lab(f"{px}_RF2")
    for c in range(2):
        for i in range(8):
            e(f"ds_read_u16 v{40+8*c+i}, v{230+i} offset:{c*CH + 24576}")
    e("v_lshrrev_b32 v34, 2, v0")
    e("v_lshlrev_b32 v34, 5, v34")
    e("v_bfe_u32 v35, v0, 1, 1")
    e("v_mul_u32_u24 v35, 2560, v35")
    e("v_and_b32 v36, 1, v0")
    e("v_lshl_add_u32 v34, v36, 4, v34")
    e("v_add_u32 v34, v34, v35")
    e("v_bfe_u32 v35, v0, 5, 1")
    e("v_mul_u32_u24 v35, 2560, v35")
    e("v_and_b32 v36, 31, v0")
    e("v_lshl_add_u32 v35, v36, 4, v35")
    e("v_bfe_u32 v36, v0, 6, 1")
    e(f"v_mul_u32_u24 v36, {CH}, v36")
    e("v_add_u32 v35, v35, v36")
    for j in range(4):
        e(f"v_mov_b32 v{64+j}, 0")
    e(f"ds_write_b128 v35, v[64:67] offset:{KB}")
    e("s_waitcnt lgkmcnt(1)")
    for c in range(2):
        for j in range(4):
            e(f"v_lshl_or_b32 v{56+4*c+j}, v{41+8*c+2*j}, 16, v{40+8*c+2*j}")
        if c == 1:
            e(f"v_add_u32 v37, {CH}, v34")
        e(f"ds_write_b128 v{34 if c == 0 else 37}, v[{56+4*c}:{59+4*c}] offset:{KB + 512}")
    if DUMPK:
        srd(36, P_WS, KP_SZ, KP_OFF)
        e("s_mul_i32 s70, s61, 10240")
        e("buffer_store_dwordx4 v[56:59], v34, s[36:39], s70 offen offset:512")
        e("s_add_u32 s70, s70, 5120")
        e("buffer_store_dwordx4 v[60:63], v34, s[36:39], s70 offen offset:512")
        e("s_lshl_b32 s70, s64, 2")
        e(f"s_add_u32 s70, s70, {KP_SZ - 4096}")
        e("v_mov_b32 v36, 0")
        e("buffer_store_dword v25, v36, s[36:39], s70 offen")
    stamp()
    e("s_waitcnt vmcnt(0) lgkmcnt(0)")
    e("s_cmp_eq_u32 s60, 0")
    e(f"s_cbranch_scc0 {px}_W1")
    e("v_lshlrev_b32 v34, 2, v1")
    poll(52, 34, "0", 64, 36, px, ndw=4, sleep=8)
    lab(f"{px}_W1")
    e("s_barrier")
    stamp()
    if "L" in waits:
        uloads()
    e("s_lshl_b32 s70, s63, 7")
    e("v_add_u32 v34, s70, v1")
    e("v_lshlrev_b32 v34, 4, v34")
    e("v_add_u32 v34, s65, v34")
    e("v_lshrrev_b32 v35, 2, v1")
    e(f"v_mul_u32_u24 v35, {CS}, v35")
    e("v_and_b32 v36, 3, v1")
    e("v_lshl_add_u32 v35, v36, 4, v35")
    e(f"s_mul_i32 s70, s63, {4*CS}")
    e("s_add_u32 s70, s70, s65")
    e("v_add_u32 v35, s70, v35")
    for j in range(4):
        e(f"v_mov_b32 v{88+j}, 0")
    e("s_mov_b64 exec, 0xffff")
    e("ds_write_b128 v35, v[88:91] offset:4096")
    e("s_mov_b64 exec, -1")
    e("v_and_b32 v35, 3, v6")
    e("v_sub_u32 v35, 7, v35")
    e(f"v_mul_u32_u24 v35, {CS}, v35")
    e("v_lshrrev_b32 v36, 2, v6")
    e("v_sub_u32 v36, v7, v36")
    e("v_lshl_add_u32 v35, v36, 4, v35")
    e("s_lshl_b32 s70, s63, 6")
    e("s_sub_u32 s70, s65, s70")
    e(f"s_add_u32 s70, s70, {4080 - 64*62}")
    e("v_add_u32 v12, s70, v35")
    e(f"v_subrev_u32 v13, {4*CS}, v12")
    e("v_lshrrev_b32 v35, 1, v7")
    e("v_mul_u32_u24 v35, 2560, v35")
    e("v_lshl_add_u32 v35, v6, 5, v35")
    e("v_and_b32 v36, 1, v7")
    e("v_lshl_add_u32 v35, v36, 4, v35")
    e("s_lshl_b32 s70, s63, 5")
    e("s_sub_u32 s70, s65, s70")
    e(f"s_add_u32 s70, s70, {KB+32}")
    e("v_add_u32 v14, s70, v35")
    for it in range(2):
        I = 168 + 8 * it
        O = 48 + 24 * it
        e(f"s_waitcnt vmcnt({2 - 2*it})")
        for j in range(7):
            e(f"v_alignbit_b32 v{O+j}, v{I+j+1}, v{I+j}, 16")
        off = 1024 * it
        e(f"ds_write_b128 v34, v[{I}:{I+3}] offset:{off}")
        e(f"ds_write_b128 v34, v[{I+2}:{I+5}] offset:{off + 4*CS}")
        e(f"ds_write_b128 v34, v[{O}:{O+3}] offset:{off + 1*CS}")
        e(f"ds_write_b128 v34, v[{O+2}:{O+5}] offset:{off + 5*CS}")
        M = 92 + 16 * it
        for k, (src, s) in enumerate(((I + 1, 2), (I + 3, 6), (O + 1, 3), (O + 3, 7))):
            e(f"v_pk_mov_b32 v[{M+4*k}:{M+4*k+1}], v[{src-1}:{src}], v[{src+1}:{src+2}] op_sel:[1,0]")
            e(f"v_pk_mov_b32 v[{M+4*k+2}:{M+4*k+3}], v[{src+1}:{src+2}], v[{src+3}:{src+4}] op_sel:[1,0]")
            e(f"ds_write_b128 v34, v[{M+4*k}:{M+4*k+3}] offset:{off + s*CS}")
    ACC = 16
    e("v_mov_b32 v10, v25")
    e("v_mov_b32 v11, v15")
    for i in range(32):
        e(f"v_mov_b32 v{ACC+i}, 0")
    stamp()
    e("s_waitcnt vmcnt(0) lgkmcnt(0)")
    e("s_barrier")
    stamp()
    e("s_cmp_eq_u32 s60, 0")
    e(f"s_cbranch_scc0 {px}_RF")
    if os.environ.get("DEFER"):
        e("s_sub_u32 s70, s2, 256")
        e("s_lshl_b32 s70, s70, 2")
        e(f"s_add_u32 s70, s70, {HINT}")
        e("v_mov_b32 v8, 0")
        poll(52, 8, "s70", 1, 9, px, sleep=3)
    lab(f"{px}_RF")
    if os.environ.get("DEFER"):
        e("s_barrier")
    stamp()
    NB = 3
    FR = [48 + 24 * b for b in range(NB)]
    def nI(pp):
        return 4 - (2 * pp) // 16
    def issue_list(pp):
        R = FR[pp % NB]
        out = []
        for h in range(2):
            out.append(f"ds_read_b128 v[{R+4*h}:{R+4*h+3}], v{12+h} offset:{64*(62-2*pp)}")
        for I in range(4 - nI(pp), 4):
            out.append(f"ds_read_b128 v[{R+8+4*I}:{R+11+4*I}], v14 offset:{32*(16*I-2*pp+15)}")
        return out
    cnts = {}
    for pp in range(NB - 1):
        l_ = issue_list(pp); cnts[pp] = len(l_)
        for x in l_: e(x)
    for pp in range(32):
        nxt = issue_list(pp + NB - 1) if pp + NB - 1 < 32 else []
        pend = sum(cnts[k] for k in range(pp + 1, min(32, pp + NB - 1)))
        cnts[pp + NB - 1] = len(nxt)
        e(f"s_waitcnt lgkmcnt({pend})")
        R = FR[pp % NB]
        for I in range(4 - nI(pp), 4):
            for h in range(2):
                a = ACC + 8 * I + 4 * h
                e(f"v_mfma_f32_16x16x32_f16 v[{a}:{a+3}], v[{R+4*h}:{R+4*h+3}], v[{R+8+4*I}:{R+11+4*I}], v[{a}:{a+3}]")
                if nxt: e(nxt.pop(0))
        for x in nxt: e(x)
    e("s_nop 7")
    stamp()
    e("s_barrier")
    e("s_lshl_b32 s70, s63, 12")
    e("s_add_u32 s70, s70, s65")
    e(f"s_add_u32 s70, s70, {CS}")
    e("v_add_u32 v8, s70, v2")
    e("s_xor_b32 s71, s63, 1")
    e("s_lshl_b32 s70, s71, 12")
    e("s_add_u32 s70, s70, s65")
    e(f"s_add_u32 s70, s70, {CS}")
    e("v_add_u32 v9, s70, v2")
    e("s_cmp_eq_u32 s63, 0")
    e(f"s_cbranch_scc1 {px}_P0")
    for t in range(4):
        e(f"ds_write_b128 v8, v[{ACC+4*t}:{ACC+4*t+3}] offset:{1024*t}")
    for i in range(8):
        e(f"v_pk_mov_b32 v[{48+2*i}:{49+2*i}], v[{ACC+16+2*i}:{ACC+17+2*i}], v[{ACC+16+2*i}:{ACC+17+2*i}] op_sel:[0,1]")
    e(f"s_branch {px}_PJ")
    lab(f"{px}_P0")
    for t in range(4):
        e(f"ds_write_b128 v8, v[{ACC+16+4*t}:{ACC+16+4*t+3}] offset:{1024*t}")
    for i in range(8):
        e(f"v_pk_mov_b32 v[{48+2*i}:{49+2*i}], v[{ACC+2*i}:{ACC+1+2*i}], v[{ACC+2*i}:{ACC+1+2*i}] op_sel:[0,1]")
    lab(f"{px}_PJ")
    e("s_waitcnt lgkmcnt(0)")
    e("s_barrier")
    for t in range(4):
        e(f"ds_read_b128 v[{64+4*t}:{67+4*t}], v9 offset:{1024*t}")
    e("v_lshlrev_b32 v5, 6, v6")
    e("v_lshl_add_u32 v5, v7, 4, v5")
    e("s_lshl_b32 s70, s63, 11")
    e("s_sub_u32 s70, s65, s70")
    e(f"s_add_u32 s70, s70, {4080-1024}")
    e("v_sub_u32 v8, s70, v5")
    for Il in range(2):
        e(f"ds_read_b128 v[{80+4*Il}:{83+4*Il}], v8 offset:{1024*(1-Il)}")
    e("s_lshl_b32 s70, s64, 12")
    e("s_lshl_b32 s71, s63, 11")
    e("s_add_u32 s70, s70, s71")
    e("s_waitcnt lgkmcnt(0)")
    for Il in range(2):
        a = 48 + 8 * Il
        for k in range(4):
            e(f"v_pk_add_f32 v[{a+2*k}:{a+2*k+1}], v[{a+2*k}:{a+2*k+1}], v[{64+8*Il+2*k}:{65+8*Il+2*k}]")
        for k in range(8):
            e(f"v_ldexp_f32 v{a+k}, v{a+k}, v10")
        for k in range(4):
            e(f"v_cvt_pk_bf16_f32 v{88+k}, v{a+2*k}, v{a+2*k+1}")
        for k in range(4):
            e(f"v_lshlrev_b32 v{a+2*k}, 16, v{88+k}")
            e(f"v_and_b32 v{a+2*k+1}, s72, v{88+k}")
        U = 80 + 4 * Il
        for k in range(4):
            src = U + 3 - k
            e(f"v_cvt_f32_f16_sdwa v{92+2*k}, v{src} dst_sel:DWORD dst_unused:UNUSED_PAD src0_sel:WORD_1")
            e(f"v_cvt_f32_f16 v{93+2*k}, v{src}")
        for k in range(8):
            e(f"v_mul_f32 v{92+k}, v{92+k}, v11")
        for k in range(4):
            e(f"v_cvt_pk_bf16_f32 v{88+k}, v{92+2*k}, v{93+2*k}")
        for k in range(4):
            e(f"v_lshlrev_b32 v{92+2*k}, 16, v{88+k}")
            e(f"v_and_b32 v{93+2*k}, s72, v{88+k}")
        for k in range(4):
            e(f"v_pk_add_f32 v[{a+2*k}:{a+2*k+1}], v[{a+2*k}:{a+2*k+1}], v[{92+2*k}:{93+2*k}]")
        for k in range(4):
            e(f"v_cvt_pk_bf16_f32 v{100+4*Il+k}, v{a+2*k}, v{a+2*k+1}")
        e(f"buffer_store_dwordx4 v[{100+4*Il}:{103+4*Il}], v5, s[48:51], s70 offen offset:{1024*Il}{SH}")
    stamp()
    e("s_waitcnt vmcnt(0)")
    e("s_barrier")
    def c_():
        e("s_lshl_b32 s70, s61, 2")
        e(f"s_add_u32 s70, s70, {SFL}")
    publish(px, "SF", c_, 36)
    e("s_cmp_eq_u32 s61, 0")
    e(f"s_cbranch_scc0 {px}_SF")
    e("v_lshlrev_b32 v34, 2, v1")
    e(f"s_mov_b32 s70, {RFL}")
    poll(52, 34, "s70", 64, 36, px, ndw=4, sleep=8)
    e("v_lshlrev_b32 v34, 7, v7")
    e("v_lshl_add_u32 v34, v6, 2, v34")
    e(f"s_mov_b32 s70, {HFL}")
    poll(52, 34, "s70", 64, 36, px, ndw=4, sleep=8, step=512)
    e("s_add_u32 s35, s35, 1")
    e("v_mov_b32 v34, 0")
    e("v_mov_b32 v35, s35")
    e(f"s_mov_b32 s70, {EPO}")
    e("s_mov_b64 exec, 1")
    e("buffer_store_dword v35, v34, s[52:55], s70 offen sc1")
    e("s_mov_b64 exec, -1")
    lab(f"{px}_SF")
    stamp_flush()
    e("s_endpgm")


def gen_kernel(name, px):
    kernel_begin(name)
    e("s_cmp_ge_u32 s2, 512")
    e(f"s_cbranch_scc1 {px}_END")
    e("s_load_dwordx16 s[4:19], s[0:1], 0")
    e("s_load_dwordx8 s[20:27], s[0:1], 64")
    e("s_load_dwordx4 s[28:31], s[0:1], 96")
    e("s_load_dwordx2 s[32:33], s[0:1], 112")
    e("v_and_b32 v1, 63, v0")
    e("v_readfirstlane_b32 s60, v0")
    e("v_lshlrev_b32 v2, 4, v1")
    e("s_lshr_b32 s60, s60, 6")
    e("s_waitcnt lgkmcnt(0)")
    e(f"s_add_u32 s36, s32, 0x{FL_OFF:x}")
    e("s_addc_u32 s37, s33, 0")
    e(f"s_load_dword s35, s[36:37], {EPO}")
    if os.environ.get("WARM"):
        srd(40, P_W1, 512 * 1792 * 2)
        srd(44, P_X, 0x200000)
        e("s_and_b32 s61, s2, 7")
        e("s_lshr_b32 s62, s2, 3")
        e("s_lshl_b32 s63, s62, 3")
        e("s_lshl_b32 s64, s60, 1")
        e("s_add_u32 s63, s63, s64")
        e("s_mul_i32 s64, s63, 3584")
        e("s_and_b32 s65, s61, 1")
        e("s_mul_i32 s65, s65, 1792")
        e("s_add_u32 s64, s64, s65")
        e("s_add_u32 s65, s64, 3584")
        e("buffer_load_dwordx4 v[208:211], v2, s[40:43], s64 offen")
        e("buffer_load_dwordx4 v[208:211], v2, s[40:43], s64 offen offset:768")
        e("buffer_load_dwordx4 v[208:211], v2, s[40:43], s65 offen")
        e("buffer_load_dwordx4 v[208:211], v2, s[40:43], s65 offen offset:768")
        e("s_lshr_b32 s65, s61, 1")
        e("s_lshl_b32 s65, s65, 9")
        e("s_add_u32 s65, s65, s63")
        e("s_lshl_b32 s65, s65, 10")
        e("buffer_load_dwordx4 v[208:211], v2, s[44:47], s65 offen")
        e("buffer_load_dwordx4 v[208:211], v2, s[44:47], s65 offen offset:1024")
        if os.environ.get("WARM") == "2":
            e("s_waitcnt vmcnt(0)")
    e("s_cmp_ge_u32 s2, 256")
    e(f"s_cbranch_scc1 {px}_C")
    gen_G(px + "G")
    lab(f"{px}_C")
    gen_C(px + "C")
    lab(f"{px}_END")
    e("s_endpgm")

LDS = 81920
KN = "pf_kernel" if os.environ.get("LIST") or len(sys.argv) > 1 else "recurrent_scan__ssm_conv_s4d__dense_activation_gelu__prompt_kernel"
gen_kernel(KN, "F")
hdr = "; S4D conv + FFN fused op, single launch (generated by gen/gen4.py)\n"
if KN == "pf_kernel":
    hdr += f"; @launch kernel=pf_kernel grid=(512,1,1) block=(256,1,1) lds={LDS}\n"
else:
    hdr += f"; @launch grid=(512,1,1) block=(256,1,1) lds={LDS}\n"
hdr += '.amdgcn_target "amdgcn-amd-amdhsa--gfx950"\n.text\n'
txt = hdr + "\n".join(L) + "\n" + '.section .rodata,"a"\n'
txt += kd(KN, 256, 102, 256)
open(OUT, "w").write(txt)
print("wrote", OUT, len(txt))
```

```python
import struct, sys, os

OUT = sys.argv[1] if len(sys.argv) > 1 else "recurrent_scan__ssm_conv_s4d__dense_activation_gelu__prompt.s"
SPLIT = os.environ.get("SPLIT", "") != ""
STAMP = os.environ.get("STAMP", "") != ""
DUMPK = os.environ.get("DUMPK", "") != ""

L = []
def e(s=""):
    L.append("    " + s)
def lab(s):
    L.append(s + ":")
def f2u(x):
    return "0x%08x" % struct.unpack("<I", struct.pack("<f", x))[0]

XNF_OFF = 0x0;        XNF_SZ = 0x200000
XNB_OFF = 0x200000;   XNB_SZ = 0x200000
W2F_OFF = 0x400000;   W2F_SZ = 8 * 16 * 14336
HF_OFF  = 0x600000;   HF_SZ = 32 * 16 * 14336
ST_OFF  = 0xD80000;   ST_SZ = 512 * 4096
FL_OFF  = 0xF80000;   FL_SZ = 8192
LNF, HFL, SFL, RFL, EPO, HINT = 0, 1024, 3072, 4096, 5120, 6144
W1F_OFF = 0x1400000;  W1F_SZ = 1792 * 1024
KP_OFF  = 0x1000000;  KP_SZ = 512 * 5120
DBG_OFF = 0x1800000

LOG2E = 1.4426950408889634
LOG2E_HI = struct.unpack("<f", struct.pack("<f", LOG2E))[0]
LOG2E_LO = LOG2E - LOG2E_HI
LN2 = 0.6931471805599453
INV2PI = 0.15915494309189535
GC1 = 2 * 0.7978845608028654 * LOG2E
GC2 = GC1 * 0.044715
SPIN_MAX = 1 << 20
FINE = os.environ.get("FINE")
LSC = " sc1" if os.environ.get("LSC") else ""

P_X, P_LAR, P_AIM, P_CR, P_CI, P_LDT, P_DSK = 4, 6, 8, 10, 12, 14, 16
P_W1, P_B1, P_W2, P_B2, P_OUT, P_DBG, P_WS = 20, 22, 24, 26, 28, 30, 32

def srd(dst, ptr, size, off=0):
    if off:
        e(f"s_add_u32 s{dst}, s{ptr}, 0x{off:x}")
        e(f"s_addc_u32 s{dst+1}, s{ptr+1}, 0")
    else:
        e(f"s_mov_b32 s{dst}, s{ptr}")
        e(f"s_mov_b32 s{dst+1}, s{ptr+1}")
    e(f"s_mov_b32 s{dst+2}, 0x{size:x}")
    e(f"s_mov_b32 s{dst+3}, 0x00020000")

_st = [0]
KIDX = [0]
def stamp(reset=False):
    if not STAMP: return
    if reset:
        _st[0] = 0
        e("s_memrealtime s[78:79]")
    k = _st[0]; _st[0] += 1
    assert k < 28
    e("s_memtime s[100:101]")
    e("s_waitcnt lgkmcnt(0)")
    if k < 20:
        e(f"s_mov_b32 s{80+k}, s100")
    else:
        e(f"v_mov_b32 v{250+k-20}, s100")
def stamp_flush():
    if not STAMP: return
    stamp()
    e("s_mov_b64 exec, 1")
    e("s_memrealtime s[100:101]")
    srd(36, P_WS, 0x80000, DBG_OFF + KIDX[0] * 0x80000)
    e("v_readfirstlane_b32 s40, v0")
    e("s_lshr_b32 s40, s40, 6")
    e("s_lshl_b32 s41, s2, 2")
    e("s_add_u32 s40, s40, s41")
    e("s_lshl_b32 s40, s40, 7")
    e("v_mov_b32 v1, 0")
    e("s_waitcnt lgkmcnt(0)")
    e("v_mov_b32 v2, s100")
    e("v_mov_b32 v3, s78")
    e(f"v_mov_b32 v4, {_st[0]}")
    e("buffer_store_dwordx3 v[2:4], v1, s[36:39], s40 offen")
    for k in range(_st[0]):
        e(f"v_mov_b32 v5, s{80+k}" if k < 20 else f"v_mov_b32 v5, v{250+k-20}")
        e(f"buffer_store_dword v5, v1, s[36:39], s40 offen offset:{16+4*k}")
        e("s_nop 1")
    e("s_mov_b64 exec, -1")

def kernel_begin(name):
    L.append(f".globl {name}")
    L.append(".p2align 8")
    L.append(f".type {name},@function")
    lab(name)

def kd(name, vgpr, sgpr, accum):
    return f""".p2align 6
.amdhsa_kernel {name}
  .amdhsa_next_free_vgpr {vgpr}
  .amdhsa_next_free_sgpr {sgpr}
  .amdhsa_accum_offset {accum}
  .amdhsa_group_segment_fixed_size 0
  .amdhsa_kernarg_size 120
  .amdhsa_user_sgpr_count 2
  .amdhsa_user_sgpr_kernarg_segment_ptr 1
  .amdhsa_system_sgpr_workgroup_id_x 1
.end_amdhsa_kernel
"""

def cmul(d, x, y, t):
    e(f"v_pk_mul_f32 v[{t}:{t+1}], v[{x}:{x+1}], v[{y}:{y+1}] op_sel:[0,0] op_sel_hi:[0,1]")
    e(f"v_pk_fma_f32 v[{d}:{d+1}], v[{x}:{x+1}], v[{y}:{y+1}], v[{t}:{t+1}] op_sel:[1,1,0] op_sel_hi:[1,0,1] neg_lo:[1,0,0]")

_uid = [0]
def poll(srd_r, voff, soff, nlanes, vt, tag, ndw=1, sleep=4):
    _uid[0] += 1
    lb = f"POLL_{tag}_{_uid[0]}"
    e(f"s_mov_b32 s76, {SPIN_MAX}")
    if nlanes < 64:
        e(f"s_mov_b32 s74, 0x{(1 << nlanes) - 1:x}")
        e("s_mov_b32 s75, 0")
    else:
        e("s_mov_b64 s[74:75], -1")
    lab(lb)
    for k in range(ndw):
        e(f"buffer_load_dword v{vt+k}, v{voff}, s[{srd_r}:{srd_r+3}], {soff} offen offset:{256*k} sc1")
    e("s_waitcnt vmcnt(0)")
    for k in range(1, ndw):
        e(f"v_xor_b32 v{vt+k}, s34, v{vt+k}")
    e(f"v_xor_b32 v{vt}, s34, v{vt}")
    for k in range(1, ndw):
        e(f"v_or_b32 v{vt}, v{vt}, v{vt+k}")
    e(f"v_cmp_ne_u32 vcc, 0, v{vt}")
    e("s_and_b64 vcc, vcc, s[74:75]")
    e(f"s_cbranch_scc0 {lb}_D")
    e(f"s_sleep {sleep}")
    e("s_sub_u32 s76, s76, 1")
    e("s_cmp_lg_u32 s76, 0")
    e(f"s_cbranch_scc1 {lb}")
    lab(lb + "_D")

def nonce():
    e("s_mul_i32 s34, s35, 0x9E3779B1")
    e("s_xor_b32 s34, s34, 0x85EBCA6B")

def publish(px, tag, soff_code, vt):
    e("s_cmp_eq_u32 s60, 0")
    e(f"s_cbranch_scc0 {px}_{tag}")
    soff_code()
    e(f"v_mov_b32 v{vt}, 0")
    e(f"v_mov_b32 v{vt+1}, s34")
    e("s_mov_b64 exec, 1")
    e(f"buffer_store_dword v{vt+1}, v{vt}, s[52:55], s70 offen sc1")
    e("s_mov_b64 exec, -1")

def dpp_reduce(regs, op):
    steps = ["quad_perm:[1,0,3,2] row_mask:0xf bank_mask:0xf", "quad_perm:[2,3,0,1] row_mask:0xf bank_mask:0xf",
             "row_half_mirror row_mask:0xf bank_mask:0xf", "row_mirror row_mask:0xf bank_mask:0xf",
             "row_bcast:15 row_mask:0xa bank_mask:0xf", "row_bcast:31 row_mask:0xc bank_mask:0xf"]
    for st in steps:
        e(f"s_nop {1 if len(regs) < 2 else 0}" if len(regs) < 3 else "s_nop 0")
        for r in regs:
            e(f"{op}_dpp v{r}, v{r}, v{r} {st}")
    e("s_nop 0")

class VM:
    def __init__(self): self.ops = []
    def add(self, tag, n=1): self.ops += [tag] * n
    def wait(self, *tags):
        idx = [i for i, o in enumerate(self.ops) if o in tags]
        if not idx: return
        n = len(self.ops) - 1 - max(idx)
        assert n < 64
        e(f"s_waitcnt vmcnt({n})")
    def drained(self): self.ops = []

def gen_G(px):
    vm = VM()
    stamp(True)
    e("s_setprio 2")
    e("s_and_b32 s61, s2, 7")
    e("s_lshr_b32 s62, s2, 3")
    e("s_lshr_b32 s63, s61, 1")
    e("s_lshl_b32 s63, s63, 2")
    e("s_lshr_b32 s67, s62, 3")
    e("s_add_u32 s63, s63, s67")
    e("s_and_b32 s64, s61, 1")
    e("s_lshl_b32 s64, s64, 3")
    e("s_and_b32 s66, s62, 7")
    e("s_add_u32 s64, s64, s66")
    e("s_lshl_b32 s65, s61, 2")
    e("s_add_u32 s65, s65, s67")
    SB = 14336
    srd(36, P_X, 0x200000)
    e("s_lshl_b32 s67, s2, 13")
    e("s_lshl_b32 s68, s60, 11")
    e("s_add_u32 s67, s67, s68")
    e("buffer_load_dwordx4 v[64:67], v2, s[36:39], s67 offen")
    e("buffer_load_dwordx4 v[68:71], v2, s[36:39], s67 offen offset:1024")
    vm.add("x", 2)
    srd(40, P_W1, 512 * 1792 * 2)
    srd(44, P_WS, XNF_SZ, XNF_OFF)
    srd(48, P_WS, XNB_SZ, XNB_OFF)
    srd(52, P_WS, FL_SZ, FL_OFF)
    srd(56, P_B2, 1024)
    e("s_mul_i32 s70, s60, 224")
    e("s_mov_b32 s72, 4682")
    for q in range(4):
        e(f"v_add_u32 v{60+q}, s70, v1")
        if q:
            e(f"v_add_u32 v{60+q}, {64*q}, v{60+q}")
        e(f"v_mul_lo_u32 v230, v{60+q}, s72")
        e("v_lshrrev_b32 v230, 16, v230")
        e("v_mul_u32_u24 v231, 14, v230")
        e(f"v_sub_u32 v231, v{60+q}, v231")
        e("v_mul_u32_u24 v230, 3584, v230")
        e(f"v_lshl_add_u32 v{60+q}, v231, 4, v230")
    e("s_mul_i32 s61, s64, 224")
    e("s_mul_i32 s62, s60, 3584")
    e("s_mov_b32 s72, 0xffff0000")
    ROT = os.environ.get("ROT")
    def dma(s, buf):
        if ROT:
            e(f"s_add_u32 s68, s66, {s}")
            e("s_and_b32 s68, s68, 7")
            e(f"s_mul_i32 s68, s68, {64*3584}")
            e("s_add_u32 s68, s68, s61")
        else:
            e(f"s_add_u32 s68, s61, {s*64*3584}")
        for q in range(4):
            e(f"s_add_u32 s70, s62, {buf*SB + q*1024}")
            e("s_mov_b32 m0, s70")
            if q == 3:
                e("s_mov_b32 exec_hi, 0")
            else:
                e("s_nop 0")
            e(f"buffer_load_dwordx4 v{60+q}, s[40:43], s68 offen lds")
        e("s_mov_b64 exec, -1")
        vm.add(("D", s), 4)
    def bload(s):
        R = 64 + 16 * (s % 6)
        if ROT:
            e(f"s_add_u32 s70, s66, {s}")
            e("s_and_b32 s70, s70, 7")
            e("s_lshl_b32 s70, s70, 11")
            e("s_add_u32 s70, s70, s73")
            e("s_add_u32 s71, s70, 16384")
        else:
            e(f"s_add_u32 s70, s73, {s*2048}")
            e(f"s_add_u32 s71, s73, {s*2048 + 16384}")
        for j in range(2):
            for k in range(2):
                r = R + 8 * j + 4 * k
                e(f"buffer_load_dwordx4 v[{r}:{r+3}], v2, s[44:47], s{70 if j == 0 else 71} offen offset:{1024*k}{LSC}")
        vm.add(("B", s), 4)
    ED = int(os.environ.get("ED", "2"))
    for s in range(ED):
        dma(s, s)
    srd(36, P_B1, 1792 * 2)
    e("v_lshrrev_b32 v235, 4, v1")
    e("v_lshlrev_b32 v235, 3, v235")
    for i in range(7):
        e(f"buffer_load_dwordx2 v[{216+2*i}:{217+2*i}], v235, s[36:39], s61 offen offset:{32*i}")
    vm.add("b1", 7)
    LT = 4 * SB; LP = 1040; T2 = LT + 8 * LP
    e(f"s_mov_b32 s73, {f2u(1.0/512)}")
    stamp()
    vm.wait("x")
    stamp()
    for i in range(2):
        for j in range(4):
            e(f"v_lshlrev_b32 v{72+8*i+2*j}, 16, v{64+4*i+j}")
            e(f"v_and_b32 v{73+8*i+2*j}, s72, v{64+4*i+j}")
    for i in range(2):
        b = 72 + 8 * i; t = 88 + 4 * i
        e(f"v_pk_add_f32 v[{t}:{t+1}], v[{b}:{b+1}], v[{b+2}:{b+3}]")
        e(f"v_pk_add_f32 v[{t+2}:{t+3}], v[{b+4}:{b+5}], v[{b+6}:{b+7}]")
    for i in range(2):
        t = 88 + 4 * i
        e(f"v_pk_add_f32 v[{t}:{t+1}], v[{t}:{t+1}], v[{t+2}:{t+3}]")
    for i in range(2):
        t = 88 + 4 * i
        e(f"v_add_f32 v{t}, v{t}, v{t+1}")
    dpp_reduce([88, 92], "v_add_f32")
    e("v_readlane_b32 s70, v88, 63")
    e("v_readlane_b32 s71, v92, 63")
    e("v_mov_b32 v90, s73")
    e("s_nop 0")
    e("v_mul_f32 v89, s70, v90")
    e("v_mul_f32 v93, s71, v90")
    e("v_mov_b32 v88, v89")
    e("v_mov_b32 v92, v93")
    for i in range(2):
        b = 72 + 8 * i; m = 88 + 4 * i; d = 96 + 8 * i
        for j in range(4):
            e(f"v_pk_add_f32 v[{d+2*j}:{d+2*j+1}], v[{b+2*j}:{b+2*j+1}], v[{m}:{m+1}] neg_lo:[0,1] neg_hi:[0,1]")
    for i in range(2):
        d = 96 + 8 * i; t = 112 + 2 * i
        e(f"v_pk_mul_f32 v[{t}:{t+1}], v[{d}:{d+1}], v[{d}:{d+1}]")
    for j in range(1, 4):
        for i in range(2):
            d = 96 + 8 * i; t = 112 + 2 * i
            e(f"v_pk_fma_f32 v[{t}:{t+1}], v[{d+2*j}:{d+2*j+1}], v[{d+2*j}:{d+2*j+1}], v[{t}:{t+1}]")
    e("v_add_f32 v112, v112, v113")
    e("v_add_f32 v114, v114, v115")
    dpp_reduce([112, 114], "v_add_f32")
    e("v_readlane_b32 s70, v112, 63")
    e("v_readlane_b32 s71, v114, 63")
    e(f"s_mov_b32 s73, {f2u(1e-5)}")
    e("v_cvt_pk_bf16_f32 v116, v89, v93")
    e("v_mul_f32 v112, s70, v90")
    e("v_mul_f32 v113, s71, v90")
    e("v_lshlrev_b32 v89, 16, v116")
    e("v_and_b32 v93, s72, v116")
    e("v_lshlrev_b32 v88, 16, v116")
    e("v_and_b32 v92, s72, v116")
    def rnd2(a, b):
        e(f"v_cvt_pk_bf16_f32 v116, v{a}, v{b}")
        e(f"v_lshlrev_b32 v{a}, 16, v116")
        e(f"v_and_b32 v{b}, s72, v116")
    rnd2(112, 113)
    e("v_add_f32 v112, s73, v112")
    e("v_add_f32 v113, s73, v113")
    rnd2(112, 113)
    e("v_sqrt_f32 v112, v112")
    e("v_sqrt_f32 v113, v113")
    e("s_nop 0")
    rnd2(112, 113)
    e("v_rcp_f32 v91, v112")
    e("v_rcp_f32 v95, v113")
    e("s_nop 0")
    e("v_fma_f32 v114, -v112, v91, 1.0")
    e("v_fma_f32 v115, -v113, v95, 1.0")
    e("v_fmac_f32 v91, v91, v114")
    e("v_fmac_f32 v95, v95, v115")
    e("v_mov_b32 v90, v91")
    e("v_mov_b32 v94, v95")
    for i in range(2):
        b = 72 + 8 * i; m = 88 + 4 * i; d = 96 + 8 * i; P = 64 + 4 * i; H = 120 + 4 * i
        for j in range(4):
            e(f"v_pk_add_f32 v[{d+2*j}:{d+2*j+1}], v[{b+2*j}:{b+2*j+1}], v[{m}:{m+1}] neg_lo:[0,1] neg_hi:[0,1]")
        for j in range(4):
            e(f"v_cvt_pk_bf16_f32 v{P+j}, v{d+2*j}, v{d+2*j+1}")
        for j in range(4):
            e(f"v_lshlrev_b32 v{d+2*j}, 16, v{P+j}")
            e(f"v_and_b32 v{d+2*j+1}, s72, v{P+j}")
        for j in range(4):
            e(f"v_pk_mul_f32 v[{d+2*j}:{d+2*j+1}], v[{d+2*j}:{d+2*j+1}], v[{m+2}:{m+3}]")
        for j in range(4):
            e(f"v_cvt_pk_bf16_f32 v{P+j}, v{d+2*j}, v{d+2*j+1}")
        for j in range(4):
            e(f"v_lshlrev_b32 v{d+2*j}, 16, v{P+j}")
            e(f"v_and_b32 v{d+2*j+1}, s72, v{P+j}")
        for j in range(4):
            e(f"v_cvt_pk_f16_f32 v{H+j}, v{d+2*j}, v{d+2*j+1}")
    e(f"s_mul_i32 s70, s60, {2*LP}")
    e(f"s_add_u32 s70, s70, {LT}")
    e("v_add_u32 v230, s70, v2")
    for i in range(2):
        e(f"ds_write_b128 v230, v[{64+4*i}:{67+4*i}] offset:{LP*i}")
        e(f"ds_write_b128 v230, v[{120+4*i}:{123+4*i}] offset:{T2 - LT + LP*i}")
    stamp()
    e("s_waitcnt lgkmcnt(0)")
    nonce()
    e("s_barrier")
    e("s_cmp_ge_u32 s60, 2")
    e(f"s_cbranch_scc1 {px}_LNB")
    e("v_and_b32 v230, 7, v1")
    e("v_lshrrev_b32 v231, 5, v1")
    e("v_bfe_u32 v232, v1, 3, 2")
    e(f"v_mul_u32_u24 v233, {LP}, v230")
    e("v_lshl_add_u32 v233, v231, 6, v233")
    e("v_lshl_add_u32 v233, v232, 3, v233")
    e("s_lshl_b32 s70, s60, 9")
    e("v_add_u32 v233, s70, v233")
    e("v_lshlrev_b32 v234, 10, v231")
    e("v_lshl_add_u32 v234, v232, 8, v234")
    e("v_lshl_add_u32 v234, v230, 4, v234")
    for q in range(4):
        e(f"ds_read_b64 v[{64+4*q}:{65+4*q}], v233 offset:{LT + 128*q}")
        e(f"ds_read_b64 v[{66+4*q}:{67+4*q}], v233 offset:{LT + 128*q + 32}")
    e("s_lshr_b32 s70, s2, 1")
    e("s_lshl_b32 s70, s70, 14")
    e("s_and_b32 s71, s2, 1")
    e("s_lshl_b32 s71, s71, 7")
    e("s_add_u32 s70, s70, s71")
    e("s_lshl_b32 s71, s60, 13")
    e("s_add_u32 s70, s70, s71")
    for q in range(4):
        e(f"s_waitcnt lgkmcnt({6-2*q})")
        if q == 2:
            e("s_add_u32 s70, s70, 4096")
        e(f"buffer_store_dwordx4 v[{64+4*q}:{67+4*q}], v234, s[44:47], s70 offen offset:{2048*(q&1)} sc1")
    e(f"s_branch {px}_LNJ")
    lab(f"{px}_LNB")
    e("v_lshrrev_b32 v230, 4, v1")
    e("v_bfe_u32 v231, v1, 2, 2")
    e("v_and_b32 v232, 3, v1")
    e("v_sub_u32 v231, 3, v231")
    e(f"v_mul_u32_u24 v233, {LP}, v231")
    e("v_lshl_add_u32 v233, v230, 5, v233")
    e("v_lshl_add_u32 v233, v232, 3, v233")
    e("s_sub_u32 s71, s60, 2")
    e("s_lshl_b32 s70, s71, 9")
    e(f"s_add_u32 s70, s70, {T2}")
    e("v_add_u32 v233, s70, v233")
    for q in range(4):
        e(f"ds_read_b64_tr_b16 v[{64+4*q}:{65+4*q}], v233 offset:{4*LP + 128*q}")
        e(f"ds_read_b64_tr_b16 v[{66+4*q}:{67+4*q}], v233 offset:{128*q}")
    e("s_lshl_b32 s70, s2, 13")
    e("s_lshl_b32 s71, s71, 12")
    e("s_add_u32 s70, s70, s71")
    for q in range(4):
        e(f"s_waitcnt lgkmcnt({6-2*q})")
        e(f"buffer_store_dwordx4 v[{64+4*q}:{67+4*q}], v2, s[48:51], s70 offen offset:{1024*q} sc1")
    lab(f"{px}_LNJ")
    stamp()
    e("s_waitcnt vmcnt(0)")
    vm.drained()
    e("s_barrier")
    stamp()
    def c_():
        e("s_lshl_b32 s70, s2, 2")
    publish(px, "LNF", c_, 230)
    lab(f"{px}_LNF")
    for s in range(ED, 5):
        dma(s, s)
    for i in range(7):
        for j in range(2):
            a = 4 + 8 * i + 4 * j
            e(f"v_lshlrev_b32 v{a}, 16, v{216+2*i}")
            e(f"v_and_b32 v{a+1}, s72, v{216+2*i}")
            e(f"v_lshlrev_b32 v{a+2}, 16, v{217+2*i}")
            e(f"v_and_b32 v{a+3}, s72, v{217+2*i}")
    e("v_lshrrev_b32 v230, 2, v1")
    e("v_mul_u32_u24 v3, 224, v230")
    e("v_and_b32 v230, 3, v1")
    e("v_lshl_add_u32 v3, v230, 3, v3")
    e("v_add_u32 v248, 0x8000, v3")
    e("v_lshlrev_b32 v245, 2, v1")
    e("s_lshl_b32 s67, s63, 3")
    e("s_lshl_b32 s70, s60, 1")
    e("s_add_u32 s67, s67, s70")
    e("s_lshl_b32 s73, s67, 14")
    srd(48, P_X, 0x200000)
    stamp()
    e("s_lshl_b32 s70, s63, 6")
    e("s_lshl_b32 s71, s60, 4")
    e("s_add_u32 s70, s70, s71")
    poll(52, 245, "s70", 4, 230, px, sleep=2)
    vm.drained()
    stamp()
    for s in range(4):
        bload(s)
    def xloads():
        e("v_lshrrev_b32 v231, 3, v1")
        e("v_and_b32 v232, 7, v1")
        e("v_lshlrev_b32 v233, 10, v231")
        e("v_lshl_add_u32 v233, v232, 4, v233")
        e("v_lshlrev_b32 v249, 12, v231")
        e("v_lshl_add_u32 v249, v232, 4, v249")
        e("s_lshl_b32 s70, s65, 16")
        e("s_lshl_b32 s71, s60, 14")
        e("s_add_u32 s70, s70, s71")
        e("s_lshl_b32 s71, s66, 7")
        e("s_add_u32 s70, s70, s71")
        e("s_lshl_b32 s71, s60, 11")
        e(f"s_add_u32 s71, s71, 73728")
        for q in range(2):
            e("s_mov_b32 m0, s71")
            e("s_nop 0")
            e("buffer_load_dwordx4 v233, s[48:51], s70 offen lds")
            if q == 0:
                e("s_add_u32 s70, s70, 8192")
                e("s_add_u32 s71, s71, 1024")
        vm.add("xt", 2)
        e("s_lshl_b32 s70, s66, 7")
        for i in range(4):
            e(f"buffer_load_dwordx2 v[{236+2*i}:{237+2*i}], v235, s[56:59], s70 offen offset:{32*i}")
        vm.add("b2", 4)
    AR = [160, 188]
    def lds_a_list(u):
        s, ksl = u >> 1, u & 1
        dst = AR[u & 1]
        out = []
        for i in range(7):
            for e2 in range(2):
                off = (s % 5)*SB + (32*ksl+16*e2)*224 + 32*i
                if off >= 0x8000:
                    out.append(f"ds_read_b64_tr_b16 v[{dst+4*i+2*e2}:{dst+4*i+2*e2+1}], v248 offset:{off - 0x8000}")
                else:
                    out.append(f"ds_read_b64_tr_b16 v[{dst+4*i+2*e2}:{dst+4*i+2*e2+1}], v3 offset:{off}")
        return out
    vm.wait(("D", 0), ("B", 0))
    e("s_barrier")
    stamp()
    for x in lds_a_list(0): e(x)
    for u in range(16):
        nxt = []
        if u + 1 < 16:
            if (u + 1) % 2 == 0:
                sn = (u + 1) >> 1
                if FINE and sn in (3, 5): stamp()
                vm.wait(("D", sn), ("B", sn))
                if FINE and sn in (3, 5): stamp()
                e("s_barrier")
                if sn == 4 or (FINE and sn in (3, 5)): stamp()
            nxt = lds_a_list(u + 1)
        e("s_waitcnt lgkmcnt(0)")
        s, ksl = u >> 1, u & 1
        R = 64 + 16 * (s % 6)
        A = AR[u & 1]
        for i in range(7):
            for j in range(2):
                a = 4 + 8 * i + 4 * j
                b = R + 8 * j + 4 * ksl
                e(f"v_mfma_f32_16x16x32_bf16 v[{a}:{a+3}], v[{A+4*i}:{A+4*i+3}], v[{b}:{b+3}], v[{a}:{a+3}]")
                if nxt: e(nxt.pop(0))
        if u % 2 == 1:
            sn = (u + 1) >> 1
            if sn >= 2 and sn + 3 < 8:
                dma(sn + 3, (sn + 3) % 5)
            if sn + 3 < 8:
                bload(sn + 3)
            if sn == 5:
                xloads()
    vm.drained()
    stamp()
    if os.environ.get("DEFER"):
        def c_():
            e("s_lshl_b32 s70, s2, 2")
            e(f"s_add_u32 s70, s70, {HINT}")
        publish(px, "HN", c_, 230)
        lab(f"{px}_HN")
    srd(36, P_WS, W2F_SZ, W2F_OFF)
    srd(40, P_WS, HF_SZ, HF_OFF)
    srd(44, P_WS, ST_SZ, ST_OFF)
    srd(48, P_OUT, 0x200000)
    NA, NB = 6, 4
    AREG = [68 + 16 * k for k in range(NA)]
    BREG = [164 + 16 * k for k in range(NB)]
    LA0, LA1 = NA, NA + 4
    def g2load(kind, k):
        fbl, q = k >> 2, k & 3
        R = (AREG[k % NA] if kind == "A" else BREG[k % NB])
        sr = 36 if kind == "A" else 40
        base = 68 if kind == "A" else 69
        sc = LSC
        e(f"s_add_u32 s70, s{base}, {fbl*14336 + q*4096}")
        for i in range(4):
            if q < 3:
                e(f"buffer_load_dwordx4 v[{R+4*i}:{R+4*i+3}], v2, s[{sr}:{sr+3}], s70 offen offset:{1024*i}{sc}")
            else:
                e(f"buffer_load_dwordx2 v[{R+4*i}:{R+4*i+1}], v244, s[{sr}:{sr+3}], s70 offen offset:{512*i}{sc}")
        vm.add((kind, k), 4)
    def g2dma(k):
        fbl, q = k >> 2, k & 3
        e(f"s_add_u32 s70, s68, {fbl*14336 + q*4096}")
        e(f"s_add_u32 s71, s35, {(k-LA0)*4096}")
        e("s_mov_b32 m0, s71")
        e("s_nop 0")
        n = 4 if q < 3 else 2
        for i in range(n):
            e(f"buffer_load_dwordx4 v2, s[36:39], s70 offen offset:{1024*i}{LSC} lds")
        vm.add(("L", k), n)
    def g2ldsread(k):
        q = k & 3
        R = AREG[k % NA]
        for i in range(4):
            if q < 3:
                e(f"ds_read_b128 v[{R+4*i}:{R+4*i+3}], v246 offset:{(k-LA0)*4096 + 1024*i}")
            else:
                e(f"ds_read_b64 v[{R+4*i}:{R+4*i+1}], v247 offset:{(k-LA0)*4096 + 512*i}")
    e("v_lshlrev_b32 v244, 3, v1")
    e("v_lshlrev_b32 v245, 2, v1")
    e("s_lshl_b32 s70, s66, 4")
    e("s_lshl_b32 s71, s60, 2")
    e("s_add_u32 s70, s70, s71")
    e("s_mul_i32 s68, s70, 14336")
    e("s_lshl_b32 s70, s65, 4")
    e("s_add_u32 s70, s70, s71")
    e("s_mul_i32 s69, s70, 14336")
    e(f"s_mov_b32 s74, {f2u(-GC2)}")
    e(f"s_mov_b32 s75, {f2u(-GC2)}")
    e(f"v_mov_b32 v246, {f2u(-GC1)}")
    e(f"v_mov_b32 v247, {f2u(-GC1)}")
    e("s_lshr_b32 s70, s67, 2")
    e("s_lshl_b32 s70, s70, 4")
    e("s_add_u32 s70, s70, s64")
    e("s_mul_i32 s70, s70, 14336")
    e("s_and_b32 s71, s67, 3")
    e("s_lshl_b32 s73, s71, 9")
    e("s_add_u32 s73, s73, s70")
    e("s_add_u32 s73, s73, 12288")
    e("s_lshl_b32 s71, s71, 10")
    e("s_add_u32 s70, s70, s71")
    def gelu_pairs(pairs, outs):
        T = [164 + 2 * k for k in range(len(pairs))]
        for a, t in zip(pairs, T):
            e(f"v_pk_mul_f32 v[{t}:{t+1}], v[{a}:{a+1}], v[{a}:{a+1}]")
        for a, t in zip(pairs, T):
            e(f"v_pk_fma_f32 v[{t}:{t+1}], v[{t}:{t+1}], s[74:75], v[246:247]")
        for a, t in zip(pairs, T):
            e(f"v_pk_mul_f32 v[{t}:{t+1}], v[{a}:{a+1}], v[{t}:{t+1}]")
        for t in T:
            e(f"v_exp_f32 v{t}, v{t}")
            e(f"v_exp_f32 v{t+1}, v{t+1}")
        e("s_nop 0")
        for t in T:
            e(f"v_pk_add_f32 v[{t}:{t+1}], v[{t}:{t+1}], 1.0 op_sel_hi:[1,0]")
        for t in T:
            e(f"v_rcp_f32 v{t}, v{t}")
            e(f"v_rcp_f32 v{t+1}, v{t+1}")
        e("s_nop 0")
        for a, t in zip(pairs, T):
            e(f"v_pk_mul_f32 v[{t}:{t+1}], v[{a}:{a+1}], v[{t}:{t+1}]")
        for t, o in zip(T, outs):
            e(f"v_cvt_pk_bf16_f32 v{o}, v{t}, v{t+1}")
    cnt = 0
    for q in range(3):
        for j in range(2):
            a0 = 4 + 8 * (2 * q) + 4 * j; a1 = 4 + 8 * (2 * q + 1) + 4 * j
            O = 176 + 4 * (cnt % 8); cnt += 1
            gelu_pairs([a0, a0 + 2, a1, a1 + 2], [O, O + 1, O + 2, O + 3])
            e(f"buffer_store_dwordx4 v[{O}:{O+3}], v2, s[40:43], s70 offen offset:{1024*j} sc1")
        if q < 2:
            e("s_add_u32 s70, s70, 4096")
    a0 = 4 + 48; a1 = 4 + 48 + 4
    O = 176 + 4 * (cnt % 8)
    gelu_pairs([a0, a0 + 2, a1, a1 + 2], [O, O + 1, O + 2, O + 3])
    e(f"buffer_store_dwordx2 v[{O}:{O+1}], v244, s[40:43], s73 offen sc1")
    e(f"buffer_store_dwordx2 v[{O+2}:{O+3}], v244, s[40:43], s73 offen offset:512 sc1")
    stamp()
    e("s_waitcnt vmcnt(0)")
    e("s_barrier")
    stamp()
    def c_():
        e("s_lshl_b32 s70, s63, 5")
        e("s_add_u32 s70, s70, s64")
        e("s_lshl_b32 s70, s70, 2")
        e(f"s_add_u32 s70, s70, {HFL}")
    publish(px, "HF", c_, 230)
    lab(f"{px}_HF")
    e("s_lshl_b32 s70, s66, 7")
    e(f"s_add_u32 s70, s70, {RFL}")
    poll(52, 245, "s70", 32, 230, px)
    e("s_lshl_b32 s35, s60, 14")
    e("v_add_u32 v246, s35, v2")
    e("v_add_u32 v247, s35, v244")
    e("s_lshr_b32 s3, s65, 1")
    e("s_lshl_b32 s3, s3, 7")
    e("s_lshl_b32 s70, s60, 4")
    e("s_add_u32 s3, s3, s70")
    e(f"s_add_u32 s3, s3, {HFL}")
    e("s_mov_b32 s61, 0")
    def hwait(j):
        _uid[0] += 1
        lb = f"{px}_HW{_uid[0]}"
        e(f"s_bitcmp1_b32 s61, {j}")
        e(f"s_cbranch_scc1 {lb}_D")
        e(f"s_mov_b32 s76, {SPIN_MAX}")
        lab(lb)
        e("buffer_load_dword v230, v245, s[52:55], s3 offen sc1")
        e("s_waitcnt vmcnt(0)")
        e("v_cmp_eq_u32 vcc, s34, v230")
        e("s_and_b32 s61, vcc_lo, 15")
        e(f"s_bitcmp1_b32 s61, {j}")
        e(f"s_cbranch_scc1 {lb}_D")
        e("s_sleep 2")
        e("s_sub_u32 s76, s76, 1")
        e("s_cmp_lg_u32 s76, 0")
        e(f"s_cbranch_scc1 {lb}")
        lab(lb + "_D")
    for k in range(NA):
        g2load("A", k)
    for k in range(LA0, LA1):
        g2dma(k)
    for i in range(64):
        e(f"v_mov_b32 v{4+i}, 0")
    hwait(0)
    stamp()
    for k in range(NB):
        g2load("B", k)
    for k in range(16):
        vm.wait(("A", k), ("B", k))
        if LA0 <= k < LA1:
            e("s_waitcnt lgkmcnt(0)")
        if k in (0, 8): stamp()
        q = k & 3
        A = AREG[k % NA]; B = BREG[k % NB]
        for i in range(4):
            for j in range(4):
                a = 4 + 16 * j + 4 * i
                if q < 3:
                    e(f"v_mfma_f32_16x16x32_bf16 v[{a}:{a+3}], v[{A+4*i}:{A+4*i+3}], v[{B+4*j}:{B+4*j+3}], v[{a}:{a+3}]")
                else:
                    e(f"v_mfma_f32_16x16x16_bf16 v[{a}:{a+3}], v[{A+4*i}:{A+4*i+1}], v[{B+4*j}:{B+4*j+1}], v[{a}:{a+3}]")
        if k + NB < 16:
            if (k + NB) % 4 == 0:
                hwait((k + NB) // 4)
            g2load("B", k + NB)
        if k + NA < 16:
            if LA0 <= k + NA < LA1:
                g2ldsread(k + NA)
            else:
                g2load("A", k + NA)
    vm.drained()
    stamp()
    e("s_cmp_eq_u32 s60, 0")
    e(f"s_cbranch_scc0 {px}_SW")
    e("s_lshl_b32 s70, s66, 7")
    e(f"s_add_u32 s70, s70, {SFL}")
    poll(52, 245, "s70", 32, 230, px)
    lab(f"{px}_SW")
    e("s_barrier")
    e("s_lshl_b32 s70, s66, 18")
    e("s_lshl_b32 s71, s60, 16")
    e("s_add_u32 s70, s70, s71")
    e("s_lshl_b32 s71, s65, 7")
    e("s_add_u32 s70, s70, s71")
    e("s_lshl_b32 s71, s60, 11")
    e("s_add_u32 s71, s71, 65536")
    for q in range(2):
        e("s_mov_b32 m0, s71")
        e("s_nop 0")
        e(f"buffer_load_dwordx4 v249, s[44:47], s70 offen{LSC} lds")
        if q == 0:
            e("s_add_u32 s70, s70, 32768")
            e("s_add_u32 s71, s71, 1024")
    for j in range(4):
        for i in range(4):
            a = 4 + 16 * j + 4 * i
            e(f"ds_write_b128 v246, v[{a}:{a+3}] offset:{(4*j+i)*1024}")
    e("v_and_b32 v230, 15, v1")
    e("v_lshrrev_b32 v231, 4, v1")
    e("s_lshl_b32 s71, s60, 4")
    e("v_add_u32 v232, s71, v230")
    e("v_lshlrev_b32 v234, 7, v232")
    e("v_lshl_add_u32 v234, v231, 3, v234")
    e("v_add_u32 v234, 0x12000, v234")
    e("v_lshlrev_b32 v235, 9, v231")
    e("v_lshl_add_u32 v235, v232, 1, v235")
    e("v_add_u32 v235, 0x10000, v235")
    e("s_lshl_b32 s70, s65, 6")
    e("v_add_u32 v232, s70, v232")
    e("v_lshlrev_b32 v233, 10, v232")
    e("v_lshl_add_u32 v233, v231, 3, v233")
    e("s_lshl_b32 s73, s66, 7")
    e("s_lshl_b32 s70, s60, 12")
    e("v_add_u32 v246, s70, v2")
    e(f"s_mov_b32 s74, {f2u(-LOG2E)}")
    e("s_waitcnt vmcnt(0) lgkmcnt(0)")
    e("s_barrier")
    stamp()
    for ww in range(4):
        for i in range(4):
            r = 68 + 16 * ww + 4 * i
            e(f"ds_read_b128 v[{r}:{r+3}], v246 offset:{ww*16384 + i*1024}")
    e("s_waitcnt lgkmcnt(8)")
    for i in range(4):
        e(f"ds_read_b64 v[{132+2*i}:{133+2*i}], v234 offset:{32*i}")
    for q in range(8):
        e(f"v_pk_add_f32 v[{68+2*q}:{69+2*q}], v[{68+2*q}:{69+2*q}], v[{84+2*q}:{85+2*q}]")
    e("s_waitcnt lgkmcnt(4)")
    for i in range(4):
        for r in range(4):
            if i < 2:
                e(f"ds_read_u16 v{148+4*i+r}, v235 offset:{(16*i+r)*128}")
    for q in range(8):
        e(f"v_pk_add_f32 v[{100+2*q}:{101+2*q}], v[{100+2*q}:{101+2*q}], v[{116+2*q}:{117+2*q}]")
    for q in range(8):
        e(f"v_pk_add_f32 v[{68+2*q}:{69+2*q}], v[{68+2*q}:{69+2*q}], v[{100+2*q}:{101+2*q}]")
    e("s_waitcnt lgkmcnt(4)")
    for i in range(2, 4):
        for r in range(4):
            e(f"ds_read_u16 v{148+4*i+r}, v235 offset:{(16*i+r)*128}")
    def rnd(a, n, T):
        for k in range(n // 2):
            e(f"v_cvt_pk_bf16_f32 v{T+k}, v{a+2*k}, v{a+2*k+1}")
        for k in range(n // 2):
            e(f"v_lshlrev_b32 v{a+2*k}, 16, v{T+k}")
            e(f"v_and_b32 v{a+2*k+1}, s72, v{T+k}")
    def unp(dst, src, n):
        for k in range(n // 2):
            e(f"v_lshlrev_b32 v{dst+2*k}, 16, v{src+k}")
            e(f"v_and_b32 v{dst+2*k+1}, s72, v{src+k}")
    a = 68
    rnd(a, 16, 4)
    unp(16, 236, 16)
    for k in range(8):
        e(f"v_pk_add_f32 v[{a+2*k}:{a+2*k+1}], v[{a+2*k}:{a+2*k+1}], v[{16+2*k}:{17+2*k}]")
    rnd(a, 16, 4)
    for r in range(16):
        e(f"v_mul_f32 v{16+r}, s74, v{a+r}")
    for r in range(16):
        e(f"v_exp_f32 v{16+r}, v{16+r}")
    for k in range(8):
        e(f"v_pk_add_f32 v[{16+2*k}:{17+2*k}], v[{16+2*k}:{17+2*k}], 1.0 op_sel_hi:[1,0]")
    for r in range(16):
        e(f"v_rcp_f32 v{16+r}, v{16+r}")
    for k in range(8):
        e(f"v_pk_mul_f32 v[{a+2*k}:{a+2*k+1}], v[{a+2*k}:{a+2*k+1}], v[{16+2*k}:{17+2*k}]")
    rnd(a, 16, 4)
    e("s_waitcnt lgkmcnt(0)")
    for r in range(16):
        e(f"v_lshlrev_b32 v{16+r}, 16, v{148+r}")
    for k in range(8):
        e(f"v_pk_mul_f32 v[{a+2*k}:{a+2*k+1}], v[{a+2*k}:{a+2*k+1}], v[{16+2*k}:{17+2*k}]")
    rnd(a, 16, 4)
    unp(16, 132, 16)
    for k in range(8):
        e(f"v_pk_add_f32 v[{a+2*k}:{a+2*k+1}], v[{a+2*k}:{a+2*k+1}], v[{16+2*k}:{17+2*k}]")
    for k in range(8):
        e(f"v_cvt_pk_bf16_f32 v{32+k}, v{a+2*k}, v{a+2*k+1}")
    for i in range(4):
        e(f"buffer_store_dwordx2 v[{32+2*i}:{33+2*i}], v233, s[48:51], s73 offen offset:{32*i}")
    if STAMP:
        stamp()
        e("s_waitcnt vmcnt(0)")
    stamp_flush()
    e("s_endpgm")


def gen_C(px, rep=True, kc=True, waits='LH'):
    CH = 38400; CS = 4160; KB = 8 * CS
    SL = " sc1" if "L" in waits else ""
    SH = " sc1" if "H" in waits else ""
    stamp(True)
    e("s_sub_u32 s61, s2, 256")
    e("s_and_b32 s62, s61, 7")
    e("s_lshr_b32 s61, s61, 3")
    e("s_lshl_b32 s62, s62, 5")
    e("s_add_u32 s61, s61, s62")
    e("s_lshr_b32 s62, s60, 1")
    e("s_and_b32 s63, s60, 1")
    e("s_lshl_b32 s64, s61, 1")
    e("s_add_u32 s64, s64, s62")
    e(f"s_mul_i32 s65, s62, {CH}")
    e("v_and_b32 v6, 15, v1")
    e("v_lshrrev_b32 v7, 4, v1")
    srd(36, P_W2, 512 * 1792 * 2)
    srd(40, P_WS, W2F_SZ, W2F_OFF)
    srd(44, P_WS, XNB_SZ, XNB_OFF)
    srd(48, P_WS, ST_SZ, ST_OFF)
    srd(52, P_WS, FL_SZ, FL_OFF)
    e("s_mov_b32 s72, 0xffff0000")
    def uloads():
        e("s_lshl_b32 s70, s63, 7")
        e("v_add_u32 v34, s70, v1")
        e("v_sub_u32 v35, 255, v34")
        e("v_lshlrev_b32 v35, 13, v35")
        e("s_lshl_b32 s70, s64, 4")
        e("v_add_u32 v35, s70, v35")
        e("v_subrev_u32 v36, 0x2000, v35")
        e("v_subrev_u32 v37, 0x80000, v35")
        e("v_subrev_u32 v38, 0x82000, v35")
        e(f"buffer_load_dwordx4 v[168:171], v35, s[44:47], 0 offen{LSC}")
        e(f"buffer_load_dwordx4 v[172:175], v36, s[44:47], 0 offen{LSC}")
        e(f"buffer_load_dwordx4 v[176:179], v37, s[44:47], 0 offen{LSC}")
        e(f"buffer_load_dwordx4 v[180:183], v38, s[44:47], 0 offen{LSC}")
    if kc:
        e("s_lshl_b32 s66, s64, 8")
        e("s_lshl_b32 s67, s63, 7")
        e("s_add_u32 s66, s66, s67")
        e("v_lshl_add_u32 v8, v1, 1, s66")
        e("s_lshl_b32 s67, s64, 1")
        e("v_mov_b32 v9, s67")
        e(f"global_load_ushort v10, v8, s[{P_LAR}:{P_LAR+1}]")
        e(f"global_load_ushort v11, v8, s[{P_AIM}:{P_AIM+1}]")
        e(f"global_load_ushort v12, v8, s[{P_CR}:{P_CR+1}]")
        e(f"global_load_ushort v13, v8, s[{P_CI}:{P_CI+1}]")
        e(f"global_load_ushort v14, v9, s[{P_LDT}:{P_LDT+1}]")
        e(f"global_load_ushort v15, v9, s[{P_DSK}:{P_DSK+1}]")
        if "L" not in waits:
            uloads()
    def rep_loads():
        e("s_lshr_b32 s66, s64, 4")
        e("s_and_b32 s67, s64, 15")
        e("v_lshlrev_b32 v16, 12, v7")
        e("v_lshl_add_u32 v16, v6, 1, v16")
        e(f"s_mul_i32 s68, s67, {112*1024}")
        e("s_lshl_b32 s69, s66, 5")
        e("s_add_u32 s68, s68, s69")
        e("s_lshl_b32 s69, s63, 16")
        e("s_add_u32 s68, s68, s69")
        for k in range(4):
            e(f"s_add_u32 s{73}, s68, {k*16384}")
            for el in range(4):
                e(f"buffer_load_ushort v{200+4*k+el}, v16, s[36:39], s73 offen offset:{1024*el}")
    if rep and not kc:
        e("s_sub_u32 s35, s2, 256")
        e("s_lshl_b32 s35, s35, 2")
        e("s_add_u32 s35, s35, s60")
        e("s_cmp_ge_u32 s35, 896")
        e(f"s_cbranch_scc1 {px}_W1L")
        srd(44, P_W1, 512 * 1792 * 2)
        e(f"v_mul_u32_u24 v18, {4*3584}, v7")
        e("v_lshl_add_u32 v18, v6, 1, v18")
        for k in range(2):
            e("s_lshl_b32 s67, s35, 1")
            if k: e("s_add_u32 s67, s67, 1")
            e("s_mul_i32 s68, s67, 9363")
            e("s_lshr_b32 s68, s68, 16")
            e("s_mul_i32 s69, s68, 7")
            e("s_sub_u32 s69, s67, s69")
            e("s_lshr_b32 s70, s68, 4")
            e("s_and_b32 s68, s68, 15")
            e("s_mul_i32 s70, s70, 7")
            e("s_add_u32 s70, s70, s69")
            e("s_lshl_b32 s70, s70, 5")
            e(f"s_mul_i32 s68, s68, {32*3584}")
            e("s_add_u32 s70, s70, s68")
            for ee in range(8):
                e(f"s_add_u32 s71, s70, {(16*(ee>>2) + (ee&3))*3584}")
                e(f"buffer_load_ushort v{100+8*k+ee}, v18, s[44:47], s71 offen")
        lab(f"{px}_W1L")
    if kc:
        for i in range(8):
            d = 230 + i
            e("v_lshlrev_b32 v17, 3, v0")
            if i:
                e(f"v_add_u32 v17, {i}, v17")
            e("v_cvt_f32_u32 v17, v17")
            e("v_cvt_pk_bf16_f32 v17, v17, v17")
            e("v_lshlrev_b32 v17, 16, v17")
            e("v_cvt_u32_f32 v18, v17")
            e("v_lshrrev_b32 v17, 23, v17")
            e("v_subrev_u32 v17, 134, v17")
            e("v_med3_i32 v17, v17, 0, 3")
            e("v_lshrrev_b32 v19, 7, v18")
            e("v_and_b32 v20, 7, v18")
            e("v_lshl_add_u32 v19, v19, 3, v20")
            e("v_lshrrev_b32 v19, v17, v19")
            e("v_lshl_add_u32 v19, v17, 3, v19")
            e("v_bfe_u32 v20, v18, 3, 4")
            e("v_lshrrev_b32 v21, 4, v19")
            e("v_and_b32 v19, 15, v19")
            e("v_lshl_add_u32 v20, v21, 4, v20")
            e("v_lshl_add_u32 v19, v20, 4, v19")
            e(f"v_lshlrev_b32 v{d}, 1, v19")
    def rep_store():
        e("s_lshr_b32 s66, s64, 4")
        e("s_and_b32 s67, s64, 15")
        for k in range(4):
            e(f"v_lshl_or_b32 v{216+2*k}, v{201+4*k}, 16, v{200+4*k}")
            e(f"v_lshl_or_b32 v{217+2*k}, v{203+4*k}, 16, v{202+4*k}")
        e("s_lshr_b32 s68, s66, 2")
        e("s_lshl_b32 s68, s68, 4")
        e("s_add_u32 s68, s68, s67")
        e("s_mul_i32 s68, s68, 14336")
        e("s_and_b32 s69, s66, 3")
        e("s_lshl_b32 s70, s69, 10")
        e("s_add_u32 s70, s70, s68")
        e("s_lshl_b32 s71, s63, 13")
        e("s_add_u32 s70, s70, s71")
        e(f"buffer_store_dwordx4 v[216:219], v2, s[40:43], s70 offen{SL}")
        e("s_cmp_eq_u32 s63, 0")
        e(f"s_cbranch_scc0 {px}_RP1")
        e("s_add_u32 s70, s70, 4096")
        e(f"buffer_store_dwordx4 v[220:223], v2, s[40:43], s70 offen{SL}")
        e(f"s_branch {px}_RPJ")
        lab(f"{px}_RP1")
        e("s_lshl_b32 s70, s69, 9")
        e("s_add_u32 s70, s70, s68")
        e("s_add_u32 s70, s70, 12288")
        e("v_lshlrev_b32 v17, 3, v1")
        e(f"buffer_store_dwordx2 v[220:221], v17, s[40:43], s70 offen{SL}")
        lab(f"{px}_RPJ")
    stamp()
    e("s_waitcnt vmcnt(0)")
    stamp()
    if rep and not kc:
        rep_store()
        e("s_cmp_ge_u32 s35, 896")
        e(f"s_cbranch_scc1 {px}_W1E")
        srd(40, P_WS, W1F_SZ, W1F_OFF)
        e("s_lshl_b32 s67, s35, 11")
        for k in range(2):
            for j in range(4):
                e(f"v_lshl_or_b32 v{120+4*k+j}, v{101+8*k+2*j}, 16, v{100+8*k+2*j}")
            e(f"buffer_store_dwordx4 v[{120+4*k}:{123+4*k}], v2, s[40:43], s67 offen offset:{1024*k}")
        lab(f"{px}_W1E")
    if not kc:
        if not waits:
            pass
        stamp_flush()
        e("s_endpgm")
        return
    e(f"s_mov_b32 s66, {f2u(LOG2E_HI)}")
    e(f"s_mov_b32 s67, {f2u(LOG2E_LO)}")
    e(f"s_mov_b32 s68, {f2u(LN2)}")
    e(f"s_mov_b32 s69, {f2u(INV2PI)}")
    for r in (10, 11, 12, 13, 14, 15):
        e(f"v_lshlrev_b32 v{r}, 16, v{r}")
    def exp_acc(dst, x, t1, t2):
        e(f"v_mul_f32 v{t1}, s66, v{x}")
        e(f"v_fma_f32 v{t2}, v{x}, s66, -v{t1}")
        e(f"v_fmac_f32 v{t2}, s67, v{x}")
        e(f"v_exp_f32 v{dst}, v{t1}")
        e(f"v_mul_f32 v{t2}, s68, v{t2}")
        e(f"v_fmac_f32 v{dst}, v{dst}, v{t2}")
    exp_acc(16, 14, 17, 18)
    exp_acc(19, 10, 20, 21)
    e("v_cvt_pk_bf16_f32 v17, v16, v19")
    e("v_lshlrev_b32 v16, 16, v17")
    e("v_and_b32 v19, s72, v17")
    e("v_mul_f32 v19, v19, v16")
    e("v_mul_f32 v19, s66, v19")
    e("v_mul_f32 v20, v11, v16")
    e("v_mul_f32 v20, s69, v20")
    e("v_mul_f32 v22, v12, v16")
    e("v_mul_f32 v23, v13, v16")
    e("v_max_f32 v24, |v22|, |v23|")
    dpp_reduce([24], "v_max_f32")
    e("v_readlane_b32 s70, v24, 63")
    for k, (m, d) in enumerate(((1.0, 26), (8.0, 28), (128.0, 30))):
        e(f"v_mul_f32 v{32+k}, {f2u(-m)}, v19")
        e(f"v_mul_f32 v{36+k}, {f2u(m)}, v20")
    e("v_frexp_exp_i32_f32 v24, s70")
    for k in range(3):
        e(f"v_exp_f32 v{32+k}, v{32+k}")
        e(f"v_fract_f32 v{36+k}, v{36+k}")
    e("v_sub_u32 v25, 0, v24")
    for k in range(3):
        e(f"v_cos_f32 v{40+k}, v{36+k}")
        e(f"v_sin_f32 v{44+k}, v{36+k}")
    e("v_ldexp_f32 v22, v22, v25")
    e("v_ldexp_f32 v23, v23, v25")
    for k, d in enumerate((26, 28, 30)):
        e(f"v_mul_f32 v{d}, v{32+k}, v{40+k}")
        e(f"v_mul_f32 v{d+1}, v{32+k}, v{44+k}")
    e(f"s_mul_i32 s70, s63, 9216")
    e("s_add_u32 s70, s70, s65")
    e("v_lshlrev_b32 v32, 2, v1")
    e("v_add_u32 v32, s70, v32")
    e("v_mul_u32_u24 v33, 288, v6")
    e("v_lshl_add_u32 v33, v7, 4, v33")
    e("v_add_u32 v33, s70, v33")
    AT = 4608
    cur = 22
    for j in range(16):
        if j:
            nxt = 34 if cur != 34 else 36
            cmul(nxt, cur, 28, nxt)
            cur = nxt
        e(f"v_cvt_pk_f16_f32 v38, v{cur}, -v{cur+1}")
        e(f"ds_write_b32 v32, v38 offset:{288*j}")
    for ks in range(4):
        e(f"ds_read_b128 v[{120+4*ks}:{123+4*ks}], v33 offset:{64*ks}")
    e("v_mov_b32 v40, 1.0")
    e("v_mov_b32 v41, 0")
    e("v_mov_b32 v42, v26")
    e("v_mov_b32 v43, v27")
    for r in range(2, 8):
        cmul(40 + 2 * r, 40 + 2 * (r - 1), 26, 40 + 2 * r)
    e("v_mov_b32 v58, v30")
    e("v_mov_b32 v59, v31")
    for i in range(2, 17):
        cmul(56 + 2 * i, 56 + 2 * (i - 1), 30, 56 + 2 * i)
    def Rr(r): return 40 + 2 * r
    def Gi(i): return 56 + 2 * i
    tiles = [
        [(None, r) for r in range(8)] + [(1, r) for r in range(8)],
        [(2, 2 * r) for r in range(4)] + [(3, 2 * r) for r in range(4)] + [(4 + i, 4 * r) for i in range(4) for r in range(2)],
        [(8 + i, 0) for i in range(9)],
    ]
    for i in range(12):
        e(f"v_mov_b32 v{100+i}, 0")
    for T, rows in enumerate(tiles):
        for row, (gi, r) in enumerate(rows):
            tp = 92 + 2 * (row & 3)
            if gi is None:
                src = Rr(r)
            elif r == 0:
                src = Gi(gi)
            else:
                cmul(tp, Gi(gi), Rr(r), tp)
                src = tp
            e(f"v_cvt_pk_f16_f32 v{112 + (row & 3)}, v{src}, v{src+1}")
            e(f"ds_write_b32 v32, v{112 + (row & 3)} offset:{AT + 288*row}")
        for ks in range(4):
            e(f"ds_read_b128 v[{136+16*(T&1)+4*ks}:{139+16*(T&1)+4*ks}], v33 offset:{AT + 64*ks}")
        e("s_waitcnt lgkmcnt(0)")
        a = 100 + 4 * T
        for ks in range(4):
            A = 136 + 16 * (T & 1) + 4 * ks
            e(f"v_mfma_f32_16x16x32_f16 v[{a}:{a+3}], v[{A}:{A+3}], v[{120+4*ks}:{123+4*ks}], v[{a}:{a+3}]")
    stamp()
    rep_loads()
    e("s_mul_i32 s70, s63, 3072")
    e("s_add_u32 s70, s70, s65")
    e("v_lshlrev_b32 v34, 6, v6")
    e("v_lshl_add_u32 v34, v7, 4, v34")
    e("v_add_u32 v34, s70, v34")
    e("s_lshl_b32 s70, s63, 2")
    e("s_add_u32 s70, s70, s65")
    e("v_mov_b32 v35, s70")
    e("s_nop 3")
    for T in range(3):
        e(f"ds_write_b128 v34, v[{100+4*T}:{103+4*T}] offset:{18432 + 1024*T}")
    e(f"ds_write_b32 v35, v24 offset:{26112}")
    e("s_waitcnt lgkmcnt(0)")
    nonce()
    e("s_barrier")
    e("v_lshlrev_b32 v34, 4, v0")
    e("v_min_u32 v34, 3056, v34")
    e("v_mov_b32 v35, 0")
    for c in range(2):
        e(f"ds_read_b128 v[{40+16*c}:{43+16*c}], v34 offset:{c*CH + 18432}")
        e(f"ds_read_b128 v[{44+16*c}:{47+16*c}], v34 offset:{c*CH + 18432 + 3072}")
        e(f"ds_read_b64 v[{48+16*c}:{49+16*c}], v35 offset:{c*CH + 26112}")
    e("v_lshrrev_b32 v36, 1, v34")
    e("s_waitcnt lgkmcnt(0)")
    for c in range(2):
        b = 40 + 16 * c
        e(f"v_max_i32 v{b+10}, v{b+8}, v{b+9}")
        e(f"v_sub_u32 v{b+8}, v{b+8}, v{b+10}")
        e(f"v_sub_u32 v{b+9}, v{b+9}, v{b+10}")
        for j in range(4):
            e(f"v_ldexp_f32 v{b+j}, v{b+j}, v{b+8}")
            e(f"v_ldexp_f32 v{b+4+j}, v{b+4+j}, v{b+9}")
        for j in range(4):
            e(f"v_add_f32 v{b+j}, v{b+j}, v{b+4+j}")
        e(f"v_cvt_pk_f16_f32 v{b+12}, v{b}, v{b+1}")
        e(f"v_cvt_pk_f16_f32 v{b+13}, v{b+2}, v{b+3}")
        e(f"ds_write_b64 v36, v[{b+12}:{b+13}] offset:{c*CH + 24576}")
    e("s_cmp_eq_u32 s62, 0")
    e("s_cselect_b64 vcc, -1, 0")
    e("s_nop 1")
    e("v_cndmask_b32 v25, v66, v50, vcc")
    e("v_add_u32 v25, 1, v25")
    e("s_waitcnt lgkmcnt(0)")
    e("s_barrier")
    for c in range(2):
        for i in range(8):
            e(f"ds_read_u16 v{40+8*c+i}, v{230+i} offset:{c*CH + 24576}")
    e("v_lshrrev_b32 v34, 2, v0")
    e("v_lshlrev_b32 v34, 5, v34")
    e("v_bfe_u32 v35, v0, 1, 1")
    e("v_mul_u32_u24 v35, 2560, v35")
    e("v_and_b32 v36, 1, v0")
    e("v_lshl_add_u32 v34, v36, 4, v34")
    e("v_add_u32 v34, v34, v35")
    e("v_bfe_u32 v35, v0, 5, 1")
    e("v_mul_u32_u24 v35, 2560, v35")
    e("v_and_b32 v36, 31, v0")
    e("v_lshl_add_u32 v35, v36, 4, v35")
    e("v_bfe_u32 v36, v0, 6, 1")
    e(f"v_mul_u32_u24 v36, {CH}, v36")
    e("v_add_u32 v35, v35, v36")
    for j in range(4):
        e(f"v_mov_b32 v{64+j}, 0")
    e(f"ds_write_b128 v35, v[64:67] offset:{KB}")
    e("s_waitcnt lgkmcnt(1)")
    for c in range(2):
        for j in range(4):
            e(f"v_lshl_or_b32 v{56+4*c+j}, v{41+8*c+2*j}, 16, v{40+8*c+2*j}")
        if c == 1:
            e(f"v_add_u32 v37, {CH}, v34")
        e(f"ds_write_b128 v{34 if c == 0 else 37}, v[{56+4*c}:{59+4*c}] offset:{KB + 512}")
    if DUMPK:
        srd(36, P_WS, KP_SZ, KP_OFF)
        e("s_mul_i32 s70, s61, 10240")
        e("buffer_store_dwordx4 v[56:59], v34, s[36:39], s70 offen offset:512")
        e("s_add_u32 s70, s70, 5120")
        e("buffer_store_dwordx4 v[60:63], v34, s[36:39], s70 offen offset:512")
        e("s_lshl_b32 s70, s64, 2")
        e(f"s_add_u32 s70, s70, {KP_SZ - 4096}")
        e("v_mov_b32 v36, 0")
        e("buffer_store_dword v25, v36, s[36:39], s70 offen")
    stamp()
    e("s_waitcnt vmcnt(0) lgkmcnt(0)")
    rep_store()
    e("s_cmp_eq_u32 s60, 0")
    e(f"s_cbranch_scc0 {px}_W1")
    e("v_lshlrev_b32 v34, 2, v1")
    poll(52, 34, "0", 64, 36, px, ndw=4, sleep=8)
    lab(f"{px}_W1")
    e("s_barrier")
    stamp()
    if "L" in waits:
        uloads()
    e("s_lshl_b32 s70, s63, 7")
    e("v_add_u32 v34, s70, v1")
    e("v_lshlrev_b32 v34, 4, v34")
    e("v_add_u32 v34, s65, v34")
    e("v_lshrrev_b32 v35, 2, v1")
    e(f"v_mul_u32_u24 v35, {CS}, v35")
    e("v_and_b32 v36, 3, v1")
    e("v_lshl_add_u32 v35, v36, 4, v35")
    e(f"s_mul_i32 s70, s63, {4*CS}")
    e("s_add_u32 s70, s70, s65")
    e("v_add_u32 v35, s70, v35")
    for j in range(4):
        e(f"v_mov_b32 v{88+j}, 0")
    e("s_mov_b64 exec, 0xffff")
    e("ds_write_b128 v35, v[88:91] offset:4096")
    e("s_mov_b64 exec, -1")
    e("v_and_b32 v35, 3, v6")
    e("v_sub_u32 v35, 7, v35")
    e(f"v_mul_u32_u24 v35, {CS}, v35")
    e("v_lshrrev_b32 v36, 2, v6")
    e("v_sub_u32 v36, v7, v36")
    e("v_lshl_add_u32 v35, v36, 4, v35")
    e("s_lshl_b32 s70, s63, 6")
    e("s_sub_u32 s70, s65, s70")
    e(f"s_add_u32 s70, s70, {4080 - 64*62}")
    e("v_add_u32 v12, s70, v35")
    e(f"v_subrev_u32 v13, {4*CS}, v12")
    e("v_lshrrev_b32 v35, 1, v7")
    e("v_mul_u32_u24 v35, 2560, v35")
    e("v_lshl_add_u32 v35, v6, 5, v35")
    e("v_and_b32 v36, 1, v7")
    e("v_lshl_add_u32 v35, v36, 4, v35")
    e("s_lshl_b32 s70, s63, 5")
    e("s_sub_u32 s70, s65, s70")
    e(f"s_add_u32 s70, s70, {KB+32}")
    e("v_add_u32 v14, s70, v35")
    for it in range(2):
        I = 168 + 8 * it
        O = 48 + 24 * it
        e(f"s_waitcnt vmcnt({2 - 2*it})")
        for j in range(7):
            e(f"v_alignbit_b32 v{O+j}, v{I+j+1}, v{I+j}, 16")
        off = 1024 * it
        e(f"ds_write_b128 v34, v[{I}:{I+3}] offset:{off}")
        e(f"ds_write_b128 v34, v[{I+2}:{I+5}] offset:{off + 4*CS}")
        e(f"ds_write_b128 v34, v[{O}:{O+3}] offset:{off + 1*CS}")
        e(f"ds_write_b128 v34, v[{O+2}:{O+5}] offset:{off + 5*CS}")
        M = 92 + 16 * it
        for k, (src, s) in enumerate(((I + 1, 2), (I + 3, 6), (O + 1, 3), (O + 3, 7))):
            e(f"v_pk_mov_b32 v[{M+4*k}:{M+4*k+1}], v[{src-1}:{src}], v[{src+1}:{src+2}] op_sel:[1,0]")
            e(f"v_pk_mov_b32 v[{M+4*k+2}:{M+4*k+3}], v[{src+1}:{src+2}], v[{src+3}:{src+4}] op_sel:[1,0]")
            e(f"ds_write_b128 v34, v[{M+4*k}:{M+4*k+3}] offset:{off + s*CS}")
    ACC = 16
    e("v_mov_b32 v10, v25")
    e("v_mov_b32 v11, v15")
    for i in range(32):
        e(f"v_mov_b32 v{ACC+i}, 0")
    stamp()
    e("s_waitcnt vmcnt(0) lgkmcnt(0)")
    e("s_barrier")
    stamp()
    def c_():
        e("s_lshl_b32 s70, s61, 2")
        e(f"s_add_u32 s70, s70, {RFL}")
    publish(px, "RF", c_, 8)
    if os.environ.get("DEFER"):
        e("s_sub_u32 s70, s2, 256")
        e("s_lshl_b32 s70, s70, 2")
        e(f"s_add_u32 s70, s70, {HINT}")
        e("v_mov_b32 v8, 0")
        poll(52, 8, "s70", 1, 9, px, sleep=3)
    lab(f"{px}_RF")
    if os.environ.get("DEFER"):
        e("s_barrier")
    stamp()
    NB = 3
    FR = [48 + 24 * b for b in range(NB)]
    def nI(pp):
        return 4 - (2 * pp) // 16
    def issue_list(pp):
        R = FR[pp % NB]
        out = []
        for h in range(2):
            out.append(f"ds_read_b128 v[{R+4*h}:{R+4*h+3}], v{12+h} offset:{64*(62-2*pp)}")
        for I in range(4 - nI(pp), 4):
            out.append(f"ds_read_b128 v[{R+8+4*I}:{R+11+4*I}], v14 offset:{32*(16*I-2*pp+15)}")
        return out
    cnts = {}
    for pp in range(NB - 1):
        l_ = issue_list(pp); cnts[pp] = len(l_)
        for x in l_: e(x)
    for pp in range(32):
        nxt = issue_list(pp + NB - 1) if pp + NB - 1 < 32 else []
        pend = sum(cnts[k] for k in range(pp + 1, min(32, pp + NB - 1)))
        cnts[pp + NB - 1] = len(nxt)
        e(f"s_waitcnt lgkmcnt({pend})")
        R = FR[pp % NB]
        for I in range(4 - nI(pp), 4):
            for h in range(2):
                a = ACC + 8 * I + 4 * h
                e(f"v_mfma_f32_16x16x32_f16 v[{a}:{a+3}], v[{R+4*h}:{R+4*h+3}], v[{R+8+4*I}:{R+11+4*I}], v[{a}:{a+3}]")
                if nxt: e(nxt.pop(0))
        for x in nxt: e(x)
    e("s_nop 7")
    stamp()
    e("s_barrier")
    e("s_lshl_b32 s70, s63, 12")
    e("s_add_u32 s70, s70, s65")
    e(f"s_add_u32 s70, s70, {CS}")
    e("v_add_u32 v8, s70, v2")
    e("s_xor_b32 s71, s63, 1")
    e("s_lshl_b32 s70, s71, 12")
    e("s_add_u32 s70, s70, s65")
    e(f"s_add_u32 s70, s70, {CS}")
    e("v_add_u32 v9, s70, v2")
    e("s_cmp_eq_u32 s63, 0")
    e(f"s_cbranch_scc1 {px}_P0")
    for t in range(4):
        e(f"ds_write_b128 v8, v[{ACC+4*t}:{ACC+4*t+3}] offset:{1024*t}")
    for i in range(8):
        e(f"v_pk_mov_b32 v[{48+2*i}:{49+2*i}], v[{ACC+16+2*i}:{ACC+17+2*i}], v[{ACC+16+2*i}:{ACC+17+2*i}] op_sel:[0,1]")
    e(f"s_branch {px}_PJ")
    lab(f"{px}_P0")
    for t in range(4):
        e(f"ds_write_b128 v8, v[{ACC+16+4*t}:{ACC+16+4*t+3}] offset:{1024*t}")
    for i in range(8):
        e(f"v_pk_mov_b32 v[{48+2*i}:{49+2*i}], v[{ACC+2*i}:{ACC+1+2*i}], v[{ACC+2*i}:{ACC+1+2*i}] op_sel:[0,1]")
    lab(f"{px}_PJ")
    e("s_waitcnt lgkmcnt(0)")
    e("s_barrier")
    for t in range(4):
        e(f"ds_read_b128 v[{64+4*t}:{67+4*t}], v9 offset:{1024*t}")
    e("v_lshlrev_b32 v5, 6, v6")
    e("v_lshl_add_u32 v5, v7, 4, v5")
    e("s_lshl_b32 s70, s63, 11")
    e("s_sub_u32 s70, s65, s70")
    e(f"s_add_u32 s70, s70, {4080-1024}")
    e("v_sub_u32 v8, s70, v5")
    for Il in range(2):
        e(f"ds_read_b128 v[{80+4*Il}:{83+4*Il}], v8 offset:{1024*(1-Il)}")
    e("s_lshl_b32 s70, s64, 12")
    e("s_lshl_b32 s71, s63, 11")
    e("s_add_u32 s70, s70, s71")
    e("s_waitcnt lgkmcnt(0)")
    for Il in range(2):
        a = 48 + 8 * Il
        for k in range(4):
            e(f"v_pk_add_f32 v[{a+2*k}:{a+2*k+1}], v[{a+2*k}:{a+2*k+1}], v[{64+8*Il+2*k}:{65+8*Il+2*k}]")
        for k in range(8):
            e(f"v_ldexp_f32 v{a+k}, v{a+k}, v10")
        for k in range(4):
            e(f"v_cvt_pk_bf16_f32 v{88+k}, v{a+2*k}, v{a+2*k+1}")
        for k in range(4):
            e(f"v_lshlrev_b32 v{a+2*k}, 16, v{88+k}")
            e(f"v_and_b32 v{a+2*k+1}, s72, v{88+k}")
        U = 80 + 4 * Il
        for k in range(4):
            src = U + 3 - k
            e(f"v_cvt_f32_f16_sdwa v{92+2*k}, v{src} dst_sel:DWORD dst_unused:UNUSED_PAD src0_sel:WORD_1")
            e(f"v_cvt_f32_f16 v{93+2*k}, v{src}")
        for k in range(8):
            e(f"v_mul_f32 v{92+k}, v{92+k}, v11")
        for k in range(4):
            e(f"v_cvt_pk_bf16_f32 v{88+k}, v{92+2*k}, v{93+2*k}")
        for k in range(4):
            e(f"v_lshlrev_b32 v{92+2*k}, 16, v{88+k}")
            e(f"v_and_b32 v{93+2*k}, s72, v{88+k}")
        for k in range(4):
            e(f"v_pk_add_f32 v[{a+2*k}:{a+2*k+1}], v[{a+2*k}:{a+2*k+1}], v[{92+2*k}:{93+2*k}]")
        for k in range(4):
            e(f"v_cvt_pk_bf16_f32 v{100+4*Il+k}, v{a+2*k}, v{a+2*k+1}")
        e(f"buffer_store_dwordx4 v[{100+4*Il}:{103+4*Il}], v5, s[48:51], s70 offen offset:{1024*Il}{SH}")
    stamp()
    e("s_waitcnt vmcnt(0)")
    e("s_barrier")
    def c_():
        e("s_lshl_b32 s70, s61, 2")
        e(f"s_add_u32 s70, s70, {SFL}")
    publish(px, "SF", c_, 36)
    e("s_cmp_eq_u32 s61, 0")
    e(f"s_cbranch_scc0 {px}_SF")
    e("v_lshlrev_b32 v34, 2, v1")
    e(f"s_mov_b32 s70, {RFL}")
    poll(52, 34, "s70", 64, 36, px, ndw=4, sleep=8)
    e("s_add_u32 s35, s35, 1")
    e("v_mov_b32 v34, 0")
    e("v_mov_b32 v35, s35")
    e(f"s_mov_b32 s70, {EPO}")
    e("s_mov_b64 exec, 1")
    e("buffer_store_dword v35, v34, s[52:55], s70 offen sc1")
    e("s_mov_b64 exec, -1")
    lab(f"{px}_SF")
    stamp_flush()
    e("s_endpgm")


def gen_kernel(name, px):
    kernel_begin(name)
    e("s_cmp_ge_u32 s2, 512")
    e(f"s_cbranch_scc1 {px}_END")
    e("s_load_dwordx16 s[4:19], s[0:1], 0")
    e("s_load_dwordx8 s[20:27], s[0:1], 64")
    e("s_load_dwordx4 s[28:31], s[0:1], 96")
    e("s_load_dwordx2 s[32:33], s[0:1], 112")
    e("v_and_b32 v1, 63, v0")
    e("v_readfirstlane_b32 s60, v0")
    e("v_lshlrev_b32 v2, 4, v1")
    e("s_lshr_b32 s60, s60, 6")
    e("s_waitcnt lgkmcnt(0)")
    e(f"s_add_u32 s36, s32, 0x{FL_OFF:x}")
    e("s_addc_u32 s37, s33, 0")
    e(f"s_load_dword s35, s[36:37], {EPO}")
    e("s_cmp_ge_u32 s2, 256")
    e(f"s_cbranch_scc1 {px}_C")
    gen_G(px + "G")
    lab(f"{px}_C")
    gen_C(px + "C")
    lab(f"{px}_END")
    e("s_endpgm")

LDS = 81920
KN = "pf_kernel" if os.environ.get("LIST") or len(sys.argv) > 1 else "recurrent_scan__ssm_conv_s4d__dense_activation_gelu__prompt_kernel"
gen_kernel(KN, "F")
hdr = "; S4D conv + FFN fused op, single launch (generated by gen/gen8.py)\n"
if KN == "pf_kernel":
    hdr += f"; @launch kernel=pf_kernel grid=(512,1,1) block=(256,1,1) lds={LDS}\n"
else:
    hdr += f"; @launch grid=(512,1,1) block=(256,1,1) lds={LDS}\n"
hdr += '.amdgcn_target "amdgcn-amd-amdhsa--gfx950"\n.text\n'
txt = hdr + "\n".join(L) + "\n" + '.section .rodata,"a"\n'
txt += kd(KN, 256, 102, 256)
open(OUT, "w").write(txt)
print("wrote", OUT, len(txt))
```

```python
import struct, sys, os

OUT = sys.argv[1] if len(sys.argv) > 1 else "recurrent_scan__ssm_conv_s4d__dense_activation_gelu__prompt.s"
SPLIT = os.environ.get("SPLIT", "") != ""
STAMP = os.environ.get("STAMP", "") != ""
DUMPK = os.environ.get("DUMPK", "") != ""

L = []
def e(s=""):
    L.append("    " + s)
def lab(s):
    L.append(s + ":")
def f2u(x):
    return "0x%08x" % struct.unpack("<I", struct.pack("<f", x))[0]

XNF_OFF = 0x0;        XNF_SZ = 0x200000
XNB_OFF = 0x200000;   XNB_SZ = 0x200000
W2F_OFF = 0x400000;   W2F_SZ = 8 * 16 * 14336
HF_OFF  = 0x600000;   HF_SZ = 32 * 16 * 14336
ST_OFF  = 0xD80000;   ST_SZ = 512 * 4096
FL_OFF  = 0xF80000;   FL_SZ = 0x14000
LNF, HFL, SFL, RFL, EPO, HINT = 0, 1024, 3072, 4096, 5120, 6144
HF2, LN2F = 0x4000, 0xC000
SLP = int(os.environ.get('SLP', '2'))
W1F_OFF = 0x1400000;  W1F_SZ = 1792 * 1024
KP_OFF  = 0x1000000;  KP_SZ = 512 * 5120
DBG_OFF = 0x1800000

LOG2E = 1.4426950408889634
LOG2E_HI = struct.unpack("<f", struct.pack("<f", LOG2E))[0]
LOG2E_LO = LOG2E - LOG2E_HI
LN2 = 0.6931471805599453
INV2PI = 0.15915494309189535
GC1 = 2 * 0.7978845608028654 * LOG2E
GC2 = GC1 * 0.044715
SPIN_MAX = 1 << 20
FINE = os.environ.get("FINE")
LSC = " sc1" if os.environ.get("LSC") else ""

P_X, P_LAR, P_AIM, P_CR, P_CI, P_LDT, P_DSK = 4, 6, 8, 10, 12, 14, 16
P_W1, P_B1, P_W2, P_B2, P_OUT, P_DBG, P_WS = 20, 22, 24, 26, 28, 30, 32

def srd(dst, ptr, size, off=0):
    if off:
        e(f"s_add_u32 s{dst}, s{ptr}, 0x{off:x}")
        e(f"s_addc_u32 s{dst+1}, s{ptr+1}, 0")
    else:
        e(f"s_mov_b32 s{dst}, s{ptr}")
        e(f"s_mov_b32 s{dst+1}, s{ptr+1}")
    e(f"s_mov_b32 s{dst+2}, 0x{size:x}")
    e(f"s_mov_b32 s{dst+3}, 0x00020000")

_st = [0]
KIDX = [0]
def stamp(reset=False):
    if not STAMP: return
    if reset:
        _st[0] = 0
        e("s_memrealtime s[78:79]")
    k = _st[0]; _st[0] += 1
    assert k < 28
    e("s_memtime s[100:101]")
    e("s_waitcnt lgkmcnt(0)")
    if k < 20:
        e(f"s_mov_b32 s{80+k}, s100")
    else:
        e(f"v_mov_b32 v{250+k-20}, s100")
def stamp_flush():
    if not STAMP: return
    stamp()
    e("s_mov_b64 exec, 1")
    e("s_memrealtime s[100:101]")
    srd(36, P_WS, 0x80000, DBG_OFF + KIDX[0] * 0x80000)
    e("v_readfirstlane_b32 s40, v0")
    e("s_lshr_b32 s40, s40, 6")
    e("s_lshl_b32 s41, s2, 2")
    e("s_add_u32 s40, s40, s41")
    e("s_lshl_b32 s40, s40, 7")
    e("v_mov_b32 v1, 0")
    e("s_waitcnt lgkmcnt(0)")
    e("v_mov_b32 v2, s100")
    e("v_mov_b32 v3, s78")
    e(f"v_mov_b32 v4, {_st[0]}")
    e("buffer_store_dwordx3 v[2:4], v1, s[36:39], s40 offen")
    for k in range(_st[0]):
        e(f"v_mov_b32 v5, s{80+k}" if k < 20 else f"v_mov_b32 v5, v{250+k-20}")
        e(f"buffer_store_dword v5, v1, s[36:39], s40 offen offset:{16+4*k}")
        e("s_nop 1")
    e("s_mov_b64 exec, -1")

def kernel_begin(name):
    L.append(f".globl {name}")
    L.append(".p2align 8")
    L.append(f".type {name},@function")
    lab(name)

def kd(name, vgpr, sgpr, accum):
    return f""".p2align 6
.amdhsa_kernel {name}
  .amdhsa_next_free_vgpr {vgpr}
  .amdhsa_next_free_sgpr {sgpr}
  .amdhsa_accum_offset {accum}
  .amdhsa_group_segment_fixed_size 0
  .amdhsa_kernarg_size 120
  .amdhsa_user_sgpr_count 2
  .amdhsa_user_sgpr_kernarg_segment_ptr 1
  .amdhsa_system_sgpr_workgroup_id_x 1
.end_amdhsa_kernel
"""

def cmul(d, x, y, t):
    e(f"v_pk_mul_f32 v[{t}:{t+1}], v[{x}:{x+1}], v[{y}:{y+1}] op_sel:[0,0] op_sel_hi:[0,1]")
    e(f"v_pk_fma_f32 v[{d}:{d+1}], v[{x}:{x+1}], v[{y}:{y+1}], v[{t}:{t+1}] op_sel:[1,1,0] op_sel_hi:[1,0,1] neg_lo:[1,0,0]")

_uid = [0]
def poll(srd_r, voff, soff, nlanes, vt, tag, ndw=1, sleep=4):
    _uid[0] += 1
    lb = f"POLL_{tag}_{_uid[0]}"
    e(f"s_mov_b32 s76, {SPIN_MAX}")
    if nlanes < 64:
        e(f"s_mov_b32 s74, 0x{(1 << nlanes) - 1:x}")
        e("s_mov_b32 s75, 0")
    else:
        e("s_mov_b64 s[74:75], -1")
    lab(lb)
    for k in range(ndw):
        e(f"buffer_load_dword v{vt+k}, v{voff}, s[{srd_r}:{srd_r+3}], {soff} offen offset:{256*k} sc1")
    e("s_waitcnt vmcnt(0)")
    for k in range(1, ndw):
        e(f"v_xor_b32 v{vt+k}, s34, v{vt+k}")
    e(f"v_xor_b32 v{vt}, s34, v{vt}")
    for k in range(1, ndw):
        e(f"v_or_b32 v{vt}, v{vt}, v{vt+k}")
    e(f"v_cmp_ne_u32 vcc, 0, v{vt}")
    e("s_and_b64 vcc, vcc, s[74:75]")
    e(f"s_cbranch_scc0 {lb}_D")
    e(f"s_sleep {sleep}")
    e("s_sub_u32 s76, s76, 1")
    e("s_cmp_lg_u32 s76, 0")
    e(f"s_cbranch_scc1 {lb}")
    lab(lb + "_D")

def nonce():
    e("s_mul_i32 s34, s35, 0x9E3779B1")
    e("s_xor_b32 s34, s34, 0x85EBCA6B")

def publish(px, tag, soff_code, vt, second=None):
    e("s_cmp_eq_u32 s60, 0")
    e(f"s_cbranch_scc0 {px}_{tag}")
    soff_code()
    e(f"v_mov_b32 v{vt}, 0")
    e(f"v_mov_b32 v{vt+1}, s34")
    e("s_mov_b64 exec, 1")
    e(f"buffer_store_dword v{vt+1}, v{vt}, s[52:55], s70 offen sc1")
    if second:
        second()
        e(f"buffer_store_dword v{vt+1}, v{vt}, s[52:55], s70 offen sc1")
    e("s_mov_b64 exec, -1")

def dpp_reduce(regs, op):
    steps = ["quad_perm:[1,0,3,2] row_mask:0xf bank_mask:0xf", "quad_perm:[2,3,0,1] row_mask:0xf bank_mask:0xf",
             "row_half_mirror row_mask:0xf bank_mask:0xf", "row_mirror row_mask:0xf bank_mask:0xf",
             "row_bcast:15 row_mask:0xa bank_mask:0xf", "row_bcast:31 row_mask:0xc bank_mask:0xf"]
    for st in steps:
        e(f"s_nop {1 if len(regs) < 2 else 0}" if len(regs) < 3 else "s_nop 0")
        for r in regs:
            e(f"{op}_dpp v{r}, v{r}, v{r} {st}")
    e("s_nop 0")

class VM:
    def __init__(self): self.ops = []
    def add(self, tag, n=1): self.ops += [tag] * n
    def wait(self, *tags):
        idx = [i for i, o in enumerate(self.ops) if o in tags]
        if not idx: return
        n = len(self.ops) - 1 - max(idx)
        assert n < 64
        e(f"s_waitcnt vmcnt({n})")
    def drained(self): self.ops = []

def gen_G(px):
    vm = VM()
    stamp(True)
    e("s_setprio 2")
    e("s_and_b32 s61, s2, 7")
    e("s_lshr_b32 s62, s2, 3")
    e("s_lshr_b32 s63, s61, 1")
    e("s_lshl_b32 s63, s63, 2")
    e("s_lshr_b32 s67, s62, 3")
    e("s_add_u32 s63, s63, s67")
    e("s_and_b32 s64, s61, 1")
    e("s_lshl_b32 s64, s64, 3")
    e("s_and_b32 s66, s62, 7")
    e("s_add_u32 s64, s64, s66")
    e("s_lshl_b32 s65, s61, 2")
    e("s_add_u32 s65, s65, s67")
    SB = 14336
    srd(36, P_X, 0x200000)
    e("s_lshl_b32 s67, s2, 13")
    e("s_lshl_b32 s68, s60, 11")
    e("s_add_u32 s67, s67, s68")
    e("buffer_load_dwordx4 v[64:67], v2, s[36:39], s67 offen")
    e("buffer_load_dwordx4 v[68:71], v2, s[36:39], s67 offen offset:1024")
    vm.add("x", 2)
    srd(40, P_W1, 512 * 1792 * 2)
    srd(44, P_WS, XNF_SZ, XNF_OFF)
    srd(48, P_WS, XNB_SZ, XNB_OFF)
    srd(52, P_WS, FL_SZ, FL_OFF)
    srd(56, P_B2, 1024)
    e("s_mul_i32 s70, s60, 224")
    e("s_mov_b32 s72, 4682")
    for q in range(4):
        e(f"v_add_u32 v{60+q}, s70, v1")
        if q:
            e(f"v_add_u32 v{60+q}, {64*q}, v{60+q}")
        e(f"v_mul_lo_u32 v230, v{60+q}, s72")
        e("v_lshrrev_b32 v230, 16, v230")
        e("v_mul_u32_u24 v231, 14, v230")
        e(f"v_sub_u32 v231, v{60+q}, v231")
        e("v_mul_u32_u24 v230, 3584, v230")
        e(f"v_lshl_add_u32 v{60+q}, v231, 4, v230")
    e("s_mul_i32 s61, s64, 224")
    e("s_mul_i32 s62, s60, 3584")
    e("s_mov_b32 s72, 0xffff0000")
    ROT = os.environ.get("ROT")
    def dma(s, buf):
        if ROT:
            e(f"s_add_u32 s68, s66, {s}")
            e("s_and_b32 s68, s68, 7")
            e(f"s_mul_i32 s68, s68, {64*3584}")
            e("s_add_u32 s68, s68, s61")
        else:
            e(f"s_add_u32 s68, s61, {s*64*3584}")
        for q in range(4):
            e(f"s_add_u32 s70, s62, {buf*SB + q*1024}")
            e("s_mov_b32 m0, s70")
            if q == 3:
                e("s_mov_b32 exec_hi, 0")
            else:
                e("s_nop 0")
            e(f"buffer_load_dwordx4 v{60+q}, s[40:43], s68 offen lds")
        e("s_mov_b64 exec, -1")
        vm.add(("D", s), 4)
    def bload(s):
        R = 64 + 16 * (s % 6)
        if ROT:
            e(f"s_add_u32 s70, s66, {s}")
            e("s_and_b32 s70, s70, 7")
            e("s_lshl_b32 s70, s70, 11")
            e("s_add_u32 s70, s70, s73")
            e("s_add_u32 s71, s70, 16384")
        else:
            e(f"s_add_u32 s70, s73, {s*2048}")
            e(f"s_add_u32 s71, s73, {s*2048 + 16384}")
        for j in range(2):
            for k in range(2):
                r = R + 8 * j + 4 * k
                e(f"buffer_load_dwordx4 v[{r}:{r+3}], v2, s[44:47], s{70 if j == 0 else 71} offen offset:{1024*k}{LSC}")
        vm.add(("B", s), 4)
    ED = int(os.environ.get("ED", "2"))
    for s in range(ED):
        dma(s, s)
    srd(36, P_B1, 1792 * 2)
    e("v_lshrrev_b32 v235, 4, v1")
    e("v_lshlrev_b32 v235, 3, v235")
    for i in range(7):
        e(f"buffer_load_dwordx2 v[{216+2*i}:{217+2*i}], v235, s[36:39], s61 offen offset:{32*i}")
    vm.add("b1", 7)
    LT = 4 * SB; LP = 1040; T2 = LT + 8 * LP
    e(f"s_mov_b32 s73, {f2u(1.0/512)}")
    stamp()
    vm.wait("x")
    stamp()
    for i in range(2):
        for j in range(4):
            e(f"v_lshlrev_b32 v{72+8*i+2*j}, 16, v{64+4*i+j}")
            e(f"v_and_b32 v{73+8*i+2*j}, s72, v{64+4*i+j}")
    for i in range(2):
        b = 72 + 8 * i; t = 88 + 4 * i
        e(f"v_pk_add_f32 v[{t}:{t+1}], v[{b}:{b+1}], v[{b+2}:{b+3}]")
        e(f"v_pk_add_f32 v[{t+2}:{t+3}], v[{b+4}:{b+5}], v[{b+6}:{b+7}]")
    for i in range(2):
        t = 88 + 4 * i
        e(f"v_pk_add_f32 v[{t}:{t+1}], v[{t}:{t+1}], v[{t+2}:{t+3}]")
    for i in range(2):
        t = 88 + 4 * i
        e(f"v_add_f32 v{t}, v{t}, v{t+1}")
    dpp_reduce([88, 92], "v_add_f32")
    e("v_readlane_b32 s70, v88, 63")
    e("v_readlane_b32 s71, v92, 63")
    e("v_mov_b32 v90, s73")
    e("s_nop 0")
    e("v_mul_f32 v89, s70, v90")
    e("v_mul_f32 v93, s71, v90")
    e("v_mov_b32 v88, v89")
    e("v_mov_b32 v92, v93")
    for i in range(2):
        b = 72 + 8 * i; m = 88 + 4 * i; d = 96 + 8 * i
        for j in range(4):
            e(f"v_pk_add_f32 v[{d+2*j}:{d+2*j+1}], v[{b+2*j}:{b+2*j+1}], v[{m}:{m+1}] neg_lo:[0,1] neg_hi:[0,1]")
    for i in range(2):
        d = 96 + 8 * i; t = 112 + 2 * i
        e(f"v_pk_mul_f32 v[{t}:{t+1}], v[{d}:{d+1}], v[{d}:{d+1}]")
    for j in range(1, 4):
        for i in range(2):
            d = 96 + 8 * i; t = 112 + 2 * i
            e(f"v_pk_fma_f32 v[{t}:{t+1}], v[{d+2*j}:{d+2*j+1}], v[{d+2*j}:{d+2*j+1}], v[{t}:{t+1}]")
    e("v_add_f32 v112, v112, v113")
    e("v_add_f32 v114, v114, v115")
    dpp_reduce([112, 114], "v_add_f32")
    e("v_readlane_b32 s70, v112, 63")
    e("v_readlane_b32 s71, v114, 63")
    e(f"s_mov_b32 s73, {f2u(1e-5)}")
    e("v_cvt_pk_bf16_f32 v116, v89, v93")
    e("v_mul_f32 v112, s70, v90")
    e("v_mul_f32 v113, s71, v90")
    e("v_lshlrev_b32 v89, 16, v116")
    e("v_and_b32 v93, s72, v116")
    e("v_lshlrev_b32 v88, 16, v116")
    e("v_and_b32 v92, s72, v116")
    def rnd2(a, b):
        e(f"v_cvt_pk_bf16_f32 v116, v{a}, v{b}")
        e(f"v_lshlrev_b32 v{a}, 16, v116")
        e(f"v_and_b32 v{b}, s72, v116")
    rnd2(112, 113)
    e("v_add_f32 v112, s73, v112")
    e("v_add_f32 v113, s73, v113")
    rnd2(112, 113)
    e("v_sqrt_f32 v112, v112")
    e("v_sqrt_f32 v113, v113")
    e("s_nop 0")
    rnd2(112, 113)
    e("v_rcp_f32 v91, v112")
    e("v_rcp_f32 v95, v113")
    e("s_nop 0")
    e("v_fma_f32 v114, -v112, v91, 1.0")
    e("v_fma_f32 v115, -v113, v95, 1.0")
    e("v_fmac_f32 v91, v91, v114")
    e("v_fmac_f32 v95, v95, v115")
    e("v_mov_b32 v90, v91")
    e("v_mov_b32 v94, v95")
    for i in range(2):
        b = 72 + 8 * i; m = 88 + 4 * i; d = 96 + 8 * i; P = 64 + 4 * i; H = 120 + 4 * i
        for j in range(4):
            e(f"v_pk_add_f32 v[{d+2*j}:{d+2*j+1}], v[{b+2*j}:{b+2*j+1}], v[{m}:{m+1}] neg_lo:[0,1] neg_hi:[0,1]")
        for j in range(4):
            e(f"v_cvt_pk_bf16_f32 v{P+j}, v{d+2*j}, v{d+2*j+1}")
        for j in range(4):
            e(f"v_lshlrev_b32 v{d+2*j}, 16, v{P+j}")
            e(f"v_and_b32 v{d+2*j+1}, s72, v{P+j}")
        for j in range(4):
            e(f"v_pk_mul_f32 v[{d+2*j}:{d+2*j+1}], v[{d+2*j}:{d+2*j+1}], v[{m+2}:{m+3}]")
        for j in range(4):
            e(f"v_cvt_pk_bf16_f32 v{P+j}, v{d+2*j}, v{d+2*j+1}")
        for j in range(4):
            e(f"v_lshlrev_b32 v{d+2*j}, 16, v{P+j}")
            e(f"v_and_b32 v{d+2*j+1}, s72, v{P+j}")
        for j in range(4):
            e(f"v_cvt_pk_f16_f32 v{H+j}, v{d+2*j}, v{d+2*j+1}")
    e(f"s_mul_i32 s70, s60, {2*LP}")
    e(f"s_add_u32 s70, s70, {LT}")
    e("v_add_u32 v230, s70, v2")
    for i in range(2):
        e(f"ds_write_b128 v230, v[{64+4*i}:{67+4*i}] offset:{LP*i}")
        e(f"ds_write_b128 v230, v[{120+4*i}:{123+4*i}] offset:{T2 - LT + LP*i}")
    stamp()
    e("s_waitcnt lgkmcnt(0)")
    nonce()
    e("s_barrier")
    e("s_cmp_ge_u32 s60, 2")
    e(f"s_cbranch_scc1 {px}_LNB")
    e("v_and_b32 v230, 7, v1")
    e("v_lshrrev_b32 v231, 5, v1")
    e("v_bfe_u32 v232, v1, 3, 2")
    e(f"v_mul_u32_u24 v233, {LP}, v230")
    e("v_lshl_add_u32 v233, v231, 6, v233")
    e("v_lshl_add_u32 v233, v232, 3, v233")
    e("s_lshl_b32 s70, s60, 9")
    e("v_add_u32 v233, s70, v233")
    e("v_lshlrev_b32 v234, 10, v231")
    e("v_lshl_add_u32 v234, v232, 8, v234")
    e("v_lshl_add_u32 v234, v230, 4, v234")
    for q in range(4):
        e(f"ds_read_b64 v[{64+4*q}:{65+4*q}], v233 offset:{LT + 128*q}")
        e(f"ds_read_b64 v[{66+4*q}:{67+4*q}], v233 offset:{LT + 128*q + 32}")
    e("s_lshr_b32 s70, s2, 1")
    e("s_lshl_b32 s70, s70, 14")
    e("s_and_b32 s71, s2, 1")
    e("s_lshl_b32 s71, s71, 7")
    e("s_add_u32 s70, s70, s71")
    e("s_lshl_b32 s71, s60, 13")
    e("s_add_u32 s70, s70, s71")
    for q in range(4):
        e(f"s_waitcnt lgkmcnt({6-2*q})")
        if q == 2:
            e("s_add_u32 s70, s70, 4096")
        e(f"buffer_store_dwordx4 v[{64+4*q}:{67+4*q}], v234, s[44:47], s70 offen offset:{2048*(q&1)} sc1")
    e(f"s_branch {px}_LNJ")
    lab(f"{px}_LNB")
    e("v_lshrrev_b32 v230, 4, v1")
    e("v_bfe_u32 v231, v1, 2, 2")
    e("v_and_b32 v232, 3, v1")
    e("v_sub_u32 v231, 3, v231")
    e(f"v_mul_u32_u24 v233, {LP}, v231")
    e("v_lshl_add_u32 v233, v230, 5, v233")
    e("v_lshl_add_u32 v233, v232, 3, v233")
    e("s_sub_u32 s71, s60, 2")
    e("s_lshl_b32 s70, s71, 9")
    e(f"s_add_u32 s70, s70, {T2}")
    e("v_add_u32 v233, s70, v233")
    for q in range(4):
        e(f"ds_read_b64_tr_b16 v[{64+4*q}:{65+4*q}], v233 offset:{4*LP + 128*q}")
        e(f"ds_read_b64_tr_b16 v[{66+4*q}:{67+4*q}], v233 offset:{128*q}")
    e("s_lshl_b32 s70, s2, 13")
    e("s_lshl_b32 s71, s71, 12")
    e("s_add_u32 s70, s70, s71")
    for q in range(4):
        e(f"s_waitcnt lgkmcnt({6-2*q})")
        e(f"buffer_store_dwordx4 v[{64+4*q}:{67+4*q}], v2, s[48:51], s70 offen offset:{1024*q} sc1")
    lab(f"{px}_LNJ")
    stamp()
    e("s_waitcnt vmcnt(0)")
    vm.drained()
    e("s_barrier")
    stamp()
    def c_():
        e("s_lshl_b32 s70, s2, 7")
        e(f"s_add_u32 s70, s70, {LN2F}")
    def c2_():
        e("s_lshl_b32 s70, s2, 2")
    publish(px, "LNF", c_, 230, c2_)
    lab(f"{px}_LNF")
    for s in range(ED, 5):
        dma(s, s)
    for i in range(7):
        for j in range(2):
            a = 4 + 8 * i + 4 * j
            e(f"v_lshlrev_b32 v{a}, 16, v{216+2*i}")
            e(f"v_and_b32 v{a+1}, s72, v{216+2*i}")
            e(f"v_lshlrev_b32 v{a+2}, 16, v{217+2*i}")
            e(f"v_and_b32 v{a+3}, s72, v{217+2*i}")
    e("v_lshrrev_b32 v230, 2, v1")
    e("v_mul_u32_u24 v3, 224, v230")
    e("v_and_b32 v230, 3, v1")
    e("v_lshl_add_u32 v3, v230, 3, v3")
    e("v_add_u32 v248, 0x8000, v3")
    e("v_lshlrev_b32 v245, 2, v1")
    e("s_lshl_b32 s67, s63, 3")
    e("s_lshl_b32 s70, s60, 1")
    e("s_add_u32 s67, s67, s70")
    e("s_lshl_b32 s73, s67, 14")
    srd(48, P_X, 0x200000)
    stamp()
    e("s_lshl_b32 s70, s63, 11")
    e("s_lshl_b32 s71, s60, 9")
    e("s_add_u32 s70, s70, s71")
    e(f"s_add_u32 s70, s70, {LN2F}")
    e("v_and_b32 v244, 3, v1")
    e("v_lshlrev_b32 v244, 7, v244")
    poll(52, 244, "s70", 4, 230, px, sleep=SLP)
    vm.drained()
    stamp()
    for s in range(4):
        bload(s)
    def xloads():
        e("v_lshrrev_b32 v231, 3, v1")
        e("v_and_b32 v232, 7, v1")
        e("v_lshlrev_b32 v233, 10, v231")
        e("v_lshl_add_u32 v233, v232, 4, v233")
        e("v_lshlrev_b32 v249, 12, v231")
        e("v_lshl_add_u32 v249, v232, 4, v249")
        e("s_lshl_b32 s70, s65, 16")
        e("s_lshl_b32 s71, s60, 14")
        e("s_add_u32 s70, s70, s71")
        e("s_lshl_b32 s71, s66, 7")
        e("s_add_u32 s70, s70, s71")
        e("s_lshl_b32 s71, s60, 11")
        e(f"s_add_u32 s71, s71, 73728")
        for q in range(2):
            e("s_mov_b32 m0, s71")
            e("s_nop 0")
            e("buffer_load_dwordx4 v233, s[48:51], s70 offen lds")
            if q == 0:
                e("s_add_u32 s70, s70, 8192")
                e("s_add_u32 s71, s71, 1024")
        vm.add("xt", 2)
        e("s_lshl_b32 s70, s66, 7")
        for i in range(4):
            e(f"buffer_load_dwordx2 v[{236+2*i}:{237+2*i}], v235, s[56:59], s70 offen offset:{32*i}")
        vm.add("b2", 4)
    AR = [160, 188]
    def lds_a_list(u):
        s, ksl = u >> 1, u & 1
        dst = AR[u & 1]
        out = []
        for i in range(7):
            for e2 in range(2):
                off = (s % 5)*SB + (32*ksl+16*e2)*224 + 32*i
                if off >= 0x8000:
                    out.append(f"ds_read_b64_tr_b16 v[{dst+4*i+2*e2}:{dst+4*i+2*e2+1}], v248 offset:{off - 0x8000}")
                else:
                    out.append(f"ds_read_b64_tr_b16 v[{dst+4*i+2*e2}:{dst+4*i+2*e2+1}], v3 offset:{off}")
        return out
    vm.wait(("D", 0), ("B", 0))
    e("s_barrier")
    stamp()
    for x in lds_a_list(0): e(x)
    for u in range(16):
        nxt = []
        if u + 1 < 16:
            if (u + 1) % 2 == 0:
                sn = (u + 1) >> 1
                if FINE and sn in (3, 5): stamp()
                vm.wait(("D", sn), ("B", sn))
                if FINE and sn in (3, 5): stamp()
                e("s_barrier")
                if sn == 4 or (FINE and sn in (3, 5)): stamp()
            nxt = lds_a_list(u + 1)
        e("s_waitcnt lgkmcnt(0)")
        s, ksl = u >> 1, u & 1
        R = 64 + 16 * (s % 6)
        A = AR[u & 1]
        for i in range(7):
            for j in range(2):
                a = 4 + 8 * i + 4 * j
                b = R + 8 * j + 4 * ksl
                e(f"v_mfma_f32_16x16x32_bf16 v[{a}:{a+3}], v[{A+4*i}:{A+4*i+3}], v[{b}:{b+3}], v[{a}:{a+3}]")
                if nxt: e(nxt.pop(0))
        if u % 2 == 1:
            sn = (u + 1) >> 1
            if sn >= 2 and sn + 3 < 8:
                dma(sn + 3, (sn + 3) % 5)
            if sn + 3 < 8:
                bload(sn + 3)
            if sn == 5:
                xloads()
    vm.drained()
    stamp()
    if os.environ.get("DEFER"):
        def c_():
            e("s_lshl_b32 s70, s2, 2")
            e(f"s_add_u32 s70, s70, {HINT}")
        publish(px, "HN", c_, 230)
        lab(f"{px}_HN")
    srd(36, P_WS, W2F_SZ, W2F_OFF)
    srd(40, P_WS, HF_SZ, HF_OFF)
    srd(44, P_WS, ST_SZ, ST_OFF)
    srd(48, P_OUT, 0x200000)
    NA, NB = 6, 4
    AREG = [68 + 16 * k for k in range(NA)]
    BREG = [164 + 16 * k for k in range(NB)]
    LA0, LA1 = NA, NA + 4
    def g2load(kind, k):
        fbl, q = k >> 2, k & 3
        R = (AREG[k % NA] if kind == "A" else BREG[k % NB])
        sr = 36 if kind == "A" else 40
        base = 68 if kind == "A" else 69
        sc = LSC
        e(f"s_add_u32 s70, s{base}, {fbl*14336 + q*4096}")
        for i in range(4):
            if q < 3:
                e(f"buffer_load_dwordx4 v[{R+4*i}:{R+4*i+3}], v2, s[{sr}:{sr+3}], s70 offen offset:{1024*i}{sc}")
            else:
                e(f"buffer_load_dwordx2 v[{R+4*i}:{R+4*i+1}], v244, s[{sr}:{sr+3}], s70 offen offset:{512*i}{sc}")
        vm.add((kind, k), 4)
    def g2dma(k):
        fbl, q = k >> 2, k & 3
        e(f"s_add_u32 s70, s68, {fbl*14336 + q*4096}")
        e(f"s_add_u32 s71, s35, {(k-LA0)*4096}")
        e("s_mov_b32 m0, s71")
        e("s_nop 0")
        n = 4 if q < 3 else 2
        for i in range(n):
            e(f"buffer_load_dwordx4 v2, s[36:39], s70 offen offset:{1024*i}{LSC} lds")
        vm.add(("L", k), n)
    def g2ldsread(k):
        q = k & 3
        R = AREG[k % NA]
        for i in range(4):
            if q < 3:
                e(f"ds_read_b128 v[{R+4*i}:{R+4*i+3}], v246 offset:{(k-LA0)*4096 + 1024*i}")
            else:
                e(f"ds_read_b64 v[{R+4*i}:{R+4*i+1}], v247 offset:{(k-LA0)*4096 + 512*i}")
    e("v_lshlrev_b32 v244, 3, v1")
    e("v_lshlrev_b32 v245, 2, v1")
    e("s_lshl_b32 s70, s66, 4")
    e("s_lshl_b32 s71, s60, 2")
    e("s_add_u32 s70, s70, s71")
    e("s_mul_i32 s68, s70, 14336")
    e("s_lshl_b32 s70, s65, 4")
    e("s_add_u32 s70, s70, s71")
    e("s_mul_i32 s69, s70, 14336")
    e("s_lshl_b32 s77, s66, 7")
    e(f"s_add_u32 s77, s77, {RFL}")
    e("buffer_load_dword v228, v245, s[52:55], s77 offen sc1")
    e(f"s_mov_b32 s74, {f2u(-GC2)}")
    e(f"s_mov_b32 s75, {f2u(-GC2)}")
    e(f"v_mov_b32 v246, {f2u(-GC1)}")
    e(f"v_mov_b32 v247, {f2u(-GC1)}")
    e("s_lshr_b32 s70, s67, 2")
    e("s_lshl_b32 s70, s70, 4")
    e("s_add_u32 s70, s70, s64")
    e("s_mul_i32 s70, s70, 14336")
    e("s_and_b32 s71, s67, 3")
    e("s_lshl_b32 s73, s71, 9")
    e("s_add_u32 s73, s73, s70")
    e("s_add_u32 s73, s73, 12288")
    e("s_lshl_b32 s71, s71, 10")
    e("s_add_u32 s70, s70, s71")
    def gelu_pairs(pairs, outs):
        T = [164 + 2 * k for k in range(len(pairs))]
        for a, t in zip(pairs, T):
            e(f"v_pk_mul_f32 v[{t}:{t+1}], v[{a}:{a+1}], v[{a}:{a+1}]")
        for a, t in zip(pairs, T):
            e(f"v_pk_fma_f32 v[{t}:{t+1}], v[{t}:{t+1}], s[74:75], v[246:247]")
        for a, t in zip(pairs, T):
            e(f"v_pk_mul_f32 v[{t}:{t+1}], v[{a}:{a+1}], v[{t}:{t+1}]")
        for t in T:
            e(f"v_exp_f32 v{t}, v{t}")
            e(f"v_exp_f32 v{t+1}, v{t+1}")
        e("s_nop 0")
        for t in T:
            e(f"v_pk_add_f32 v[{t}:{t+1}], v[{t}:{t+1}], 1.0 op_sel_hi:[1,0]")
        for t in T:
            e(f"v_rcp_f32 v{t}, v{t}")
            e(f"v_rcp_f32 v{t+1}, v{t+1}")
        e("s_nop 0")
        for a, t in zip(pairs, T):
            e(f"v_pk_mul_f32 v[{t}:{t+1}], v[{a}:{a+1}], v[{t}:{t+1}]")
        for t, o in zip(T, outs):
            e(f"v_cvt_pk_bf16_f32 v{o}, v{t}, v{t+1}")
    cnt = 0
    for q in range(3):
        for j in range(2):
            a0 = 4 + 8 * (2 * q) + 4 * j; a1 = 4 + 8 * (2 * q + 1) + 4 * j
            O = 176 + 4 * (cnt % 8); cnt += 1
            gelu_pairs([a0, a0 + 2, a1, a1 + 2], [O, O + 1, O + 2, O + 3])
            e(f"buffer_store_dwordx4 v[{O}:{O+3}], v2, s[40:43], s70 offen offset:{1024*j} sc1")
        if q < 2:
            e("s_add_u32 s70, s70, 4096")
    a0 = 4 + 48; a1 = 4 + 48 + 4
    O = 176 + 4 * (cnt % 8)
    gelu_pairs([a0, a0 + 2, a1, a1 + 2], [O, O + 1, O + 2, O + 3])
    e(f"buffer_store_dwordx2 v[{O}:{O+1}], v244, s[40:43], s73 offen sc1")
    e(f"buffer_store_dwordx2 v[{O+2}:{O+3}], v244, s[40:43], s73 offen offset:512 sc1")
    stamp()
    e("s_waitcnt vmcnt(0)")
    e("s_barrier")
    stamp()
    def c_():
        e("s_lshl_b32 s70, s63, 5")
        e("s_add_u32 s70, s70, s64")
        e("s_lshl_b32 s70, s70, 2")
        e(f"s_add_u32 s70, s70, {HFL}")
    def c0_():
        e("s_lshl_b32 s70, s63, 4")
        e("s_add_u32 s70, s70, s64")
        e("s_lshl_b32 s70, s70, 7")
        e(f"s_add_u32 s70, s70, {HF2}")
    publish(px, "HF", c0_, 230, c_)
    lab(f"{px}_HF")
    e("v_cmp_ne_u32 vcc, s34, v228")
    e("s_cmp_eq_u32 vcc_lo, 0")
    e(f"s_cbranch_scc1 {px}_RFOK")
    e("s_mov_b32 s70, s77")
    poll(52, 245, "s70", 32, 230, px)
    lab(f"{px}_RFOK")
    e("s_lshl_b32 s35, s60, 14")
    e("v_add_u32 v246, s35, v2")
    e("v_add_u32 v247, s35, v244")
    e("s_lshr_b32 s3, s65, 1")
    e("s_lshl_b32 s3, s3, 11")
    e("s_lshl_b32 s70, s60, 9")
    e("s_add_u32 s3, s3, s70")
    e(f"s_add_u32 s3, s3, {HF2}")
    e("v_and_b32 v248, 3, v1")
    e("v_lshlrev_b32 v248, 7, v248")
    e("s_mov_b32 s61, 0")
    def hwait(j):
        _uid[0] += 1
        lb = f"{px}_HW{_uid[0]}"
        e(f"s_bitcmp1_b32 s61, {j}")
        e(f"s_cbranch_scc1 {lb}_D")
        e(f"s_mov_b32 s76, {SPIN_MAX}")
        lab(lb)
        e("buffer_load_dword v230, v248, s[52:55], s3 offen sc1")
        e("s_waitcnt vmcnt(0)")
        e("v_cmp_eq_u32 vcc, s34, v230")
        e("s_and_b32 s61, vcc_lo, 15")
        e(f"s_bitcmp1_b32 s61, {j}")
        e(f"s_cbranch_scc1 {lb}_D")
        e(f"s_sleep {SLP}")
        e("s_sub_u32 s76, s76, 1")
        e("s_cmp_lg_u32 s76, 0")
        e(f"s_cbranch_scc1 {lb}")
        lab(lb + "_D")
    for k in range(3):
        g2load("A", k)
    e("buffer_load_dword v228, v248, s[52:55], s3 offen sc1")
    vm.add("hf")
    for k in range(3, NA):
        g2load("A", k)
    for i in range(64):
        e(f"v_mov_b32 v{4+i}, 0")
    vm.wait("hf")
    e("v_cmp_eq_u32 vcc, s34, v228")
    e("s_and_b32 s61, vcc_lo, 15")
    hwait(0)
    stamp()
    for k in range(NB):
        g2load("B", k)
    for k in range(LA0, LA1):
        g2dma(k)
    def sdma(real):
        if real:
            e("s_lshl_b32 s70, s66, 18")
            e("s_lshl_b32 s71, s60, 16")
            e("s_add_u32 s70, s70, s71")
            e("s_lshl_b32 s71, s65, 7")
            e("s_add_u32 s70, s70, s71")
            e("s_lshl_b32 s71, s60, 11")
            e("s_add_u32 s71, s71, 65536")
            for q in range(2):
                e("s_mov_b32 m0, s71")
                e("s_nop 0")
                e(f"buffer_load_dwordx4 v249, s[44:47], s70 offen{LSC} lds")
                if q == 0:
                    e("s_add_u32 s70, s70, 32768")
                    e("s_add_u32 s71, s71, 1024")
        else:
            for q in range(2):
                e("buffer_load_dword v229, v245, s[56:59], 0 offen")
    for k in range(16):
        vm.wait(("A", k), ("B", k))
        if LA0 <= k < LA1:
            e("s_waitcnt lgkmcnt(0)")
        if k in (0, 8): stamp()
        q = k & 3
        A = AREG[k % NA]; B = BREG[k % NB]
        for i in range(4):
            for j in range(4):
                a = 4 + 16 * j + 4 * i
                if q < 3:
                    e(f"v_mfma_f32_16x16x32_bf16 v[{a}:{a+3}], v[{A+4*i}:{A+4*i+3}], v[{B+4*j}:{B+4*j+3}], v[{a}:{a+3}]")
                else:
                    e(f"v_mfma_f32_16x16x16_bf16 v[{a}:{a+3}], v[{A+4*i}:{A+4*i+1}], v[{B+4*j}:{B+4*j+1}], v[{a}:{a+3}]")
        if k + NB < 16:
            if (k + NB) % 4 == 0:
                hwait((k + NB) // 4)
            g2load("B", k + NB)
        if k + NA < 16 and not (LA0 <= k + NA < LA1):
            g2load("A", k + NA)
        if LA0 <= k + 2 < LA1:
            vm.wait(("L", k + 2))
            g2ldsread(k + 2)
        if k == 10:
            e("s_lshl_b32 s77, s66, 7")
            e(f"s_add_u32 s77, s77, {SFL}")
            e("buffer_load_dword v228, v245, s[52:55], s77 offen sc1")
            vm.add("sf")
        if k == 12:
            vm.wait("sf")
            e("v_cmp_ne_u32 vcc, s34, v228")
            e("s_mov_b32 s62, vcc_lo")
            e("s_cmp_eq_u32 s62, 0")
            e(f"s_cbranch_scc0 {px}_SN")
            sdma(True)
            e(f"s_branch {px}_SJ")
            lab(f"{px}_SN")
            sdma(False)
            lab(f"{px}_SJ")
            vm.add("sd", 2)
    vm.drained()
    stamp()
    e("s_cmp_eq_u32 s62, 0")
    e(f"s_cbranch_scc1 {px}_SW")
    e("s_mov_b32 s70, s77")
    poll(52, 245, "s70", 32, 230, px)
    sdma(True)
    lab(f"{px}_SW")
    for j in range(4):
        for i in range(4):
            a = 4 + 16 * j + 4 * i
            e(f"ds_write_b128 v246, v[{a}:{a+3}] offset:{(4*j+i)*1024}")
    e("v_and_b32 v230, 15, v1")
    e("v_lshrrev_b32 v231, 4, v1")
    e("s_lshl_b32 s71, s60, 4")
    e("v_add_u32 v232, s71, v230")
    e("v_lshlrev_b32 v234, 7, v232")
    e("v_lshl_add_u32 v234, v231, 3, v234")
    e("v_add_u32 v234, 0x12000, v234")
    e("v_lshlrev_b32 v235, 9, v231")
    e("v_lshl_add_u32 v235, v232, 1, v235")
    e("v_add_u32 v235, 0x10000, v235")
    e("s_lshl_b32 s70, s65, 6")
    e("v_add_u32 v232, s70, v232")
    e("v_lshlrev_b32 v233, 10, v232")
    e("v_lshl_add_u32 v233, v231, 3, v233")
    e("s_lshl_b32 s73, s66, 7")
    e("s_lshl_b32 s70, s60, 12")
    e("v_add_u32 v246, s70, v2")
    e(f"s_mov_b32 s74, {f2u(-LOG2E)}")
    e("s_waitcnt vmcnt(0) lgkmcnt(0)")
    e("s_barrier")
    stamp()
    for ww in range(4):
        for i in range(4):
            r = 68 + 16 * ww + 4 * i
            e(f"ds_read_b128 v[{r}:{r+3}], v246 offset:{ww*16384 + i*1024}")
    e("s_waitcnt lgkmcnt(8)")
    for i in range(4):
        e(f"ds_read_b64 v[{132+2*i}:{133+2*i}], v234 offset:{32*i}")
    for q in range(8):
        e(f"v_pk_add_f32 v[{68+2*q}:{69+2*q}], v[{68+2*q}:{69+2*q}], v[{84+2*q}:{85+2*q}]")
    e("s_waitcnt lgkmcnt(4)")
    for i in range(4):
        for r in range(4):
            if i < 2:
                e(f"ds_read_u16 v{148+4*i+r}, v235 offset:{(16*i+r)*128}")
    for q in range(8):
        e(f"v_pk_add_f32 v[{100+2*q}:{101+2*q}], v[{100+2*q}:{101+2*q}], v[{116+2*q}:{117+2*q}]")
    for q in range(8):
        e(f"v_pk_add_f32 v[{68+2*q}:{69+2*q}], v[{68+2*q}:{69+2*q}], v[{100+2*q}:{101+2*q}]")
    e("s_waitcnt lgkmcnt(4)")
    for i in range(2, 4):
        for r in range(4):
            e(f"ds_read_u16 v{148+4*i+r}, v235 offset:{(16*i+r)*128}")
    def rnd(a, n, T):
        for k in range(n // 2):
            e(f"v_cvt_pk_bf16_f32 v{T+k}, v{a+2*k}, v{a+2*k+1}")
        for k in range(n // 2):
            e(f"v_lshlrev_b32 v{a+2*k}, 16, v{T+k}")
            e(f"v_and_b32 v{a+2*k+1}, s72, v{T+k}")
    def unp(dst, src, n):
        for k in range(n // 2):
            e(f"v_lshlrev_b32 v{dst+2*k}, 16, v{src+k}")
            e(f"v_and_b32 v{dst+2*k+1}, s72, v{src+k}")
    a = 68
    rnd(a, 16, 4)
    unp(16, 236, 16)
    for k in range(8):
        e(f"v_pk_add_f32 v[{a+2*k}:{a+2*k+1}], v[{a+2*k}:{a+2*k+1}], v[{16+2*k}:{17+2*k}]")
    rnd(a, 16, 4)
    for r in range(16):
        e(f"v_mul_f32 v{16+r}, s74, v{a+r}")
    for r in range(16):
        e(f"v_exp_f32 v{16+r}, v{16+r}")
    for k in range(8):
        e(f"v_pk_add_f32 v[{16+2*k}:{17+2*k}], v[{16+2*k}:{17+2*k}], 1.0 op_sel_hi:[1,0]")
    for r in range(16):
        e(f"v_rcp_f32 v{16+r}, v{16+r}")
    for k in range(8):
        e(f"v_pk_mul_f32 v[{a+2*k}:{a+2*k+1}], v[{a+2*k}:{a+2*k+1}], v[{16+2*k}:{17+2*k}]")
    rnd(a, 16, 4)
    e("s_waitcnt lgkmcnt(0)")
    for r in range(16):
        e(f"v_lshlrev_b32 v{16+r}, 16, v{148+r}")
    for k in range(8):
        e(f"v_pk_mul_f32 v[{a+2*k}:{a+2*k+1}], v[{a+2*k}:{a+2*k+1}], v[{16+2*k}:{17+2*k}]")
    rnd(a, 16, 4)
    unp(16, 132, 16)
    for k in range(8):
        e(f"v_pk_add_f32 v[{a+2*k}:{a+2*k+1}], v[{a+2*k}:{a+2*k+1}], v[{16+2*k}:{17+2*k}]")
    for k in range(8):
        e(f"v_cvt_pk_bf16_f32 v{32+k}, v{a+2*k}, v{a+2*k+1}")
    for i in range(4):
        e(f"buffer_store_dwordx2 v[{32+2*i}:{33+2*i}], v233, s[48:51], s73 offen offset:{32*i}")
    if STAMP:
        stamp()
        e("s_waitcnt vmcnt(0)")
    stamp_flush()
    e("s_endpgm")


def gen_C(px, rep=True, kc=True, waits='LH'):
    CH = 38400; CS = 4160; KB = 8 * CS
    SL = " sc1" if "L" in waits else ""
    SH = " sc1" if "H" in waits else ""
    stamp(True)
    e("s_sub_u32 s61, s2, 256")
    e("s_and_b32 s62, s61, 7")
    e("s_lshr_b32 s61, s61, 3")
    e("s_lshl_b32 s62, s62, 5")
    e("s_add_u32 s61, s61, s62")
    e("s_lshr_b32 s62, s60, 1")
    e("s_and_b32 s63, s60, 1")
    e("s_lshl_b32 s64, s61, 1")
    e("s_add_u32 s64, s64, s62")
    e(f"s_mul_i32 s65, s62, {CH}")
    e("v_and_b32 v6, 15, v1")
    e("v_lshrrev_b32 v7, 4, v1")
    srd(36, P_W2, 512 * 1792 * 2)
    srd(40, P_WS, W2F_SZ, W2F_OFF)
    srd(44, P_WS, XNB_SZ, XNB_OFF)
    srd(48, P_WS, ST_SZ, ST_OFF)
    srd(52, P_WS, FL_SZ, FL_OFF)
    e("s_mov_b32 s72, 0xffff0000")
    def uloads():
        e("s_lshl_b32 s70, s63, 7")
        e("v_add_u32 v34, s70, v1")
        e("v_sub_u32 v35, 255, v34")
        e("v_lshlrev_b32 v35, 13, v35")
        e("s_lshl_b32 s70, s64, 4")
        e("v_add_u32 v35, s70, v35")
        e("v_subrev_u32 v36, 0x2000, v35")
        e("v_subrev_u32 v37, 0x80000, v35")
        e("v_subrev_u32 v38, 0x82000, v35")
        e(f"buffer_load_dwordx4 v[168:171], v35, s[44:47], 0 offen{LSC}")
        e(f"buffer_load_dwordx4 v[172:175], v36, s[44:47], 0 offen{LSC}")
        e(f"buffer_load_dwordx4 v[176:179], v37, s[44:47], 0 offen{LSC}")
        e(f"buffer_load_dwordx4 v[180:183], v38, s[44:47], 0 offen{LSC}")
    if kc:
        e("s_lshl_b32 s66, s64, 8")
        e("s_lshl_b32 s67, s63, 7")
        e("s_add_u32 s66, s66, s67")
        e("v_lshl_add_u32 v8, v1, 1, s66")
        e("s_lshl_b32 s67, s64, 1")
        e("v_mov_b32 v9, s67")
        e(f"global_load_ushort v10, v8, s[{P_LAR}:{P_LAR+1}]")
        e(f"global_load_ushort v11, v8, s[{P_AIM}:{P_AIM+1}]")
        e(f"global_load_ushort v12, v8, s[{P_CR}:{P_CR+1}]")
        e(f"global_load_ushort v13, v8, s[{P_CI}:{P_CI+1}]")
        e(f"global_load_ushort v14, v9, s[{P_LDT}:{P_LDT+1}]")
        e(f"global_load_ushort v15, v9, s[{P_DSK}:{P_DSK+1}]")
        if "L" not in waits:
            uloads()
    def rep_loads():
        e("s_lshr_b32 s66, s64, 4")
        e("s_and_b32 s67, s64, 15")
        e("v_lshlrev_b32 v16, 12, v7")
        e("v_lshl_add_u32 v16, v6, 1, v16")
        e(f"s_mul_i32 s68, s67, {112*1024}")
        e("s_lshl_b32 s69, s66, 5")
        e("s_add_u32 s68, s68, s69")
        e("s_lshl_b32 s69, s63, 16")
        e("s_add_u32 s68, s68, s69")
        for k in range(4):
            e(f"s_add_u32 s{73}, s68, {k*16384}")
            for el in range(4):
                e(f"buffer_load_ushort v{200+4*k+el}, v16, s[36:39], s73 offen offset:{1024*el}")
    if rep and not kc:
        e("s_sub_u32 s35, s2, 256")
        e("s_lshl_b32 s35, s35, 2")
        e("s_add_u32 s35, s35, s60")
        e("s_cmp_ge_u32 s35, 896")
        e(f"s_cbranch_scc1 {px}_W1L")
        srd(44, P_W1, 512 * 1792 * 2)
        e(f"v_mul_u32_u24 v18, {4*3584}, v7")
        e("v_lshl_add_u32 v18, v6, 1, v18")
        for k in range(2):
            e("s_lshl_b32 s67, s35, 1")
            if k: e("s_add_u32 s67, s67, 1")
            e("s_mul_i32 s68, s67, 9363")
            e("s_lshr_b32 s68, s68, 16")
            e("s_mul_i32 s69, s68, 7")
            e("s_sub_u32 s69, s67, s69")
            e("s_lshr_b32 s70, s68, 4")
            e("s_and_b32 s68, s68, 15")
            e("s_mul_i32 s70, s70, 7")
            e("s_add_u32 s70, s70, s69")
            e("s_lshl_b32 s70, s70, 5")
            e(f"s_mul_i32 s68, s68, {32*3584}")
            e("s_add_u32 s70, s70, s68")
            for ee in range(8):
                e(f"s_add_u32 s71, s70, {(16*(ee>>2) + (ee&3))*3584}")
                e(f"buffer_load_ushort v{100+8*k+ee}, v18, s[44:47], s71 offen")
        lab(f"{px}_W1L")
    if kc:
        for i in range(8):
            d = 230 + i
            e("v_lshlrev_b32 v17, 3, v0")
            if i:
                e(f"v_add_u32 v17, {i}, v17")
            e("v_cvt_f32_u32 v17, v17")
            e("v_cvt_pk_bf16_f32 v17, v17, v17")
            e("v_lshlrev_b32 v17, 16, v17")
            e("v_cvt_u32_f32 v18, v17")
            e("v_lshrrev_b32 v17, 23, v17")
            e("v_subrev_u32 v17, 134, v17")
            e("v_med3_i32 v17, v17, 0, 3")
            e("v_lshrrev_b32 v19, 7, v18")
            e("v_and_b32 v20, 7, v18")
            e("v_lshl_add_u32 v19, v19, 3, v20")
            e("v_lshrrev_b32 v19, v17, v19")
            e("v_lshl_add_u32 v19, v17, 3, v19")
            e("v_bfe_u32 v20, v18, 3, 4")
            e("v_lshrrev_b32 v21, 4, v19")
            e("v_and_b32 v19, 15, v19")
            e("v_lshl_add_u32 v20, v21, 4, v20")
            e("v_lshl_add_u32 v19, v20, 4, v19")
            e(f"v_lshlrev_b32 v{d}, 1, v19")
    def rep_store():
        e("s_lshr_b32 s66, s64, 4")
        e("s_and_b32 s67, s64, 15")
        for k in range(4):
            e(f"v_lshl_or_b32 v{216+2*k}, v{201+4*k}, 16, v{200+4*k}")
            e(f"v_lshl_or_b32 v{217+2*k}, v{203+4*k}, 16, v{202+4*k}")
        e("s_lshr_b32 s68, s66, 2")
        e("s_lshl_b32 s68, s68, 4")
        e("s_add_u32 s68, s68, s67")
        e("s_mul_i32 s68, s68, 14336")
        e("s_and_b32 s69, s66, 3")
        e("s_lshl_b32 s70, s69, 10")
        e("s_add_u32 s70, s70, s68")
        e("s_lshl_b32 s71, s63, 13")
        e("s_add_u32 s70, s70, s71")
        e(f"buffer_store_dwordx4 v[216:219], v2, s[40:43], s70 offen{SL}")
        e("s_cmp_eq_u32 s63, 0")
        e(f"s_cbranch_scc0 {px}_RP1")
        e("s_add_u32 s70, s70, 4096")
        e(f"buffer_store_dwordx4 v[220:223], v2, s[40:43], s70 offen{SL}")
        e(f"s_branch {px}_RPJ")
        lab(f"{px}_RP1")
        e("s_lshl_b32 s70, s69, 9")
        e("s_add_u32 s70, s70, s68")
        e("s_add_u32 s70, s70, 12288")
        e("v_lshlrev_b32 v17, 3, v1")
        e(f"buffer_store_dwordx2 v[220:221], v17, s[40:43], s70 offen{SL}")
        lab(f"{px}_RPJ")
    stamp()
    e("s_waitcnt vmcnt(0)")
    stamp()
    if rep and not kc:
        rep_store()
        e("s_cmp_ge_u32 s35, 896")
        e(f"s_cbranch_scc1 {px}_W1E")
        srd(40, P_WS, W1F_SZ, W1F_OFF)
        e("s_lshl_b32 s67, s35, 11")
        for k in range(2):
            for j in range(4):
                e(f"v_lshl_or_b32 v{120+4*k+j}, v{101+8*k+2*j}, 16, v{100+8*k+2*j}")
            e(f"buffer_store_dwordx4 v[{120+4*k}:{123+4*k}], v2, s[40:43], s67 offen offset:{1024*k}")
        lab(f"{px}_W1E")
    if not kc:
        if not waits:
            pass
        stamp_flush()
        e("s_endpgm")
        return
    e(f"s_mov_b32 s66, {f2u(LOG2E_HI)}")
    e(f"s_mov_b32 s67, {f2u(LOG2E_LO)}")
    e(f"s_mov_b32 s68, {f2u(LN2)}")
    e(f"s_mov_b32 s69, {f2u(INV2PI)}")
    for r in (10, 11, 12, 13, 14, 15):
        e(f"v_lshlrev_b32 v{r}, 16, v{r}")
    def exp_acc(dst, x, t1, t2):
        e(f"v_mul_f32 v{t1}, s66, v{x}")
        e(f"v_fma_f32 v{t2}, v{x}, s66, -v{t1}")
        e(f"v_fmac_f32 v{t2}, s67, v{x}")
        e(f"v_exp_f32 v{dst}, v{t1}")
        e(f"v_mul_f32 v{t2}, s68, v{t2}")
        e(f"v_fmac_f32 v{dst}, v{dst}, v{t2}")
    exp_acc(16, 14, 17, 18)
    exp_acc(19, 10, 20, 21)
    e("v_cvt_pk_bf16_f32 v17, v16, v19")
    e("v_lshlrev_b32 v16, 16, v17")
    e("v_and_b32 v19, s72, v17")
    e("v_mul_f32 v19, v19, v16")
    e("v_mul_f32 v19, s66, v19")
    e("v_mul_f32 v20, v11, v16")
    e("v_mul_f32 v20, s69, v20")
    e("v_mul_f32 v22, v12, v16")
    e("v_mul_f32 v23, v13, v16")
    e("v_max_f32 v24, |v22|, |v23|")
    dpp_reduce([24], "v_max_f32")
    e("v_readlane_b32 s70, v24, 63")
    for k, (m, d) in enumerate(((1.0, 26), (8.0, 28), (128.0, 30))):
        e(f"v_mul_f32 v{32+k}, {f2u(-m)}, v19")
        e(f"v_mul_f32 v{36+k}, {f2u(m)}, v20")
    e("v_frexp_exp_i32_f32 v24, s70")
    for k in range(3):
        e(f"v_exp_f32 v{32+k}, v{32+k}")
        e(f"v_fract_f32 v{36+k}, v{36+k}")
    e("v_sub_u32 v25, 0, v24")
    for k in range(3):
        e(f"v_cos_f32 v{40+k}, v{36+k}")
        e(f"v_sin_f32 v{44+k}, v{36+k}")
    e("v_ldexp_f32 v22, v22, v25")
    e("v_ldexp_f32 v23, v23, v25")
    for k, d in enumerate((26, 28, 30)):
        e(f"v_mul_f32 v{d}, v{32+k}, v{40+k}")
        e(f"v_mul_f32 v{d+1}, v{32+k}, v{44+k}")
    e(f"s_mul_i32 s70, s63, 9216")
    e("s_add_u32 s70, s70, s65")
    e("v_lshlrev_b32 v32, 2, v1")
    e("v_add_u32 v32, s70, v32")
    e("v_mul_u32_u24 v33, 288, v6")
    e("v_lshl_add_u32 v33, v7, 4, v33")
    e("v_add_u32 v33, s70, v33")
    AT = 4608
    cur = 22
    for j in range(16):
        if j:
            nxt = 34 if cur != 34 else 36
            cmul(nxt, cur, 28, nxt)
            cur = nxt
        e(f"v_cvt_pk_f16_f32 v38, v{cur}, -v{cur+1}")
        e(f"ds_write_b32 v32, v38 offset:{288*j}")
    for ks in range(4):
        e(f"ds_read_b128 v[{120+4*ks}:{123+4*ks}], v33 offset:{64*ks}")
    e("v_mov_b32 v40, 1.0")
    e("v_mov_b32 v41, 0")
    e("v_mov_b32 v42, v26")
    e("v_mov_b32 v43, v27")
    for r in range(2, 8):
        cmul(40 + 2 * r, 40 + 2 * (r - 1), 26, 40 + 2 * r)
    e("v_mov_b32 v58, v30")
    e("v_mov_b32 v59, v31")
    for i in range(2, 17):
        cmul(56 + 2 * i, 56 + 2 * (i - 1), 30, 56 + 2 * i)
    def Rr(r): return 40 + 2 * r
    def Gi(i): return 56 + 2 * i
    tiles = [
        [(None, r) for r in range(8)] + [(1, r) for r in range(8)],
        [(2, 2 * r) for r in range(4)] + [(3, 2 * r) for r in range(4)] + [(4 + i, 4 * r) for i in range(4) for r in range(2)],
        [(8 + i, 0) for i in range(9)],
    ]
    for i in range(12):
        e(f"v_mov_b32 v{100+i}, 0")
    for T, rows in enumerate(tiles):
        for row, (gi, r) in enumerate(rows):
            tp = 92 + 2 * (row & 3)
            if gi is None:
                src = Rr(r)
            elif r == 0:
                src = Gi(gi)
            else:
                cmul(tp, Gi(gi), Rr(r), tp)
                src = tp
            e(f"v_cvt_pk_f16_f32 v{112 + (row & 3)}, v{src}, v{src+1}")
            e(f"ds_write_b32 v32, v{112 + (row & 3)} offset:{AT + 288*row}")
        for ks in range(4):
            e(f"ds_read_b128 v[{136+16*(T&1)+4*ks}:{139+16*(T&1)+4*ks}], v33 offset:{AT + 64*ks}")
        e("s_waitcnt lgkmcnt(0)")
        a = 100 + 4 * T
        for ks in range(4):
            A = 136 + 16 * (T & 1) + 4 * ks
            e(f"v_mfma_f32_16x16x32_f16 v[{a}:{a+3}], v[{A}:{A+3}], v[{120+4*ks}:{123+4*ks}], v[{a}:{a+3}]")
    stamp()
    rep_loads()
    e("s_mul_i32 s70, s63, 3072")
    e("s_add_u32 s70, s70, s65")
    e("v_lshlrev_b32 v34, 6, v6")
    e("v_lshl_add_u32 v34, v7, 4, v34")
    e("v_add_u32 v34, s70, v34")
    e("s_lshl_b32 s70, s63, 2")
    e("s_add_u32 s70, s70, s65")
    e("v_mov_b32 v35, s70")
    e("s_nop 3")
    for T in range(3):
        e(f"ds_write_b128 v34, v[{100+4*T}:{103+4*T}] offset:{18432 + 1024*T}")
    e(f"ds_write_b32 v35, v24 offset:{26112}")
    e("s_waitcnt lgkmcnt(0)")
    nonce()
    e("s_barrier")
    e("v_lshlrev_b32 v34, 4, v0")
    e("v_min_u32 v34, 3056, v34")
    e("v_mov_b32 v35, 0")
    for c in range(2):
        e(f"ds_read_b128 v[{40+16*c}:{43+16*c}], v34 offset:{c*CH + 18432}")
        e(f"ds_read_b128 v[{44+16*c}:{47+16*c}], v34 offset:{c*CH + 18432 + 3072}")
        e(f"ds_read_b64 v[{48+16*c}:{49+16*c}], v35 offset:{c*CH + 26112}")
    e("v_lshrrev_b32 v36, 1, v34")
    e("s_waitcnt lgkmcnt(0)")
    for c in range(2):
        b = 40 + 16 * c
        e(f"v_max_i32 v{b+10}, v{b+8}, v{b+9}")
        e(f"v_sub_u32 v{b+8}, v{b+8}, v{b+10}")
        e(f"v_sub_u32 v{b+9}, v{b+9}, v{b+10}")
        for j in range(4):
            e(f"v_ldexp_f32 v{b+j}, v{b+j}, v{b+8}")
            e(f"v_ldexp_f32 v{b+4+j}, v{b+4+j}, v{b+9}")
        for j in range(4):
            e(f"v_add_f32 v{b+j}, v{b+j}, v{b+4+j}")
        e(f"v_cvt_pk_f16_f32 v{b+12}, v{b}, v{b+1}")
        e(f"v_cvt_pk_f16_f32 v{b+13}, v{b+2}, v{b+3}")
        e(f"ds_write_b64 v36, v[{b+12}:{b+13}] offset:{c*CH + 24576}")
    e("s_cmp_eq_u32 s62, 0")
    e("s_cselect_b64 vcc, -1, 0")
    e("s_nop 1")
    e("v_cndmask_b32 v25, v66, v50, vcc")
    e("v_add_u32 v25, 1, v25")
    e("s_waitcnt lgkmcnt(0)")
    e("s_barrier")
    for c in range(2):
        for i in range(8):
            e(f"ds_read_u16 v{40+8*c+i}, v{230+i} offset:{c*CH + 24576}")
    e("v_lshrrev_b32 v34, 2, v0")
    e("v_lshlrev_b32 v34, 5, v34")
    e("v_bfe_u32 v35, v0, 1, 1")
    e("v_mul_u32_u24 v35, 2560, v35")
    e("v_and_b32 v36, 1, v0")
    e("v_lshl_add_u32 v34, v36, 4, v34")
    e("v_add_u32 v34, v34, v35")
    e("v_bfe_u32 v35, v0, 5, 1")
    e("v_mul_u32_u24 v35, 2560, v35")
    e("v_and_b32 v36, 31, v0")
    e("v_lshl_add_u32 v35, v36, 4, v35")
    e("v_bfe_u32 v36, v0, 6, 1")
    e(f"v_mul_u32_u24 v36, {CH}, v36")
    e("v_add_u32 v35, v35, v36")
    for j in range(4):
        e(f"v_mov_b32 v{64+j}, 0")
    e(f"ds_write_b128 v35, v[64:67] offset:{KB}")
    e("s_waitcnt lgkmcnt(1)")
    for c in range(2):
        for j in range(4):
            e(f"v_lshl_or_b32 v{56+4*c+j}, v{41+8*c+2*j}, 16, v{40+8*c+2*j}")
        if c == 1:
            e(f"v_add_u32 v37, {CH}, v34")
        e(f"ds_write_b128 v{34 if c == 0 else 37}, v[{56+4*c}:{59+4*c}] offset:{KB + 512}")
    if DUMPK:
        srd(36, P_WS, KP_SZ, KP_OFF)
        e("s_mul_i32 s70, s61, 10240")
        e("buffer_store_dwordx4 v[56:59], v34, s[36:39], s70 offen offset:512")
        e("s_add_u32 s70, s70, 5120")
        e("buffer_store_dwordx4 v[60:63], v34, s[36:39], s70 offen offset:512")
        e("s_lshl_b32 s70, s64, 2")
        e(f"s_add_u32 s70, s70, {KP_SZ - 4096}")
        e("v_mov_b32 v36, 0")
        e("buffer_store_dword v25, v36, s[36:39], s70 offen")
    stamp()
    e("s_waitcnt vmcnt(0) lgkmcnt(0)")
    rep_store()
    e("s_cmp_eq_u32 s60, 0")
    e(f"s_cbranch_scc0 {px}_W1")
    e("v_lshlrev_b32 v34, 2, v1")
    poll(52, 34, "0", 64, 36, px, ndw=4, sleep=8)
    lab(f"{px}_W1")
    e("s_waitcnt vmcnt(0)")
    e("s_barrier")
    stamp()
    def c_():
        e("s_lshl_b32 s70, s61, 2")
        e(f"s_add_u32 s70, s70, {RFL}")
    publish(px, "RF2", c_, 36)
    lab(f"{px}_RF2")
    if "L" in waits:
        uloads()
    e("s_lshl_b32 s70, s63, 7")
    e("v_add_u32 v34, s70, v1")
    e("v_lshlrev_b32 v34, 4, v34")
    e("v_add_u32 v34, s65, v34")
    e("v_lshrrev_b32 v35, 2, v1")
    e(f"v_mul_u32_u24 v35, {CS}, v35")
    e("v_and_b32 v36, 3, v1")
    e("v_lshl_add_u32 v35, v36, 4, v35")
    e(f"s_mul_i32 s70, s63, {4*CS}")
    e("s_add_u32 s70, s70, s65")
    e("v_add_u32 v35, s70, v35")
    for j in range(4):
        e(f"v_mov_b32 v{88+j}, 0")
    e("s_mov_b64 exec, 0xffff")
    e("ds_write_b128 v35, v[88:91] offset:4096")
    e("s_mov_b64 exec, -1")
    e("v_and_b32 v35, 3, v6")
    e("v_sub_u32 v35, 7, v35")
    e(f"v_mul_u32_u24 v35, {CS}, v35")
    e("v_lshrrev_b32 v36, 2, v6")
    e("v_sub_u32 v36, v7, v36")
    e("v_lshl_add_u32 v35, v36, 4, v35")
    e("s_lshl_b32 s70, s63, 6")
    e("s_sub_u32 s70, s65, s70")
    e(f"s_add_u32 s70, s70, {4080 - 64*62}")
    e("v_add_u32 v12, s70, v35")
    e(f"v_subrev_u32 v13, {4*CS}, v12")
    e("v_lshrrev_b32 v35, 1, v7")
    e("v_mul_u32_u24 v35, 2560, v35")
    e("v_lshl_add_u32 v35, v6, 5, v35")
    e("v_and_b32 v36, 1, v7")
    e("v_lshl_add_u32 v35, v36, 4, v35")
    e("s_lshl_b32 s70, s63, 5")
    e("s_sub_u32 s70, s65, s70")
    e(f"s_add_u32 s70, s70, {KB+32}")
    e("v_add_u32 v14, s70, v35")
    for it in range(2):
        I = 168 + 8 * it
        O = 48 + 24 * it
        e(f"s_waitcnt vmcnt({2 - 2*it})")
        for j in range(7):
            e(f"v_alignbit_b32 v{O+j}, v{I+j+1}, v{I+j}, 16")
        off = 1024 * it
        e(f"ds_write_b128 v34, v[{I}:{I+3}] offset:{off}")
        e(f"ds_write_b128 v34, v[{I+2}:{I+5}] offset:{off + 4*CS}")
        e(f"ds_write_b128 v34, v[{O}:{O+3}] offset:{off + 1*CS}")
        e(f"ds_write_b128 v34, v[{O+2}:{O+5}] offset:{off + 5*CS}")
        M = 92 + 16 * it
        for k, (src, s) in enumerate(((I + 1, 2), (I + 3, 6), (O + 1, 3), (O + 3, 7))):
            e(f"v_pk_mov_b32 v[{M+4*k}:{M+4*k+1}], v[{src-1}:{src}], v[{src+1}:{src+2}] op_sel:[1,0]")
            e(f"v_pk_mov_b32 v[{M+4*k+2}:{M+4*k+3}], v[{src+1}:{src+2}], v[{src+3}:{src+4}] op_sel:[1,0]")
            e(f"ds_write_b128 v34, v[{M+4*k}:{M+4*k+3}] offset:{off + s*CS}")
    ACC = 16
    e("v_mov_b32 v10, v25")
    e("v_mov_b32 v11, v15")
    for i in range(32):
        e(f"v_mov_b32 v{ACC+i}, 0")
    stamp()
    e("s_waitcnt vmcnt(0) lgkmcnt(0)")
    e("s_barrier")
    stamp()
    if os.environ.get("L2PF"):
        e("v_lshlrev_b32 v8, 2, v1")
        e(f"s_mov_b32 s70, {RFL}")
        poll(52, 8, "s70", 64, 120, px, ndw=4, sleep=4)
        e("s_sub_u32 s70, s2, 256")
        e("s_lshr_b32 s70, s70, 3")
        e("s_lshl_b32 s70, s70, 2")
        e("s_add_u32 s70, s70, s60")
        e("s_mul_i32 s70, s70, 14336")
        for q in range(14):
            if q and q % 4 == 0:
                e("s_add_u32 s70, s70, 4096")
            e(f"buffer_load_dwordx4 v[124:127], v2, s[40:43], s70 offen offset:{1024*(q%4)}")
    e("s_cmp_eq_u32 s60, 0")
    e(f"s_cbranch_scc0 {px}_RF")
    if os.environ.get("DEFER"):
        e("s_sub_u32 s70, s2, 256")
        e("s_lshl_b32 s70, s70, 2")
        e(f"s_add_u32 s70, s70, {HINT}")
        e("v_mov_b32 v8, 0")
        poll(52, 8, "s70", 1, 9, px, sleep=3)
    lab(f"{px}_RF")
    if os.environ.get("DEFER"):
        e("s_barrier")
    stamp()
    NB = 3
    FR = [48 + 24 * b for b in range(NB)]
    def nI(pp):
        return 4 - (2 * pp) // 16
    def issue_list(pp):
        R = FR[pp % NB]
        out = []
        for h in range(2):
            out.append(f"ds_read_b128 v[{R+4*h}:{R+4*h+3}], v{12+h} offset:{64*(62-2*pp)}")
        for I in range(4 - nI(pp), 4):
            out.append(f"ds_read_b128 v[{R+8+4*I}:{R+11+4*I}], v14 offset:{32*(16*I-2*pp+15)}")
        return out
    cnts = {}
    for pp in range(NB - 1):
        l_ = issue_list(pp); cnts[pp] = len(l_)
        for x in l_: e(x)
    for pp in range(32):
        nxt = issue_list(pp + NB - 1) if pp + NB - 1 < 32 else []
        pend = sum(cnts[k] for k in range(pp + 1, min(32, pp + NB - 1)))
        cnts[pp + NB - 1] = len(nxt)
        e(f"s_waitcnt lgkmcnt({pend})")
        R = FR[pp % NB]
        for I in range(4 - nI(pp), 4):
            for h in range(2):
                a = ACC + 8 * I + 4 * h
                e(f"v_mfma_f32_16x16x32_f16 v[{a}:{a+3}], v[{R+4*h}:{R+4*h+3}], v[{R+8+4*I}:{R+11+4*I}], v[{a}:{a+3}]")
                if nxt: e(nxt.pop(0))
        for x in nxt: e(x)
    e("s_nop 7")
    stamp()
    e("s_barrier")
    e("s_lshl_b32 s70, s63, 12")
    e("s_add_u32 s70, s70, s65")
    e(f"s_add_u32 s70, s70, {CS}")
    e("v_add_u32 v8, s70, v2")
    e("s_xor_b32 s71, s63, 1")
    e("s_lshl_b32 s70, s71, 12")
    e("s_add_u32 s70, s70, s65")
    e(f"s_add_u32 s70, s70, {CS}")
    e("v_add_u32 v9, s70, v2")
    e("s_cmp_eq_u32 s63, 0")
    e(f"s_cbranch_scc1 {px}_P0")
    for t in range(4):
        e(f"ds_write_b128 v8, v[{ACC+4*t}:{ACC+4*t+3}] offset:{1024*t}")
    for i in range(8):
        e(f"v_pk_mov_b32 v[{48+2*i}:{49+2*i}], v[{ACC+16+2*i}:{ACC+17+2*i}], v[{ACC+16+2*i}:{ACC+17+2*i}] op_sel:[0,1]")
    e(f"s_branch {px}_PJ")
    lab(f"{px}_P0")
    for t in range(4):
        e(f"ds_write_b128 v8, v[{ACC+16+4*t}:{ACC+16+4*t+3}] offset:{1024*t}")
    for i in range(8):
        e(f"v_pk_mov_b32 v[{48+2*i}:{49+2*i}], v[{ACC+2*i}:{ACC+1+2*i}], v[{ACC+2*i}:{ACC+1+2*i}] op_sel:[0,1]")
    lab(f"{px}_PJ")
    e("s_waitcnt lgkmcnt(0)")
    e("s_barrier")
    for t in range(4):
        e(f"ds_read_b128 v[{64+4*t}:{67+4*t}], v9 offset:{1024*t}")
    e("v_lshlrev_b32 v5, 6, v6")
    e("v_lshl_add_u32 v5, v7, 4, v5")
    e("s_lshl_b32 s70, s63, 11")
    e("s_sub_u32 s70, s65, s70")
    e(f"s_add_u32 s70, s70, {4080-1024}")
    e("v_sub_u32 v8, s70, v5")
    for Il in range(2):
        e(f"ds_read_b128 v[{80+4*Il}:{83+4*Il}], v8 offset:{1024*(1-Il)}")
    e("s_lshl_b32 s70, s64, 12")
    e("s_lshl_b32 s71, s63, 11")
    e("s_add_u32 s70, s70, s71")
    e("s_waitcnt lgkmcnt(0)")
    for Il in range(2):
        a = 48 + 8 * Il
        for k in range(4):
            e(f"v_pk_add_f32 v[{a+2*k}:{a+2*k+1}], v[{a+2*k}:{a+2*k+1}], v[{64+8*Il+2*k}:{65+8*Il+2*k}]")
        for k in range(8):
            e(f"v_ldexp_f32 v{a+k}, v{a+k}, v10")
        for k in range(4):
            e(f"v_cvt_pk_bf16_f32 v{88+k}, v{a+2*k}, v{a+2*k+1}")
        for k in range(4):
            e(f"v_lshlrev_b32 v{a+2*k}, 16, v{88+k}")
            e(f"v_and_b32 v{a+2*k+1}, s72, v{88+k}")
        U = 80 + 4 * Il
        for k in range(4):
            src = U + 3 - k
            e(f"v_cvt_f32_f16_sdwa v{92+2*k}, v{src} dst_sel:DWORD dst_unused:UNUSED_PAD src0_sel:WORD_1")
            e(f"v_cvt_f32_f16 v{93+2*k}, v{src}")
        for k in range(8):
            e(f"v_mul_f32 v{92+k}, v{92+k}, v11")
        for k in range(4):
            e(f"v_cvt_pk_bf16_f32 v{88+k}, v{92+2*k}, v{93+2*k}")
        for k in range(4):
            e(f"v_lshlrev_b32 v{92+2*k}, 16, v{88+k}")
            e(f"v_and_b32 v{93+2*k}, s72, v{88+k}")
        for k in range(4):
            e(f"v_pk_add_f32 v[{a+2*k}:{a+2*k+1}], v[{a+2*k}:{a+2*k+1}], v[{92+2*k}:{93+2*k}]")
        for k in range(4):
            e(f"v_cvt_pk_bf16_f32 v{100+4*Il+k}, v{a+2*k}, v{a+2*k+1}")
        e(f"buffer_store_dwordx4 v[{100+4*Il}:{103+4*Il}], v5, s[48:51], s70 offen offset:{1024*Il}{SH}")
    stamp()
    e("s_waitcnt vmcnt(0)")
    e("s_barrier")
    def c_():
        e("s_lshl_b32 s70, s61, 2")
        e(f"s_add_u32 s70, s70, {SFL}")
    publish(px, "SF", c_, 36)
    e("s_cmp_eq_u32 s61, 0")
    e(f"s_cbranch_scc0 {px}_SF")
    e("v_lshlrev_b32 v34, 2, v1")
    e(f"s_mov_b32 s70, {RFL}")
    poll(52, 34, "s70", 64, 36, px, ndw=4, sleep=8)
    e("s_add_u32 s35, s35, 1")
    e("v_mov_b32 v34, 0")
    e("v_mov_b32 v35, s35")
    e(f"s_mov_b32 s70, {EPO}")
    e("s_mov_b64 exec, 1")
    e("buffer_store_dword v35, v34, s[52:55], s70 offen sc1")
    e("s_mov_b64 exec, -1")
    lab(f"{px}_SF")
    stamp_flush()
    e("s_endpgm")


def gen_kernel(name, px):
    kernel_begin(name)
    e("s_cmp_ge_u32 s2, 512")
    e(f"s_cbranch_scc1 {px}_END")
    e("s_load_dwordx16 s[4:19], s[0:1], 0")
    e("s_load_dwordx8 s[20:27], s[0:1], 64")
    e("s_load_dwordx4 s[28:31], s[0:1], 96")
    e("s_load_dwordx2 s[32:33], s[0:1], 112")
    e("v_and_b32 v1, 63, v0")
    e("v_readfirstlane_b32 s60, v0")
    e("v_lshlrev_b32 v2, 4, v1")
    e("s_lshr_b32 s60, s60, 6")
    e("s_waitcnt lgkmcnt(0)")
    e(f"s_add_u32 s36, s32, 0x{FL_OFF:x}")
    e("s_addc_u32 s37, s33, 0")
    e(f"s_load_dword s35, s[36:37], {EPO}")
    e("s_cmp_ge_u32 s2, 256")
    e(f"s_cbranch_scc1 {px}_C")
    gen_G(px + "G")
    lab(f"{px}_C")
    gen_C(px + "C")
    lab(f"{px}_END")
    e("s_endpgm")

LDS = 81920
KN = "pf_kernel" if os.environ.get("LIST") or len(sys.argv) > 1 else "recurrent_scan__ssm_conv_s4d__dense_activation_gelu__prompt_kernel"
gen_kernel(KN, "F")
hdr = "; S4D conv + FFN fused op, single launch (generated by gen/gen8.py)\n"
if KN == "pf_kernel":
    hdr += f"; @launch kernel=pf_kernel grid=(512,1,1) block=(256,1,1) lds={LDS}\n"
else:
    hdr += f"; @launch grid=(512,1,1) block=(256,1,1) lds={LDS}\n"
hdr += '.amdgcn_target "amdgcn-amd-amdhsa--gfx950"\n.text\n'
txt = hdr + "\n".join(L) + "\n" + '.section .rodata,"a"\n'
txt += kd(KN, 256, 102, 256)
open(OUT, "w").write(txt)
print("wrote", OUT, len(txt))
```

```python
import struct, sys, os

OUT = sys.argv[1] if len(sys.argv) > 1 else "recurrent_scan__ssm_conv_s4d__dense_activation_gelu__prompt.s"
SPLIT = os.environ.get("SPLIT", "") != ""
STAMP = os.environ.get("STAMP", "") != ""
DUMPK = os.environ.get("DUMPK", "") != ""

L = []
def e(s=""):
    L.append("    " + s)
def lab(s):
    L.append(s + ":")
def f2u(x):
    return "0x%08x" % struct.unpack("<I", struct.pack("<f", x))[0]

XNF_OFF = 0x0;        XNF_SZ = 0x200000
XNB_OFF = 0x200000;   XNB_SZ = 0x200000
W2F_OFF = 0x400000;   W2F_SZ = 8 * 16 * 14336
HF_OFF  = 0x600000;   HF_SZ = 32 * 16 * 14336
ST_OFF  = 0xD80000;   ST_SZ = 512 * 4096
FL_OFF  = 0xF80000;   FL_SZ = 0x14000
LNF, HFL, SFL, RFL, EPO, HINT = 0, 1024, 3072, 4096, 5120, 6144
HF2, LN2F = 0x4000, 0xC000
SLP = int(os.environ.get('SLP', '2'))
W1F_OFF = 0x1400000;  W1F_SZ = 1792 * 1024
KP_OFF  = 0x1000000;  KP_SZ = 512 * 5120
DBG_OFF = 0x1800000

LOG2E = 1.4426950408889634
LOG2E_HI = struct.unpack("<f", struct.pack("<f", LOG2E))[0]
LOG2E_LO = LOG2E - LOG2E_HI
LN2 = 0.6931471805599453
INV2PI = 0.15915494309189535
GC1 = 2 * 0.7978845608028654 * LOG2E
GC2 = GC1 * 0.044715
SPIN_MAX = 1 << 20
FINE = os.environ.get("FINE")
LSC = " sc1" if os.environ.get("LSC") else ""

P_X, P_LAR, P_AIM, P_CR, P_CI, P_LDT, P_DSK = 4, 6, 8, 10, 12, 14, 16
P_W1, P_B1, P_W2, P_B2, P_OUT, P_DBG, P_WS = 20, 22, 24, 26, 28, 30, 32

def srd(dst, ptr, size, off=0):
    if off:
        e(f"s_add_u32 s{dst}, s{ptr}, 0x{off:x}")
        e(f"s_addc_u32 s{dst+1}, s{ptr+1}, 0")
    else:
        e(f"s_mov_b32 s{dst}, s{ptr}")
        e(f"s_mov_b32 s{dst+1}, s{ptr+1}")
    e(f"s_mov_b32 s{dst+2}, 0x{size:x}")
    e(f"s_mov_b32 s{dst+3}, 0x00020000")

_st = [0]
KIDX = [0]
def stamp(reset=False):
    if not STAMP: return
    if reset:
        _st[0] = 0
        e("s_memrealtime s[78:79]")
    k = _st[0]; _st[0] += 1
    assert k < 28
    e("s_memtime s[100:101]")
    e("s_waitcnt lgkmcnt(0)")
    if k < 20:
        e(f"s_mov_b32 s{80+k}, s100")
    else:
        e(f"v_mov_b32 v{250+k-20}, s100")
def stamp_flush():
    if not STAMP: return
    stamp()
    e("s_mov_b64 exec, 1")
    e("s_memrealtime s[100:101]")
    srd(36, P_WS, 0x80000, DBG_OFF + KIDX[0] * 0x80000)
    e("v_readfirstlane_b32 s40, v0")
    e("s_lshr_b32 s40, s40, 6")
    e("s_lshl_b32 s41, s2, 2")
    e("s_add_u32 s40, s40, s41")
    e("s_lshl_b32 s40, s40, 7")
    e("v_mov_b32 v1, 0")
    e("s_waitcnt lgkmcnt(0)")
    e("v_mov_b32 v2, s100")
    e("v_mov_b32 v3, s78")
    e(f"v_mov_b32 v4, {_st[0]}")
    e("buffer_store_dwordx3 v[2:4], v1, s[36:39], s40 offen")
    for k in range(_st[0]):
        e(f"v_mov_b32 v5, s{80+k}" if k < 20 else f"v_mov_b32 v5, v{250+k-20}")
        e(f"buffer_store_dword v5, v1, s[36:39], s40 offen offset:{16+4*k}")
        e("s_nop 1")
    e("s_mov_b64 exec, -1")

def kernel_begin(name):
    L.append(f".globl {name}")
    L.append(".p2align 8")
    L.append(f".type {name},@function")
    lab(name)

def kd(name, vgpr, sgpr, accum):
    return f""".p2align 6
.amdhsa_kernel {name}
  .amdhsa_next_free_vgpr {vgpr}
  .amdhsa_next_free_sgpr {sgpr}
  .amdhsa_accum_offset {accum}
  .amdhsa_group_segment_fixed_size 0
  .amdhsa_kernarg_size 120
  .amdhsa_user_sgpr_count 2
  .amdhsa_user_sgpr_kernarg_segment_ptr 1
  .amdhsa_system_sgpr_workgroup_id_x 1
.end_amdhsa_kernel
"""

def cmul(d, x, y, t):
    e(f"v_pk_mul_f32 v[{t}:{t+1}], v[{x}:{x+1}], v[{y}:{y+1}] op_sel:[0,0] op_sel_hi:[0,1]")
    e(f"v_pk_fma_f32 v[{d}:{d+1}], v[{x}:{x+1}], v[{y}:{y+1}], v[{t}:{t+1}] op_sel:[1,1,0] op_sel_hi:[1,0,1] neg_lo:[1,0,0]")

_uid = [0]
def poll(srd_r, voff, soff, nlanes, vt, tag, ndw=1, sleep=4):
    _uid[0] += 1
    lb = f"POLL_{tag}_{_uid[0]}"
    e(f"s_mov_b32 s76, {SPIN_MAX}")
    if nlanes < 64:
        e(f"s_mov_b32 s74, 0x{(1 << nlanes) - 1:x}")
        e("s_mov_b32 s75, 0")
    else:
        e("s_mov_b64 s[74:75], -1")
    lab(lb)
    for k in range(ndw):
        e(f"buffer_load_dword v{vt+k}, v{voff}, s[{srd_r}:{srd_r+3}], {soff} offen offset:{256*k} sc1")
    e("s_waitcnt vmcnt(0)")
    for k in range(1, ndw):
        e(f"v_xor_b32 v{vt+k}, s34, v{vt+k}")
    e(f"v_xor_b32 v{vt}, s34, v{vt}")
    for k in range(1, ndw):
        e(f"v_or_b32 v{vt}, v{vt}, v{vt+k}")
    e(f"v_cmp_ne_u32 vcc, 0, v{vt}")
    e("s_and_b64 vcc, vcc, s[74:75]")
    e(f"s_cbranch_scc0 {lb}_D")
    e(f"s_sleep {sleep}")
    e("s_sub_u32 s76, s76, 1")
    e("s_cmp_lg_u32 s76, 0")
    e(f"s_cbranch_scc1 {lb}")
    lab(lb + "_D")

def nonce():
    e("s_mul_i32 s34, s35, 0x9E3779B1")
    e("s_xor_b32 s34, s34, 0x85EBCA6B")

def publish(px, tag, soff_code, vt, second=None):
    e("s_cmp_eq_u32 s60, 0")
    e(f"s_cbranch_scc0 {px}_{tag}")
    soff_code()
    e(f"v_mov_b32 v{vt}, 0")
    e(f"v_mov_b32 v{vt+1}, s34")
    e("s_mov_b64 exec, 1")
    e(f"buffer_store_dword v{vt+1}, v{vt}, s[52:55], s70 offen sc1")
    if second:
        second()
        e(f"buffer_store_dword v{vt+1}, v{vt}, s[52:55], s70 offen sc1")
    e("s_mov_b64 exec, -1")

def dpp_reduce(regs, op):
    steps = ["quad_perm:[1,0,3,2] row_mask:0xf bank_mask:0xf", "quad_perm:[2,3,0,1] row_mask:0xf bank_mask:0xf",
             "row_half_mirror row_mask:0xf bank_mask:0xf", "row_mirror row_mask:0xf bank_mask:0xf",
             "row_bcast:15 row_mask:0xa bank_mask:0xf", "row_bcast:31 row_mask:0xc bank_mask:0xf"]
    for st in steps:
        e(f"s_nop {1 if len(regs) < 2 else 0}" if len(regs) < 3 else "s_nop 0")
        for r in regs:
            e(f"{op}_dpp v{r}, v{r}, v{r} {st}")
    e("s_nop 0")

class VM:
    def __init__(self): self.ops = []
    def add(self, tag, n=1): self.ops += [tag] * n
    def wait(self, *tags):
        idx = [i for i, o in enumerate(self.ops) if o in tags]
        if not idx: return
        n = len(self.ops) - 1 - max(idx)
        assert n < 64
        e(f"s_waitcnt vmcnt({n})")
    def drained(self): self.ops = []

def gen_G(px):
    vm = VM()
    stamp(True)
    e("s_setprio 2")
    e("s_and_b32 s61, s2, 7")
    e("s_lshr_b32 s62, s2, 3")
    e("s_lshr_b32 s63, s61, 1")
    e("s_lshl_b32 s63, s63, 2")
    e("s_lshr_b32 s67, s62, 3")
    e("s_add_u32 s63, s63, s67")
    e("s_and_b32 s64, s61, 1")
    e("s_lshl_b32 s64, s64, 3")
    e("s_and_b32 s66, s62, 7")
    e("s_add_u32 s64, s64, s66")
    e("s_lshl_b32 s65, s61, 2")
    e("s_add_u32 s65, s65, s67")
    SB = 14336
    srd(36, P_X, 0x200000)
    e("s_lshl_b32 s67, s2, 13")
    e("s_lshl_b32 s68, s60, 11")
    e("s_add_u32 s67, s67, s68")
    e("buffer_load_dwordx4 v[64:67], v2, s[36:39], s67 offen")
    e("buffer_load_dwordx4 v[68:71], v2, s[36:39], s67 offen offset:1024")
    vm.add("x", 2)
    srd(40, P_W1, 512 * 1792 * 2)
    srd(44, P_WS, XNF_SZ, XNF_OFF)
    srd(48, P_WS, XNB_SZ, XNB_OFF)
    srd(52, P_WS, FL_SZ, FL_OFF)
    srd(56, P_B2, 1024)
    e("s_mul_i32 s70, s60, 224")
    e("s_mov_b32 s72, 4682")
    for q in range(4):
        e(f"v_add_u32 v{60+q}, s70, v1")
        if q:
            e(f"v_add_u32 v{60+q}, {64*q}, v{60+q}")
        e(f"v_mul_lo_u32 v230, v{60+q}, s72")
        e("v_lshrrev_b32 v230, 16, v230")
        e("v_mul_u32_u24 v231, 14, v230")
        e(f"v_sub_u32 v231, v{60+q}, v231")
        e("v_mul_u32_u24 v230, 3584, v230")
        e(f"v_lshl_add_u32 v{60+q}, v231, 4, v230")
    e("s_mul_i32 s61, s64, 224")
    e("s_mul_i32 s62, s60, 3584")
    e("s_mov_b32 s72, 0xffff0000")
    ROT = os.environ.get("ROT")
    def dma(s, buf):
        if ROT:
            e(f"s_add_u32 s68, s66, {s}")
            e("s_and_b32 s68, s68, 7")
            e(f"s_mul_i32 s68, s68, {64*3584}")
            e("s_add_u32 s68, s68, s61")
        else:
            e(f"s_add_u32 s68, s61, {s*64*3584}")
        for q in range(4):
            e(f"s_add_u32 s70, s62, {buf*SB + q*1024}")
            e("s_mov_b32 m0, s70")
            if q == 3:
                e("s_mov_b32 exec_hi, 0")
            else:
                e("s_nop 0")
            e(f"buffer_load_dwordx4 v{60+q}, s[40:43], s68 offen lds")
        e("s_mov_b64 exec, -1")
        vm.add(("D", s), 4)
    def bload(s):
        R = 64 + 16 * (s % 6)
        if ROT:
            e(f"s_add_u32 s70, s66, {s}")
            e("s_and_b32 s70, s70, 7")
            e("s_lshl_b32 s70, s70, 11")
            e("s_add_u32 s70, s70, s73")
            e("s_add_u32 s71, s70, 16384")
        else:
            e(f"s_add_u32 s70, s73, {s*2048}")
            e(f"s_add_u32 s71, s73, {s*2048 + 16384}")
        for j in range(2):
            for k in range(2):
                r = R + 8 * j + 4 * k
                e(f"buffer_load_dwordx4 v[{r}:{r+3}], v2, s[44:47], s{70 if j == 0 else 71} offen offset:{1024*k}{LSC}")
        vm.add(("B", s), 4)
    ED = int(os.environ.get("ED", "2"))
    for s in range(ED):
        dma(s, s)
    srd(36, P_B1, 1792 * 2)
    e("v_lshrrev_b32 v235, 4, v1")
    e("v_lshlrev_b32 v235, 3, v235")
    for i in range(7):
        e(f"buffer_load_dwordx2 v[{216+2*i}:{217+2*i}], v235, s[36:39], s61 offen offset:{32*i}")
    vm.add("b1", 7)
    LT = 4 * SB; LP = 1040; T2 = LT + 8 * LP
    e(f"s_mov_b32 s73, {f2u(1.0/512)}")
    stamp()
    vm.wait("x")
    stamp()
    for i in range(2):
        for j in range(4):
            e(f"v_lshlrev_b32 v{72+8*i+2*j}, 16, v{64+4*i+j}")
            e(f"v_and_b32 v{73+8*i+2*j}, s72, v{64+4*i+j}")
    for i in range(2):
        b = 72 + 8 * i; t = 88 + 4 * i
        e(f"v_pk_add_f32 v[{t}:{t+1}], v[{b}:{b+1}], v[{b+2}:{b+3}]")
        e(f"v_pk_add_f32 v[{t+2}:{t+3}], v[{b+4}:{b+5}], v[{b+6}:{b+7}]")
    for i in range(2):
        t = 88 + 4 * i
        e(f"v_pk_add_f32 v[{t}:{t+1}], v[{t}:{t+1}], v[{t+2}:{t+3}]")
    for i in range(2):
        t = 88 + 4 * i
        e(f"v_add_f32 v{t}, v{t}, v{t+1}")
    dpp_reduce([88, 92], "v_add_f32")
    e("v_readlane_b32 s70, v88, 63")
    e("v_readlane_b32 s71, v92, 63")
    e("v_mov_b32 v90, s73")
    e("s_nop 0")
    e("v_mul_f32 v89, s70, v90")
    e("v_mul_f32 v93, s71, v90")
    e("v_mov_b32 v88, v89")
    e("v_mov_b32 v92, v93")
    for i in range(2):
        b = 72 + 8 * i; m = 88 + 4 * i; d = 96 + 8 * i
        for j in range(4):
            e(f"v_pk_add_f32 v[{d+2*j}:{d+2*j+1}], v[{b+2*j}:{b+2*j+1}], v[{m}:{m+1}] neg_lo:[0,1] neg_hi:[0,1]")
    for i in range(2):
        d = 96 + 8 * i; t = 112 + 2 * i
        e(f"v_pk_mul_f32 v[{t}:{t+1}], v[{d}:{d+1}], v[{d}:{d+1}]")
    for j in range(1, 4):
        for i in range(2):
            d = 96 + 8 * i; t = 112 + 2 * i
            e(f"v_pk_fma_f32 v[{t}:{t+1}], v[{d+2*j}:{d+2*j+1}], v[{d+2*j}:{d+2*j+1}], v[{t}:{t+1}]")
    e("v_add_f32 v112, v112, v113")
    e("v_add_f32 v114, v114, v115")
    dpp_reduce([112, 114], "v_add_f32")
    e("v_readlane_b32 s70, v112, 63")
    e("v_readlane_b32 s71, v114, 63")
    e(f"s_mov_b32 s73, {f2u(1e-5)}")
    e("v_cvt_pk_bf16_f32 v116, v89, v93")
    e("v_mul_f32 v112, s70, v90")
    e("v_mul_f32 v113, s71, v90")
    e("v_lshlrev_b32 v89, 16, v116")
    e("v_and_b32 v93, s72, v116")
    e("v_lshlrev_b32 v88, 16, v116")
    e("v_and_b32 v92, s72, v116")
    def rnd2(a, b):
        e(f"v_cvt_pk_bf16_f32 v116, v{a}, v{b}")
        e(f"v_lshlrev_b32 v{a}, 16, v116")
        e(f"v_and_b32 v{b}, s72, v116")
    rnd2(112, 113)
    e("v_add_f32 v112, s73, v112")
    e("v_add_f32 v113, s73, v113")
    rnd2(112, 113)
    e("v_sqrt_f32 v112, v112")
    e("v_sqrt_f32 v113, v113")
    e("s_nop 0")
    rnd2(112, 113)
    e("v_rcp_f32 v91, v112")
    e("v_rcp_f32 v95, v113")
    e("s_nop 0")
    e("v_fma_f32 v114, -v112, v91, 1.0")
    e("v_fma_f32 v115, -v113, v95, 1.0")
    e("v_fmac_f32 v91, v91, v114")
    e("v_fmac_f32 v95, v95, v115")
    e("v_mov_b32 v90, v91")
    e("v_mov_b32 v94, v95")
    for i in range(2):
        b = 72 + 8 * i; m = 88 + 4 * i; d = 96 + 8 * i; P = 64 + 4 * i; H = 120 + 4 * i
        for j in range(4):
            e(f"v_pk_add_f32 v[{d+2*j}:{d+2*j+1}], v[{b+2*j}:{b+2*j+1}], v[{m}:{m+1}] neg_lo:[0,1] neg_hi:[0,1]")
        for j in range(4):
            e(f"v_cvt_pk_bf16_f32 v{P+j}, v{d+2*j}, v{d+2*j+1}")
        for j in range(4):
            e(f"v_lshlrev_b32 v{d+2*j}, 16, v{P+j}")
            e(f"v_and_b32 v{d+2*j+1}, s72, v{P+j}")
        for j in range(4):
            e(f"v_pk_mul_f32 v[{d+2*j}:{d+2*j+1}], v[{d+2*j}:{d+2*j+1}], v[{m+2}:{m+3}]")
        for j in range(4):
            e(f"v_cvt_pk_bf16_f32 v{P+j}, v{d+2*j}, v{d+2*j+1}")
        for j in range(4):
            e(f"v_lshlrev_b32 v{d+2*j}, 16, v{P+j}")
            e(f"v_and_b32 v{d+2*j+1}, s72, v{P+j}")
        for j in range(4):
            e(f"v_cvt_pk_f16_f32 v{H+j}, v{d+2*j}, v{d+2*j+1}")
    e(f"s_mul_i32 s70, s60, {2*LP}")
    e(f"s_add_u32 s70, s70, {LT}")
    e("v_add_u32 v230, s70, v2")
    for i in range(2):
        e(f"ds_write_b128 v230, v[{64+4*i}:{67+4*i}] offset:{LP*i}")
        e(f"ds_write_b128 v230, v[{120+4*i}:{123+4*i}] offset:{T2 - LT + LP*i}")
    stamp()
    e("s_waitcnt lgkmcnt(0)")
    nonce()
    e("s_barrier")
    e("s_cmp_ge_u32 s60, 2")
    e(f"s_cbranch_scc1 {px}_LNB")
    e("v_and_b32 v230, 7, v1")
    e("v_lshrrev_b32 v231, 5, v1")
    e("v_bfe_u32 v232, v1, 3, 2")
    e(f"v_mul_u32_u24 v233, {LP}, v230")
    e("v_lshl_add_u32 v233, v231, 6, v233")
    e("v_lshl_add_u32 v233, v232, 3, v233")
    e("s_lshl_b32 s70, s60, 9")
    e("v_add_u32 v233, s70, v233")
    e("v_lshlrev_b32 v234, 10, v231")
    e("v_lshl_add_u32 v234, v232, 8, v234")
    e("v_lshl_add_u32 v234, v230, 4, v234")
    for q in range(4):
        e(f"ds_read_b64 v[{64+4*q}:{65+4*q}], v233 offset:{LT + 128*q}")
        e(f"ds_read_b64 v[{66+4*q}:{67+4*q}], v233 offset:{LT + 128*q + 32}")
    e("s_lshr_b32 s70, s2, 1")
    e("s_lshl_b32 s70, s70, 14")
    e("s_and_b32 s71, s2, 1")
    e("s_lshl_b32 s71, s71, 7")
    e("s_add_u32 s70, s70, s71")
    e("s_lshl_b32 s71, s60, 13")
    e("s_add_u32 s70, s70, s71")
    for q in range(4):
        e(f"s_waitcnt lgkmcnt({6-2*q})")
        if q == 2:
            e("s_add_u32 s70, s70, 4096")
        e(f"buffer_store_dwordx4 v[{64+4*q}:{67+4*q}], v234, s[44:47], s70 offen offset:{2048*(q&1)} sc1")
    e(f"s_branch {px}_LNJ")
    lab(f"{px}_LNB")
    e("v_lshrrev_b32 v230, 4, v1")
    e("v_bfe_u32 v231, v1, 2, 2")
    e("v_and_b32 v232, 3, v1")
    e("v_sub_u32 v231, 3, v231")
    e(f"v_mul_u32_u24 v233, {LP}, v231")
    e("v_lshl_add_u32 v233, v230, 5, v233")
    e("v_lshl_add_u32 v233, v232, 3, v233")
    e("s_sub_u32 s71, s60, 2")
    e("s_lshl_b32 s70, s71, 9")
    e(f"s_add_u32 s70, s70, {T2}")
    e("v_add_u32 v233, s70, v233")
    for q in range(4):
        e(f"ds_read_b64_tr_b16 v[{64+4*q}:{65+4*q}], v233 offset:{4*LP + 128*q}")
        e(f"ds_read_b64_tr_b16 v[{66+4*q}:{67+4*q}], v233 offset:{128*q}")
    e("s_lshl_b32 s70, s2, 13")
    e("s_lshl_b32 s71, s71, 12")
    e("s_add_u32 s70, s70, s71")
    for q in range(4):
        e(f"s_waitcnt lgkmcnt({6-2*q})")
        e(f"buffer_store_dwordx4 v[{64+4*q}:{67+4*q}], v2, s[48:51], s70 offen offset:{1024*q} sc1")
    lab(f"{px}_LNJ")
    stamp()
    e("s_waitcnt vmcnt(0)")
    vm.drained()
    e("s_barrier")
    stamp()
    def c_():
        e("s_lshl_b32 s70, s2, 7")
        e(f"s_add_u32 s70, s70, {LN2F}")
    def c2_():
        e("s_lshl_b32 s70, s2, 2")
    publish(px, "LNF", c_, 230, c2_)
    lab(f"{px}_LNF")
    for s in range(ED, 5):
        dma(s, s)
    for i in range(7):
        for j in range(2):
            a = 4 + 8 * i + 4 * j
            e(f"v_lshlrev_b32 v{a}, 16, v{216+2*i}")
            e(f"v_and_b32 v{a+1}, s72, v{216+2*i}")
            e(f"v_lshlrev_b32 v{a+2}, 16, v{217+2*i}")
            e(f"v_and_b32 v{a+3}, s72, v{217+2*i}")
    e("v_lshrrev_b32 v230, 2, v1")
    e("v_mul_u32_u24 v3, 224, v230")
    e("v_and_b32 v230, 3, v1")
    e("v_lshl_add_u32 v3, v230, 3, v3")
    e("v_add_u32 v248, 0x8000, v3")
    e("v_lshlrev_b32 v245, 2, v1")
    e("s_lshl_b32 s67, s63, 3")
    e("s_lshl_b32 s70, s60, 1")
    e("s_add_u32 s67, s67, s70")
    e("s_lshl_b32 s73, s67, 14")
    srd(48, P_X, 0x200000)
    stamp()
    e("s_lshl_b32 s70, s63, 11")
    e("s_lshl_b32 s71, s60, 9")
    e("s_add_u32 s70, s70, s71")
    e(f"s_add_u32 s70, s70, {LN2F}")
    e("v_and_b32 v244, 3, v1")
    e("v_lshlrev_b32 v244, 7, v244")
    poll(52, 244, "s70", 4, 230, px, sleep=SLP)
    vm.drained()
    stamp()
    for s in range(4):
        bload(s)
    def xloads():
        e("v_lshrrev_b32 v231, 3, v1")
        e("v_and_b32 v232, 7, v1")
        e("v_lshlrev_b32 v233, 10, v231")
        e("v_lshl_add_u32 v233, v232, 4, v233")
        e("v_lshlrev_b32 v249, 12, v231")
        e("v_lshl_add_u32 v249, v232, 4, v249")
        e("s_lshl_b32 s70, s65, 16")
        e("s_lshl_b32 s71, s60, 14")
        e("s_add_u32 s70, s70, s71")
        e("s_lshl_b32 s71, s66, 7")
        e("s_add_u32 s70, s70, s71")
        e("s_lshl_b32 s71, s60, 11")
        e(f"s_add_u32 s71, s71, 73728")
        for q in range(2):
            e("s_mov_b32 m0, s71")
            e("s_nop 0")
            e("buffer_load_dwordx4 v233, s[48:51], s70 offen lds")
            if q == 0:
                e("s_add_u32 s70, s70, 8192")
                e("s_add_u32 s71, s71, 1024")
        vm.add("xt", 2)
        e("s_lshl_b32 s70, s66, 7")
        for i in range(4):
            e(f"buffer_load_dwordx2 v[{236+2*i}:{237+2*i}], v235, s[56:59], s70 offen offset:{32*i}")
        vm.add("b2", 4)
    AR = [160, 188]
    def lds_a_list(u):
        s, ksl = u >> 1, u & 1
        dst = AR[u & 1]
        out = []
        for i in range(7):
            for e2 in range(2):
                off = (s % 5)*SB + (32*ksl+16*e2)*224 + 32*i
                if off >= 0x8000:
                    out.append(f"ds_read_b64_tr_b16 v[{dst+4*i+2*e2}:{dst+4*i+2*e2+1}], v248 offset:{off - 0x8000}")
                else:
                    out.append(f"ds_read_b64_tr_b16 v[{dst+4*i+2*e2}:{dst+4*i+2*e2+1}], v3 offset:{off}")
        return out
    vm.wait(("D", 0), ("B", 0))
    e("s_barrier")
    stamp()
    for x in lds_a_list(0): e(x)
    for u in range(16):
        nxt = []
        if u + 1 < 16:
            if (u + 1) % 2 == 0:
                sn = (u + 1) >> 1
                if FINE and sn in (3, 5): stamp()
                vm.wait(("D", sn), ("B", sn))
                if FINE and sn in (3, 5): stamp()
                e("s_barrier")
                if sn == 4 or (FINE and sn in (3, 5)): stamp()
            nxt = lds_a_list(u + 1)
        e("s_waitcnt lgkmcnt(0)")
        s, ksl = u >> 1, u & 1
        R = 64 + 16 * (s % 6)
        A = AR[u & 1]
        for i in range(7):
            for j in range(2):
                a = 4 + 8 * i + 4 * j
                b = R + 8 * j + 4 * ksl
                e(f"v_mfma_f32_16x16x32_bf16 v[{a}:{a+3}], v[{A+4*i}:{A+4*i+3}], v[{b}:{b+3}], v[{a}:{a+3}]")
                if nxt: e(nxt.pop(0))
        if u % 2 == 1:
            sn = (u + 1) >> 1
            if sn >= 2 and sn + 3 < 8:
                dma(sn + 3, (sn + 3) % 5)
            if sn + 3 < 8:
                bload(sn + 3)
            if sn == 5:
                xloads()
    vm.drained()
    stamp()
    if os.environ.get("DEFER"):
        def c_():
            e("s_lshl_b32 s70, s2, 2")
            e(f"s_add_u32 s70, s70, {HINT}")
        publish(px, "HN", c_, 230)
        lab(f"{px}_HN")
    srd(36, P_WS, W2F_SZ, W2F_OFF)
    srd(40, P_WS, HF_SZ, HF_OFF)
    srd(44, P_WS, ST_SZ, ST_OFF)
    srd(48, P_OUT, 0x200000)
    NA, NB = 6, 4
    AREG = [68 + 16 * k for k in range(NA)]
    BREG = [164 + 16 * k for k in range(NB)]
    LA0, LA1 = NA, NA + 4
    def g2load(kind, k):
        fbl, q = k >> 2, k & 3
        R = (AREG[k % NA] if kind == "A" else BREG[k % NB])
        sr = 36 if kind == "A" else 40
        base = 68 if kind == "A" else 69
        sc = LSC
        e(f"s_add_u32 s70, s{base}, {fbl*14336 + q*4096}")
        for i in range(4):
            if q < 3:
                e(f"buffer_load_dwordx4 v[{R+4*i}:{R+4*i+3}], v2, s[{sr}:{sr+3}], s70 offen offset:{1024*i}{sc}")
            else:
                e(f"buffer_load_dwordx2 v[{R+4*i}:{R+4*i+1}], v244, s[{sr}:{sr+3}], s70 offen offset:{512*i}{sc}")
        vm.add((kind, k), 4)
    def g2dma(k):
        fbl, q = k >> 2, k & 3
        e(f"s_add_u32 s70, s68, {fbl*14336 + q*4096}")
        e(f"s_add_u32 s71, s35, {(k-LA0)*4096}")
        e("s_mov_b32 m0, s71")
        e("s_nop 0")
        n = 4 if q < 3 else 2
        for i in range(n):
            e(f"buffer_load_dwordx4 v2, s[36:39], s70 offen offset:{1024*i}{LSC} lds")
        vm.add(("L", k), n)
    def g2ldsread(k):
        q = k & 3
        R = AREG[k % NA]
        for i in range(4):
            if q < 3:
                e(f"ds_read_b128 v[{R+4*i}:{R+4*i+3}], v246 offset:{(k-LA0)*4096 + 1024*i}")
            else:
                e(f"ds_read_b64 v[{R+4*i}:{R+4*i+1}], v247 offset:{(k-LA0)*4096 + 512*i}")
    e("v_lshlrev_b32 v244, 3, v1")
    e("v_lshlrev_b32 v245, 2, v1")
    e("s_lshl_b32 s70, s66, 4")
    e("s_lshl_b32 s71, s60, 2")
    e("s_add_u32 s70, s70, s71")
    e("s_mul_i32 s68, s70, 14336")
    e("s_lshl_b32 s70, s65, 4")
    e("s_add_u32 s70, s70, s71")
    e("s_mul_i32 s69, s70, 14336")
    e("s_lshl_b32 s77, s66, 7")
    e(f"s_add_u32 s77, s77, {RFL}")
    e("buffer_load_dword v228, v245, s[52:55], s77 offen sc1")
    e(f"s_mov_b32 s74, {f2u(-GC2)}")
    e(f"s_mov_b32 s75, {f2u(-GC2)}")
    e(f"v_mov_b32 v246, {f2u(-GC1)}")
    e(f"v_mov_b32 v247, {f2u(-GC1)}")
    e("s_lshr_b32 s70, s67, 2")
    e("s_lshl_b32 s70, s70, 4")
    e("s_add_u32 s70, s70, s64")
    e("s_mul_i32 s70, s70, 14336")
    e("s_and_b32 s71, s67, 3")
    e("s_lshl_b32 s73, s71, 9")
    e("s_add_u32 s73, s73, s70")
    e("s_add_u32 s73, s73, 12288")
    e("s_lshl_b32 s71, s71, 10")
    e("s_add_u32 s70, s70, s71")
    def gelu_pairs(pairs, outs):
        T = [164 + 2 * k for k in range(len(pairs))]
        for a, t in zip(pairs, T):
            e(f"v_pk_mul_f32 v[{t}:{t+1}], v[{a}:{a+1}], v[{a}:{a+1}]")
        for a, t in zip(pairs, T):
            e(f"v_pk_fma_f32 v[{t}:{t+1}], v[{t}:{t+1}], s[74:75], v[246:247]")
        for a, t in zip(pairs, T):
            e(f"v_pk_mul_f32 v[{t}:{t+1}], v[{a}:{a+1}], v[{t}:{t+1}]")
        for t in T:
            e(f"v_exp_f32 v{t}, v{t}")
            e(f"v_exp_f32 v{t+1}, v{t+1}")
        e("s_nop 0")
        for t in T:
            e(f"v_pk_add_f32 v[{t}:{t+1}], v[{t}:{t+1}], 1.0 op_sel_hi:[1,0]")
        for t in T:
            e(f"v_rcp_f32 v{t}, v{t}")
            e(f"v_rcp_f32 v{t+1}, v{t+1}")
        e("s_nop 0")
        for a, t in zip(pairs, T):
            e(f"v_pk_mul_f32 v[{t}:{t+1}], v[{a}:{a+1}], v[{t}:{t+1}]")
        for t, o in zip(T, outs):
            e(f"v_cvt_pk_bf16_f32 v{o}, v{t}, v{t+1}")
    cnt = 0
    for q in range(3):
        for j in range(2):
            a0 = 4 + 8 * (2 * q) + 4 * j; a1 = 4 + 8 * (2 * q + 1) + 4 * j
            O = 176 + 4 * (cnt % 8); cnt += 1
            gelu_pairs([a0, a0 + 2, a1, a1 + 2], [O, O + 1, O + 2, O + 3])
            e(f"buffer_store_dwordx4 v[{O}:{O+3}], v2, s[40:43], s70 offen offset:{1024*j} sc1")
        if q < 2:
            e("s_add_u32 s70, s70, 4096")
    a0 = 4 + 48; a1 = 4 + 48 + 4
    O = 176 + 4 * (cnt % 8)
    gelu_pairs([a0, a0 + 2, a1, a1 + 2], [O, O + 1, O + 2, O + 3])
    e(f"buffer_store_dwordx2 v[{O}:{O+1}], v244, s[40:43], s73 offen sc1")
    e(f"buffer_store_dwordx2 v[{O+2}:{O+3}], v244, s[40:43], s73 offen offset:512 sc1")
    stamp()
    e("s_waitcnt vmcnt(0)")
    e("s_barrier")
    stamp()
    def c_():
        e("s_lshl_b32 s70, s63, 5")
        e("s_add_u32 s70, s70, s64")
        e("s_lshl_b32 s70, s70, 2")
        e(f"s_add_u32 s70, s70, {HFL}")
    def c0_():
        e("s_lshl_b32 s70, s63, 4")
        e("s_add_u32 s70, s70, s64")
        e("s_lshl_b32 s70, s70, 7")
        e(f"s_add_u32 s70, s70, {HF2}")
    publish(px, "HF", c0_, 230, c_)
    lab(f"{px}_HF")
    e("v_cmp_ne_u32 vcc, s34, v228")
    e("s_cmp_eq_u32 vcc_lo, 0")
    e(f"s_cbranch_scc1 {px}_RFOK")
    e("s_mov_b32 s70, s77")
    poll(52, 245, "s70", 32, 230, px)
    lab(f"{px}_RFOK")
    e("s_lshl_b32 s35, s60, 14")
    e("v_add_u32 v246, s35, v2")
    e("v_add_u32 v247, s35, v244")
    e("s_lshr_b32 s3, s65, 1")
    e("s_lshl_b32 s3, s3, 11")
    e("s_lshl_b32 s70, s60, 9")
    e("s_add_u32 s3, s3, s70")
    e(f"s_add_u32 s3, s3, {HF2}")
    e("v_and_b32 v248, 3, v1")
    e("v_lshlrev_b32 v248, 7, v248")
    e("s_mov_b32 s61, 0")
    def hwait(j):
        _uid[0] += 1
        lb = f"{px}_HW{_uid[0]}"
        e(f"s_bitcmp1_b32 s61, {j}")
        e(f"s_cbranch_scc1 {lb}_D")
        e(f"s_mov_b32 s76, {SPIN_MAX}")
        lab(lb)
        e("buffer_load_dword v230, v248, s[52:55], s3 offen sc1")
        e("s_waitcnt vmcnt(0)")
        e("v_cmp_eq_u32 vcc, s34, v230")
        e("s_and_b32 s61, vcc_lo, 15")
        e(f"s_bitcmp1_b32 s61, {j}")
        e(f"s_cbranch_scc1 {lb}_D")
        e(f"s_sleep {SLP}")
        e("s_sub_u32 s76, s76, 1")
        e("s_cmp_lg_u32 s76, 0")
        e(f"s_cbranch_scc1 {lb}")
        lab(lb + "_D")
    for k in range(3):
        g2load("A", k)
    e("buffer_load_dword v228, v248, s[52:55], s3 offen sc1")
    vm.add("hf")
    for k in range(3, NA):
        g2load("A", k)
    for i in range(64):
        e(f"v_mov_b32 v{4+i}, 0")
    vm.wait("hf")
    e("v_cmp_eq_u32 vcc, s34, v228")
    e("s_and_b32 s61, vcc_lo, 15")
    hwait(0)
    stamp()
    for k in range(NB):
        g2load("B", k)
    for k in range(LA0, LA1):
        g2dma(k)
    def sdma(real):
        if real:
            e("s_lshl_b32 s70, s66, 18")
            e("s_lshl_b32 s71, s60, 16")
            e("s_add_u32 s70, s70, s71")
            e("s_lshl_b32 s71, s65, 7")
            e("s_add_u32 s70, s70, s71")
            e("s_lshl_b32 s71, s60, 11")
            e("s_add_u32 s71, s71, 65536")
            for q in range(2):
                e("s_mov_b32 m0, s71")
                e("s_nop 0")
                e(f"buffer_load_dwordx4 v249, s[44:47], s70 offen{LSC} lds")
                if q == 0:
                    e("s_add_u32 s70, s70, 32768")
                    e("s_add_u32 s71, s71, 1024")
        else:
            for q in range(2):
                e("buffer_load_dword v229, v245, s[56:59], 0 offen")
    for k in range(16):
        vm.wait(("A", k), ("B", k))
        if LA0 <= k < LA1:
            e("s_waitcnt lgkmcnt(0)")
        if k in (0, 8): stamp()
        q = k & 3
        A = AREG[k % NA]; B = BREG[k % NB]
        for i in range(4):
            for j in range(4):
                a = 4 + 16 * j + 4 * i
                if q < 3:
                    e(f"v_mfma_f32_16x16x32_bf16 v[{a}:{a+3}], v[{A+4*i}:{A+4*i+3}], v[{B+4*j}:{B+4*j+3}], v[{a}:{a+3}]")
                else:
                    e(f"v_mfma_f32_16x16x16_bf16 v[{a}:{a+3}], v[{A+4*i}:{A+4*i+1}], v[{B+4*j}:{B+4*j+1}], v[{a}:{a+3}]")
        if k + NB < 16:
            if (k + NB) % 4 == 0:
                hwait((k + NB) // 4)
            g2load("B", k + NB)
        if k + NA < 16 and not (LA0 <= k + NA < LA1):
            g2load("A", k + NA)
        if LA0 <= k + 2 < LA1:
            vm.wait(("L", k + 2))
            g2ldsread(k + 2)
        if k == 10:
            e("s_lshl_b32 s77, s66, 7")
            e(f"s_add_u32 s77, s77, {SFL}")
            e("buffer_load_dword v228, v245, s[52:55], s77 offen sc1")
            vm.add("sf")
        if k == 12:
            vm.wait("sf")
            e("v_cmp_ne_u32 vcc, s34, v228")
            e("s_mov_b32 s62, vcc_lo")
            e("s_cmp_eq_u32 s62, 0")
            e(f"s_cbranch_scc0 {px}_SN")
            sdma(True)
            e(f"s_branch {px}_SJ")
            lab(f"{px}_SN")
            sdma(False)
            lab(f"{px}_SJ")
            vm.add("sd", 2)
    vm.drained()
    stamp()
    e("s_cmp_eq_u32 s62, 0")
    e(f"s_cbranch_scc1 {px}_SW")
    e("s_mov_b32 s70, s77")
    poll(52, 245, "s70", 32, 230, px)
    sdma(True)
    lab(f"{px}_SW")
    for j in range(4):
        for i in range(4):
            a = 4 + 16 * j + 4 * i
            e(f"ds_write_b128 v246, v[{a}:{a+3}] offset:{(4*j+i)*1024}")
    e("v_and_b32 v230, 15, v1")
    e("v_lshrrev_b32 v231, 4, v1")
    e("s_lshl_b32 s71, s60, 4")
    e("v_add_u32 v232, s71, v230")
    e("v_lshlrev_b32 v234, 7, v232")
    e("v_lshl_add_u32 v234, v231, 3, v234")
    e("v_add_u32 v234, 0x12000, v234")
    e("v_lshlrev_b32 v235, 9, v231")
    e("v_lshl_add_u32 v235, v232, 1, v235")
    e("v_add_u32 v235, 0x10000, v235")
    e("s_lshl_b32 s70, s65, 6")
    e("v_add_u32 v232, s70, v232")
    e("v_lshlrev_b32 v233, 10, v232")
    e("v_lshl_add_u32 v233, v231, 3, v233")
    e("s_lshl_b32 s73, s66, 7")
    e("s_lshl_b32 s70, s60, 12")
    e("v_add_u32 v246, s70, v2")
    e(f"s_mov_b32 s74, {f2u(-LOG2E)}")
    e("s_waitcnt vmcnt(0) lgkmcnt(0)")
    e("s_barrier")
    stamp()
    for ww in range(4):
        for i in range(4):
            r = 68 + 16 * ww + 4 * i
            e(f"ds_read_b128 v[{r}:{r+3}], v246 offset:{ww*16384 + i*1024}")
    e("s_waitcnt lgkmcnt(8)")
    for i in range(4):
        e(f"ds_read_b64 v[{132+2*i}:{133+2*i}], v234 offset:{32*i}")
    for q in range(8):
        e(f"v_pk_add_f32 v[{68+2*q}:{69+2*q}], v[{68+2*q}:{69+2*q}], v[{84+2*q}:{85+2*q}]")
    e("s_waitcnt lgkmcnt(4)")
    for i in range(4):
        for r in range(4):
            if i < 2:
                e(f"ds_read_u16 v{148+4*i+r}, v235 offset:{(16*i+r)*128}")
    for q in range(8):
        e(f"v_pk_add_f32 v[{100+2*q}:{101+2*q}], v[{100+2*q}:{101+2*q}], v[{116+2*q}:{117+2*q}]")
    for q in range(8):
        e(f"v_pk_add_f32 v[{68+2*q}:{69+2*q}], v[{68+2*q}:{69+2*q}], v[{100+2*q}:{101+2*q}]")
    e("s_waitcnt lgkmcnt(4)")
    for i in range(2, 4):
        for r in range(4):
            e(f"ds_read_u16 v{148+4*i+r}, v235 offset:{(16*i+r)*128}")
    def rnd(a, n, T):
        for k in range(n // 2):
            e(f"v_cvt_pk_bf16_f32 v{T+k}, v{a+2*k}, v{a+2*k+1}")
        for k in range(n // 2):
            e(f"v_lshlrev_b32 v{a+2*k}, 16, v{T+k}")
            e(f"v_and_b32 v{a+2*k+1}, s72, v{T+k}")
    def unp(dst, src, n):
        for k in range(n // 2):
            e(f"v_lshlrev_b32 v{dst+2*k}, 16, v{src+k}")
            e(f"v_and_b32 v{dst+2*k+1}, s72, v{src+k}")
    a = 68
    rnd(a, 16, 4)
    unp(16, 236, 16)
    for k in range(8):
        e(f"v_pk_add_f32 v[{a+2*k}:{a+2*k+1}], v[{a+2*k}:{a+2*k+1}], v[{16+2*k}:{17+2*k}]")
    rnd(a, 16, 4)
    for r in range(16):
        e(f"v_mul_f32 v{16+r}, s74, v{a+r}")
    for r in range(16):
        e(f"v_exp_f32 v{16+r}, v{16+r}")
    for k in range(8):
        e(f"v_pk_add_f32 v[{16+2*k}:{17+2*k}], v[{16+2*k}:{17+2*k}], 1.0 op_sel_hi:[1,0]")
    for r in range(16):
        e(f"v_rcp_f32 v{16+r}, v{16+r}")
    for k in range(8):
        e(f"v_pk_mul_f32 v[{a+2*k}:{a+2*k+1}], v[{a+2*k}:{a+2*k+1}], v[{16+2*k}:{17+2*k}]")
    rnd(a, 16, 4)
    e("s_waitcnt lgkmcnt(0)")
    for r in range(16):
        e(f"v_lshlrev_b32 v{16+r}, 16, v{148+r}")
    for k in range(8):
        e(f"v_pk_mul_f32 v[{a+2*k}:{a+2*k+1}], v[{a+2*k}:{a+2*k+1}], v[{16+2*k}:{17+2*k}]")
    rnd(a, 16, 4)
    unp(16, 132, 16)
    for k in range(8):
        e(f"v_pk_add_f32 v[{a+2*k}:{a+2*k+1}], v[{a+2*k}:{a+2*k+1}], v[{16+2*k}:{17+2*k}]")
    for k in range(8):
        e(f"v_cvt_pk_bf16_f32 v{32+k}, v{a+2*k}, v{a+2*k+1}")
    for i in range(4):
        e(f"buffer_store_dwordx2 v[{32+2*i}:{33+2*i}], v233, s[48:51], s73 offen offset:{32*i}")
    if STAMP:
        stamp()
        e("s_waitcnt vmcnt(0)")
    stamp_flush()
    e("s_endpgm")


def gen_C(px, rep=True, kc=True, waits='LH'):
    CH = 38400; CS = 4160; KB = 8 * CS
    SL = " sc1" if "L" in waits else ""
    SH = " sc1" if "H" in waits else ""
    stamp(True)
    e("s_sub_u32 s61, s2, 256")
    e("s_and_b32 s62, s61, 7")
    e("s_lshr_b32 s61, s61, 3")
    e("s_lshl_b32 s62, s62, 5")
    e("s_add_u32 s61, s61, s62")
    e("s_lshr_b32 s62, s60, 1")
    e("s_and_b32 s63, s60, 1")
    e("s_lshl_b32 s64, s61, 1")
    e("s_add_u32 s64, s64, s62")
    e(f"s_mul_i32 s65, s62, {CH}")
    e("v_and_b32 v6, 15, v1")
    e("v_lshrrev_b32 v7, 4, v1")
    srd(36, P_W2, 512 * 1792 * 2)
    srd(40, P_WS, W2F_SZ, W2F_OFF)
    srd(44, P_WS, XNB_SZ, XNB_OFF)
    srd(48, P_WS, ST_SZ, ST_OFF)
    srd(52, P_WS, FL_SZ, FL_OFF)
    e("s_mov_b32 s72, 0xffff0000")
    def uloads():
        e("s_lshl_b32 s70, s63, 7")
        e("v_add_u32 v34, s70, v1")
        e("v_sub_u32 v35, 255, v34")
        e("v_lshlrev_b32 v35, 13, v35")
        e("s_lshl_b32 s70, s64, 4")
        e("v_add_u32 v35, s70, v35")
        e("v_subrev_u32 v36, 0x2000, v35")
        e("v_subrev_u32 v37, 0x80000, v35")
        e("v_subrev_u32 v38, 0x82000, v35")
        e(f"buffer_load_dwordx4 v[168:171], v35, s[44:47], 0 offen{LSC}")
        e(f"buffer_load_dwordx4 v[172:175], v36, s[44:47], 0 offen{LSC}")
        e(f"buffer_load_dwordx4 v[176:179], v37, s[44:47], 0 offen{LSC}")
        e(f"buffer_load_dwordx4 v[180:183], v38, s[44:47], 0 offen{LSC}")
    if kc:
        e("s_lshl_b32 s66, s64, 8")
        e("s_lshl_b32 s67, s63, 7")
        e("s_add_u32 s66, s66, s67")
        e("v_lshl_add_u32 v8, v1, 1, s66")
        e("s_lshl_b32 s67, s64, 1")
        e("v_mov_b32 v9, s67")
        e(f"global_load_ushort v10, v8, s[{P_LAR}:{P_LAR+1}]")
        e(f"global_load_ushort v11, v8, s[{P_AIM}:{P_AIM+1}]")
        e(f"global_load_ushort v12, v8, s[{P_CR}:{P_CR+1}]")
        e(f"global_load_ushort v13, v8, s[{P_CI}:{P_CI+1}]")
        e(f"global_load_ushort v14, v9, s[{P_LDT}:{P_LDT+1}]")
        e(f"global_load_ushort v15, v9, s[{P_DSK}:{P_DSK+1}]")
        if "L" not in waits:
            uloads()
    def rep_loads():
        e("s_lshr_b32 s66, s64, 4")
        e("s_and_b32 s67, s64, 15")
        e("v_lshlrev_b32 v16, 12, v7")
        e("v_lshl_add_u32 v16, v6, 1, v16")
        e(f"s_mul_i32 s68, s67, {112*1024}")
        e("s_lshl_b32 s69, s66, 5")
        e("s_add_u32 s68, s68, s69")
        e("s_lshl_b32 s69, s63, 16")
        e("s_add_u32 s68, s68, s69")
        for k in range(4):
            e(f"s_add_u32 s{73}, s68, {k*16384}")
            for el in range(4):
                e(f"buffer_load_ushort v{200+4*k+el}, v16, s[36:39], s73 offen offset:{1024*el}")
    if rep and not kc:
        e("s_sub_u32 s35, s2, 256")
        e("s_lshl_b32 s35, s35, 2")
        e("s_add_u32 s35, s35, s60")
        e("s_cmp_ge_u32 s35, 896")
        e(f"s_cbranch_scc1 {px}_W1L")
        srd(44, P_W1, 512 * 1792 * 2)
        e(f"v_mul_u32_u24 v18, {4*3584}, v7")
        e("v_lshl_add_u32 v18, v6, 1, v18")
        for k in range(2):
            e("s_lshl_b32 s67, s35, 1")
            if k: e("s_add_u32 s67, s67, 1")
            e("s_mul_i32 s68, s67, 9363")
            e("s_lshr_b32 s68, s68, 16")
            e("s_mul_i32 s69, s68, 7")
            e("s_sub_u32 s69, s67, s69")
            e("s_lshr_b32 s70, s68, 4")
            e("s_and_b32 s68, s68, 15")
            e("s_mul_i32 s70, s70, 7")
            e("s_add_u32 s70, s70, s69")
            e("s_lshl_b32 s70, s70, 5")
            e(f"s_mul_i32 s68, s68, {32*3584}")
            e("s_add_u32 s70, s70, s68")
            for ee in range(8):
                e(f"s_add_u32 s71, s70, {(16*(ee>>2) + (ee&3))*3584}")
                e(f"buffer_load_ushort v{100+8*k+ee}, v18, s[44:47], s71 offen")
        lab(f"{px}_W1L")
    if kc:
        for i in range(8):
            d = 230 + i
            e("v_lshlrev_b32 v17, 3, v0")
            if i:
                e(f"v_add_u32 v17, {i}, v17")
            e("v_cvt_f32_u32 v17, v17")
            e("v_cvt_pk_bf16_f32 v17, v17, v17")
            e("v_lshlrev_b32 v17, 16, v17")
            e("v_cvt_u32_f32 v18, v17")
            e("v_lshrrev_b32 v17, 23, v17")
            e("v_subrev_u32 v17, 134, v17")
            e("v_med3_i32 v17, v17, 0, 3")
            e("v_lshrrev_b32 v19, 7, v18")
            e("v_and_b32 v20, 7, v18")
            e("v_lshl_add_u32 v19, v19, 3, v20")
            e("v_lshrrev_b32 v19, v17, v19")
            e("v_lshl_add_u32 v19, v17, 3, v19")
            e("v_bfe_u32 v20, v18, 3, 4")
            e("v_lshrrev_b32 v21, 4, v19")
            e("v_and_b32 v19, 15, v19")
            e("v_lshl_add_u32 v20, v21, 4, v20")
            e("v_lshl_add_u32 v19, v20, 4, v19")
            e(f"v_lshlrev_b32 v{d}, 1, v19")
    def rep_store():
        e("s_lshr_b32 s66, s64, 4")
        e("s_and_b32 s67, s64, 15")
        for k in range(4):
            e(f"v_lshl_or_b32 v{216+2*k}, v{201+4*k}, 16, v{200+4*k}")
            e(f"v_lshl_or_b32 v{217+2*k}, v{203+4*k}, 16, v{202+4*k}")
        e("s_lshr_b32 s68, s66, 2")
        e("s_lshl_b32 s68, s68, 4")
        e("s_add_u32 s68, s68, s67")
        e("s_mul_i32 s68, s68, 14336")
        e("s_and_b32 s69, s66, 3")
        e("s_lshl_b32 s70, s69, 10")
        e("s_add_u32 s70, s70, s68")
        e("s_lshl_b32 s71, s63, 13")
        e("s_add_u32 s70, s70, s71")
        e(f"buffer_store_dwordx4 v[216:219], v2, s[40:43], s70 offen{SL}")
        e("s_cmp_eq_u32 s63, 0")
        e(f"s_cbranch_scc0 {px}_RP1")
        e("s_add_u32 s70, s70, 4096")
        e(f"buffer_store_dwordx4 v[220:223], v2, s[40:43], s70 offen{SL}")
        e(f"s_branch {px}_RPJ")
        lab(f"{px}_RP1")
        e("s_lshl_b32 s70, s69, 9")
        e("s_add_u32 s70, s70, s68")
        e("s_add_u32 s70, s70, 12288")
        e("v_lshlrev_b32 v17, 3, v1")
        e(f"buffer_store_dwordx2 v[220:221], v17, s[40:43], s70 offen{SL}")
        lab(f"{px}_RPJ")
    stamp()
    e("s_waitcnt vmcnt(0)")
    stamp()
    if rep and not kc:
        rep_store()
        e("s_cmp_ge_u32 s35, 896")
        e(f"s_cbranch_scc1 {px}_W1E")
        srd(40, P_WS, W1F_SZ, W1F_OFF)
        e("s_lshl_b32 s67, s35, 11")
        for k in range(2):
            for j in range(4):
                e(f"v_lshl_or_b32 v{120+4*k+j}, v{101+8*k+2*j}, 16, v{100+8*k+2*j}")
            e(f"buffer_store_dwordx4 v[{120+4*k}:{123+4*k}], v2, s[40:43], s67 offen offset:{1024*k}")
        lab(f"{px}_W1E")
    if not kc:
        if not waits:
            pass
        stamp_flush()
        e("s_endpgm")
        return
    e(f"s_mov_b32 s66, {f2u(LOG2E_HI)}")
    e(f"s_mov_b32 s67, {f2u(LOG2E_LO)}")
    e(f"s_mov_b32 s68, {f2u(LN2)}")
    e(f"s_mov_b32 s69, {f2u(INV2PI)}")
    for r in (10, 11, 12, 13, 14, 15):
        e(f"v_lshlrev_b32 v{r}, 16, v{r}")
    def exp_acc(dst, x, t1, t2):
        e(f"v_mul_f32 v{t1}, s66, v{x}")
        e(f"v_fma_f32 v{t2}, v{x}, s66, -v{t1}")
        e(f"v_fmac_f32 v{t2}, s67, v{x}")
        e(f"v_exp_f32 v{dst}, v{t1}")
        e(f"v_mul_f32 v{t2}, s68, v{t2}")
        e(f"v_fmac_f32 v{dst}, v{dst}, v{t2}")
    exp_acc(16, 14, 17, 18)
    exp_acc(19, 10, 20, 21)
    e("v_cvt_pk_bf16_f32 v17, v16, v19")
    e("v_lshlrev_b32 v16, 16, v17")
    e("v_and_b32 v19, s72, v17")
    e("v_mul_f32 v19, v19, v16")
    e("v_mul_f32 v19, s66, v19")
    e("v_mul_f32 v20, v11, v16")
    e("v_mul_f32 v20, s69, v20")
    e("v_mul_f32 v22, v12, v16")
    e("v_mul_f32 v23, v13, v16")
    e("v_max_f32 v24, |v22|, |v23|")
    dpp_reduce([24], "v_max_f32")
    e("v_readlane_b32 s70, v24, 63")
    for k, (m, d) in enumerate(((1.0, 26), (8.0, 28), (128.0, 30))):
        e(f"v_mul_f32 v{32+k}, {f2u(-m)}, v19")
        e(f"v_mul_f32 v{36+k}, {f2u(m)}, v20")
    e("v_frexp_exp_i32_f32 v24, s70")
    for k in range(3):
        e(f"v_exp_f32 v{32+k}, v{32+k}")
        e(f"v_fract_f32 v{36+k}, v{36+k}")
    e("v_sub_u32 v25, 0, v24")
    for k in range(3):
        e(f"v_cos_f32 v{40+k}, v{36+k}")
        e(f"v_sin_f32 v{44+k}, v{36+k}")
    e("v_ldexp_f32 v22, v22, v25")
    e("v_ldexp_f32 v23, v23, v25")
    for k, d in enumerate((26, 28, 30)):
        e(f"v_mul_f32 v{d}, v{32+k}, v{40+k}")
        e(f"v_mul_f32 v{d+1}, v{32+k}, v{44+k}")
    e(f"s_mul_i32 s70, s63, 9216")
    e("s_add_u32 s70, s70, s65")
    e("v_lshlrev_b32 v32, 2, v1")
    e("v_add_u32 v32, s70, v32")
    e("v_mul_u32_u24 v33, 288, v6")
    e("v_lshl_add_u32 v33, v7, 4, v33")
    e("v_add_u32 v33, s70, v33")
    AT = 4608
    cur = 22
    for j in range(16):
        if j:
            nxt = 34 if cur != 34 else 36
            cmul(nxt, cur, 28, nxt)
            cur = nxt
        e(f"v_cvt_pk_f16_f32 v38, v{cur}, -v{cur+1}")
        e(f"ds_write_b32 v32, v38 offset:{288*j}")
    for ks in range(4):
        e(f"ds_read_b128 v[{120+4*ks}:{123+4*ks}], v33 offset:{64*ks}")
    e("v_mov_b32 v40, 1.0")
    e("v_mov_b32 v41, 0")
    e("v_mov_b32 v42, v26")
    e("v_mov_b32 v43, v27")
    for r in range(2, 8):
        cmul(40 + 2 * r, 40 + 2 * (r - 1), 26, 40 + 2 * r)
    e("v_mov_b32 v58, v30")
    e("v_mov_b32 v59, v31")
    for i in range(2, 17):
        cmul(56 + 2 * i, 56 + 2 * (i - 1), 30, 56 + 2 * i)
    def Rr(r): return 40 + 2 * r
    def Gi(i): return 56 + 2 * i
    tiles = [
        [(None, r) for r in range(8)] + [(1, r) for r in range(8)],
        [(2, 2 * r) for r in range(4)] + [(3, 2 * r) for r in range(4)] + [(4 + i, 4 * r) for i in range(4) for r in range(2)],
        [(8 + i, 0) for i in range(9)],
    ]
    for i in range(12):
        e(f"v_mov_b32 v{100+i}, 0")
    for T, rows in enumerate(tiles):
        for row, (gi, r) in enumerate(rows):
            tp = 92 + 2 * (row & 3)
            if gi is None:
                src = Rr(r)
            elif r == 0:
                src = Gi(gi)
            else:
                cmul(tp, Gi(gi), Rr(r), tp)
                src = tp
            e(f"v_cvt_pk_f16_f32 v{112 + (row & 3)}, v{src}, v{src+1}")
            e(f"ds_write_b32 v32, v{112 + (row & 3)} offset:{AT + 288*row}")
        for ks in range(4):
            e(f"ds_read_b128 v[{136+16*(T&1)+4*ks}:{139+16*(T&1)+4*ks}], v33 offset:{AT + 64*ks}")
        e("s_waitcnt lgkmcnt(0)")
        a = 100 + 4 * T
        for ks in range(4):
            A = 136 + 16 * (T & 1) + 4 * ks
            e(f"v_mfma_f32_16x16x32_f16 v[{a}:{a+3}], v[{A}:{A+3}], v[{120+4*ks}:{123+4*ks}], v[{a}:{a+3}]")
    stamp()
    rep_loads()
    e("s_mul_i32 s70, s63, 3072")
    e("s_add_u32 s70, s70, s65")
    e("v_lshlrev_b32 v34, 6, v6")
    e("v_lshl_add_u32 v34, v7, 4, v34")
    e("v_add_u32 v34, s70, v34")
    e("s_lshl_b32 s70, s63, 2")
    e("s_add_u32 s70, s70, s65")
    e("v_mov_b32 v35, s70")
    e("s_nop 3")
    for T in range(3):
        e(f"ds_write_b128 v34, v[{100+4*T}:{103+4*T}] offset:{18432 + 1024*T}")
    e(f"ds_write_b32 v35, v24 offset:{26112}")
    e("s_waitcnt lgkmcnt(0)")
    nonce()
    e("s_barrier")
    e("v_lshlrev_b32 v34, 4, v0")
    e("v_min_u32 v34, 3056, v34")
    e("v_mov_b32 v35, 0")
    for c in range(2):
        e(f"ds_read_b128 v[{40+16*c}:{43+16*c}], v34 offset:{c*CH + 18432}")
        e(f"ds_read_b128 v[{44+16*c}:{47+16*c}], v34 offset:{c*CH + 18432 + 3072}")
        e(f"ds_read_b64 v[{48+16*c}:{49+16*c}], v35 offset:{c*CH + 26112}")
    e("v_lshrrev_b32 v36, 1, v34")
    e("s_waitcnt lgkmcnt(0)")
    for c in range(2):
        b = 40 + 16 * c
        e(f"v_max_i32 v{b+10}, v{b+8}, v{b+9}")
        e(f"v_sub_u32 v{b+8}, v{b+8}, v{b+10}")
        e(f"v_sub_u32 v{b+9}, v{b+9}, v{b+10}")
        for j in range(4):
            e(f"v_ldexp_f32 v{b+j}, v{b+j}, v{b+8}")
            e(f"v_ldexp_f32 v{b+4+j}, v{b+4+j}, v{b+9}")
        for j in range(4):
            e(f"v_add_f32 v{b+j}, v{b+j}, v{b+4+j}")
        e(f"v_cvt_pk_f16_f32 v{b+12}, v{b}, v{b+1}")
        e(f"v_cvt_pk_f16_f32 v{b+13}, v{b+2}, v{b+3}")
        e(f"ds_write_b64 v36, v[{b+12}:{b+13}] offset:{c*CH + 24576}")
    e("s_cmp_eq_u32 s62, 0")
    e("s_cselect_b64 vcc, -1, 0")
    e("s_nop 1")
    e("v_cndmask_b32 v25, v66, v50, vcc")
    e("v_add_u32 v25, 1, v25")
    e("s_waitcnt lgkmcnt(0)")
    e("s_barrier")
    for c in range(2):
        for i in range(8):
            e(f"ds_read_u16 v{40+8*c+i}, v{230+i} offset:{c*CH + 24576}")
    e("v_lshrrev_b32 v34, 2, v0")
    e("v_lshlrev_b32 v34, 5, v34")
    e("v_bfe_u32 v35, v0, 1, 1")
    e("v_mul_u32_u24 v35, 2560, v35")
    e("v_and_b32 v36, 1, v0")
    e("v_lshl_add_u32 v34, v36, 4, v34")
    e("v_add_u32 v34, v34, v35")
    e("v_bfe_u32 v35, v0, 5, 1")
    e("v_mul_u32_u24 v35, 2560, v35")
    e("v_and_b32 v36, 31, v0")
    e("v_lshl_add_u32 v35, v36, 4, v35")
    e("v_bfe_u32 v36, v0, 6, 1")
    e(f"v_mul_u32_u24 v36, {CH}, v36")
    e("v_add_u32 v35, v35, v36")
    for j in range(4):
        e(f"v_mov_b32 v{64+j}, 0")
    e(f"ds_write_b128 v35, v[64:67] offset:{KB}")
    e("s_waitcnt lgkmcnt(1)")
    for c in range(2):
        for j in range(4):
            e(f"v_lshl_or_b32 v{56+4*c+j}, v{41+8*c+2*j}, 16, v{40+8*c+2*j}")
        if c == 1:
            e(f"v_add_u32 v37, {CH}, v34")
        e(f"ds_write_b128 v{34 if c == 0 else 37}, v[{56+4*c}:{59+4*c}] offset:{KB + 512}")
    if DUMPK:
        srd(36, P_WS, KP_SZ, KP_OFF)
        e("s_mul_i32 s70, s61, 10240")
        e("buffer_store_dwordx4 v[56:59], v34, s[36:39], s70 offen offset:512")
        e("s_add_u32 s70, s70, 5120")
        e("buffer_store_dwordx4 v[60:63], v34, s[36:39], s70 offen offset:512")
        e("s_lshl_b32 s70, s64, 2")
        e(f"s_add_u32 s70, s70, {KP_SZ - 4096}")
        e("v_mov_b32 v36, 0")
        e("buffer_store_dword v25, v36, s[36:39], s70 offen")
    stamp()
    e("s_waitcnt vmcnt(0) lgkmcnt(0)")
    rep_store()
    e("s_cmp_eq_u32 s60, 0")
    e(f"s_cbranch_scc0 {px}_W1")
    e("v_lshlrev_b32 v34, 2, v1")
    poll(52, 34, "0", 64, 36, px, ndw=4, sleep=8)
    lab(f"{px}_W1")
    e("s_waitcnt vmcnt(0)")
    e("s_barrier")
    stamp()
    def c_():
        e("s_lshl_b32 s70, s61, 2")
        e(f"s_add_u32 s70, s70, {RFL}")
    publish(px, "RF2", c_, 36)
    lab(f"{px}_RF2")
    if "L" in waits:
        uloads()
    e("s_lshl_b32 s70, s63, 7")
    e("v_add_u32 v34, s70, v1")
    e("v_lshlrev_b32 v34, 4, v34")
    e("v_add_u32 v34, s65, v34")
    e("v_lshrrev_b32 v35, 2, v1")
    e(f"v_mul_u32_u24 v35, {CS}, v35")
    e("v_and_b32 v36, 3, v1")
    e("v_lshl_add_u32 v35, v36, 4, v35")
    e(f"s_mul_i32 s70, s63, {4*CS}")
    e("s_add_u32 s70, s70, s65")
    e("v_add_u32 v35, s70, v35")
    for j in range(4):
        e(f"v_mov_b32 v{88+j}, 0")
    e("s_mov_b64 exec, 0xffff")
    e("ds_write_b128 v35, v[88:91] offset:4096")
    e("s_mov_b64 exec, -1")
    e("v_and_b32 v35, 3, v6")
    e("v_sub_u32 v35, 7, v35")
    e(f"v_mul_u32_u24 v35, {CS}, v35")
    e("v_lshrrev_b32 v36, 2, v6")
    e("v_sub_u32 v36, v7, v36")
    e("v_lshl_add_u32 v35, v36, 4, v35")
    e("s_lshl_b32 s70, s63, 6")
    e("s_sub_u32 s70, s65, s70")
    e(f"s_add_u32 s70, s70, {4080 - 64*62}")
    e("v_add_u32 v12, s70, v35")
    e(f"v_subrev_u32 v13, {4*CS}, v12")
    e("v_lshrrev_b32 v35, 1, v7")
    e("v_mul_u32_u24 v35, 2560, v35")
    e("v_lshl_add_u32 v35, v6, 5, v35")
    e("v_and_b32 v36, 1, v7")
    e("v_lshl_add_u32 v35, v36, 4, v35")
    e("s_lshl_b32 s70, s63, 5")
    e("s_sub_u32 s70, s65, s70")
    e(f"s_add_u32 s70, s70, {KB+32}")
    e("v_add_u32 v14, s70, v35")
    for it in range(2):
        I = 168 + 8 * it
        O = 48 + 24 * it
        e(f"s_waitcnt vmcnt({2 - 2*it})")
        for j in range(7):
            e(f"v_alignbit_b32 v{O+j}, v{I+j+1}, v{I+j}, 16")
        off = 1024 * it
        e(f"ds_write_b128 v34, v[{I}:{I+3}] offset:{off}")
        e(f"ds_write_b128 v34, v[{I+2}:{I+5}] offset:{off + 4*CS}")
        e(f"ds_write_b128 v34, v[{O}:{O+3}] offset:{off + 1*CS}")
        e(f"ds_write_b128 v34, v[{O+2}:{O+5}] offset:{off + 5*CS}")
        M = 92 + 16 * it
        for k, (src, s) in enumerate(((I + 1, 2), (I + 3, 6), (O + 1, 3), (O + 3, 7))):
            e(f"v_pk_mov_b32 v[{M+4*k}:{M+4*k+1}], v[{src-1}:{src}], v[{src+1}:{src+2}] op_sel:[1,0]")
            e(f"v_pk_mov_b32 v[{M+4*k+2}:{M+4*k+3}], v[{src+1}:{src+2}], v[{src+3}:{src+4}] op_sel:[1,0]")
            e(f"ds_write_b128 v34, v[{M+4*k}:{M+4*k+3}] offset:{off + s*CS}")
    ACC = 16
    e("v_mov_b32 v10, v25")
    e("v_mov_b32 v11, v15")
    for i in range(32):
        e(f"v_mov_b32 v{ACC+i}, 0")
    stamp()
    e("s_waitcnt vmcnt(0) lgkmcnt(0)")
    e("s_barrier")
    stamp()
    if os.environ.get("L2PF"):
        e("v_lshlrev_b32 v8, 2, v1")
        e(f"s_mov_b32 s70, {RFL}")
        poll(52, 8, "s70", 64, 120, px, ndw=4, sleep=4)
        e("s_sub_u32 s70, s2, 256")
        e("s_lshr_b32 s70, s70, 3")
        e("s_lshl_b32 s70, s70, 2")
        e("s_add_u32 s70, s70, s60")
        e("s_mul_i32 s70, s70, 14336")
        for q in range(14):
            if q and q % 4 == 0:
                e("s_add_u32 s70, s70, 4096")
            e(f"buffer_load_dwordx4 v[124:127], v2, s[40:43], s70 offen offset:{1024*(q%4)}")
    e("s_cmp_eq_u32 s60, 0")
    e(f"s_cbranch_scc0 {px}_RF")
    if os.environ.get("DEFER"):
        e("s_sub_u32 s70, s2, 256")
        e("s_lshl_b32 s70, s70, 2")
        e(f"s_add_u32 s70, s70, {HINT}")
        e("v_mov_b32 v8, 0")
        poll(52, 8, "s70", 1, 9, px, sleep=3)
    lab(f"{px}_RF")
    if os.environ.get("DEFER"):
        e("s_barrier")
    stamp()
    NB = 3
    FR = [48 + 24 * b for b in range(NB)]
    def nI(pp):
        return 4 - (2 * pp) // 16
    def issue_list(pp):
        R = FR[pp % NB]
        out = []
        for h in range(2):
            out.append(f"ds_read_b128 v[{R+4*h}:{R+4*h+3}], v{12+h} offset:{64*(62-2*pp)}")
        for I in range(4 - nI(pp), 4):
            out.append(f"ds_read_b128 v[{R+8+4*I}:{R+11+4*I}], v14 offset:{32*(16*I-2*pp+15)}")
        return out
    cnts = {}
    for pp in range(NB - 1):
        l_ = issue_list(pp); cnts[pp] = len(l_)
        for x in l_: e(x)
    for pp in range(32):
        nxt = issue_list(pp + NB - 1) if pp + NB - 1 < 32 else []
        pend = sum(cnts[k] for k in range(pp + 1, min(32, pp + NB - 1)))
        cnts[pp + NB - 1] = len(nxt)
        e(f"s_waitcnt lgkmcnt({pend})")
        R = FR[pp % NB]
        for I in range(4 - nI(pp), 4):
            for h in range(2):
                a = ACC + 8 * I + 4 * h
                e(f"v_mfma_f32_16x16x32_f16 v[{a}:{a+3}], v[{R+4*h}:{R+4*h+3}], v[{R+8+4*I}:{R+11+4*I}], v[{a}:{a+3}]")
                if nxt: e(nxt.pop(0))
        for x in nxt: e(x)
    e("s_nop 7")
    stamp()
    e("s_barrier")
    e("s_lshl_b32 s70, s63, 12")
    e("s_add_u32 s70, s70, s65")
    e(f"s_add_u32 s70, s70, {CS}")
    e("v_add_u32 v8, s70, v2")
    e("s_xor_b32 s71, s63, 1")
    e("s_lshl_b32 s70, s71, 12")
    e("s_add_u32 s70, s70, s65")
    e(f"s_add_u32 s70, s70, {CS}")
    e("v_add_u32 v9, s70, v2")
    e("s_cmp_eq_u32 s63, 0")
    e(f"s_cbranch_scc1 {px}_P0")
    for t in range(4):
        e(f"ds_write_b128 v8, v[{ACC+4*t}:{ACC+4*t+3}] offset:{1024*t}")
    for i in range(8):
        e(f"v_pk_mov_b32 v[{48+2*i}:{49+2*i}], v[{ACC+16+2*i}:{ACC+17+2*i}], v[{ACC+16+2*i}:{ACC+17+2*i}] op_sel:[0,1]")
    e(f"s_branch {px}_PJ")
    lab(f"{px}_P0")
    for t in range(4):
        e(f"ds_write_b128 v8, v[{ACC+16+4*t}:{ACC+16+4*t+3}] offset:{1024*t}")
    for i in range(8):
        e(f"v_pk_mov_b32 v[{48+2*i}:{49+2*i}], v[{ACC+2*i}:{ACC+1+2*i}], v[{ACC+2*i}:{ACC+1+2*i}] op_sel:[0,1]")
    lab(f"{px}_PJ")
    e("s_waitcnt lgkmcnt(0)")
    e("s_barrier")
    for t in range(4):
        e(f"ds_read_b128 v[{64+4*t}:{67+4*t}], v9 offset:{1024*t}")
    e("v_lshlrev_b32 v5, 6, v6")
    e("v_lshl_add_u32 v5, v7, 4, v5")
    e("s_lshl_b32 s70, s63, 11")
    e("s_sub_u32 s70, s65, s70")
    e(f"s_add_u32 s70, s70, {4080-1024}")
    e("v_sub_u32 v8, s70, v5")
    for Il in range(2):
        e(f"ds_read_b128 v[{80+4*Il}:{83+4*Il}], v8 offset:{1024*(1-Il)}")
    e("s_lshl_b32 s70, s64, 12")
    e("s_lshl_b32 s71, s63, 11")
    e("s_add_u32 s70, s70, s71")
    e("s_waitcnt lgkmcnt(0)")
    for Il in range(2):
        a = 48 + 8 * Il
        for k in range(4):
            e(f"v_pk_add_f32 v[{a+2*k}:{a+2*k+1}], v[{a+2*k}:{a+2*k+1}], v[{64+8*Il+2*k}:{65+8*Il+2*k}]")
        for k in range(8):
            e(f"v_ldexp_f32 v{a+k}, v{a+k}, v10")
        for k in range(4):
            e(f"v_cvt_pk_bf16_f32 v{88+k}, v{a+2*k}, v{a+2*k+1}")
        for k in range(4):
            e(f"v_lshlrev_b32 v{a+2*k}, 16, v{88+k}")
            e(f"v_and_b32 v{a+2*k+1}, s72, v{88+k}")
        U = 80 + 4 * Il
        for k in range(4):
            src = U + 3 - k
            e(f"v_cvt_f32_f16_sdwa v{92+2*k}, v{src} dst_sel:DWORD dst_unused:UNUSED_PAD src0_sel:WORD_1")
            e(f"v_cvt_f32_f16 v{93+2*k}, v{src}")
        for k in range(8):
            e(f"v_mul_f32 v{92+k}, v{92+k}, v11")
        for k in range(4):
            e(f"v_cvt_pk_bf16_f32 v{88+k}, v{92+2*k}, v{93+2*k}")
        for k in range(4):
            e(f"v_lshlrev_b32 v{92+2*k}, 16, v{88+k}")
            e(f"v_and_b32 v{93+2*k}, s72, v{88+k}")
        for k in range(4):
            e(f"v_pk_add_f32 v[{a+2*k}:{a+2*k+1}], v[{a+2*k}:{a+2*k+1}], v[{92+2*k}:{93+2*k}]")
        for k in range(4):
            e(f"v_cvt_pk_bf16_f32 v{100+4*Il+k}, v{a+2*k}, v{a+2*k+1}")
        e(f"buffer_store_dwordx4 v[{100+4*Il}:{103+4*Il}], v5, s[48:51], s70 offen offset:{1024*Il}{SH}")
    stamp()
    e("s_waitcnt vmcnt(0)")
    e("s_barrier")
    def c_():
        e("s_lshl_b32 s70, s61, 2")
        e(f"s_add_u32 s70, s70, {SFL}")
    publish(px, "SF", c_, 36)
    e("s_cmp_eq_u32 s61, 0")
    e(f"s_cbranch_scc0 {px}_SF")
    e("v_lshlrev_b32 v34, 2, v1")
    e(f"s_mov_b32 s70, {RFL}")
    poll(52, 34, "s70", 64, 36, px, ndw=4, sleep=8)
    e("s_add_u32 s35, s35, 1")
    e("v_mov_b32 v34, 0")
    e("v_mov_b32 v35, s35")
    e(f"s_mov_b32 s70, {EPO}")
    e("s_mov_b64 exec, 1")
    e("buffer_store_dword v35, v34, s[52:55], s70 offen sc1")
    e("s_mov_b64 exec, -1")
    lab(f"{px}_SF")
    stamp_flush()
    e("s_endpgm")


def gen_kernel(name, px):
    kernel_begin(name)
    e("s_cmp_ge_u32 s2, 512")
    e(f"s_cbranch_scc1 {px}_END")
    e("s_load_dwordx16 s[4:19], s[0:1], 0")
    e("s_load_dwordx8 s[20:27], s[0:1], 64")
    e("s_load_dwordx4 s[28:31], s[0:1], 96")
    e("s_load_dwordx2 s[32:33], s[0:1], 112")
    e("v_and_b32 v1, 63, v0")
    e("v_readfirstlane_b32 s60, v0")
    e("v_lshlrev_b32 v2, 4, v1")
    e("s_lshr_b32 s60, s60, 6")
    e("s_waitcnt lgkmcnt(0)")
    e(f"s_add_u32 s36, s32, 0x{FL_OFF:x}")
    e("s_addc_u32 s37, s33, 0")
    e(f"s_load_dword s35, s[36:37], {EPO}")
    if os.environ.get("CODEPF"):
        e("s_getpc_b64 s[40:41]")
        lab(f"{px}_PC")
        e("s_lshr_b32 s42, s2, 3")
        e("s_lshl_b32 s42, s42, 10")
        e("v_add_u32 v4, s42, v2")
        e(f"v_min_u32 v4, {px}_END - {px}_PC - 16, v4")
        e("v_and_b32 v4, -4, v4")
        e("s_cmp_eq_u32 s60, 3")
        e(f"s_cbranch_scc0 {px}_PCE")
        e("global_load_dword v5, v4, s[40:41]")
        lab(f"{px}_PCE")
    e("s_cmp_ge_u32 s2, 256")
    e(f"s_cbranch_scc1 {px}_C")
    gen_G(px + "G")
    lab(f"{px}_C")
    gen_C(px + "C")
    lab(f"{px}_END")
    e("s_endpgm")

LDS = 81920
KN = "pf_kernel" if os.environ.get("LIST") or len(sys.argv) > 1 else "recurrent_scan__ssm_conv_s4d__dense_activation_gelu__prompt_kernel"
gen_kernel(KN, "F")
hdr = "; S4D conv + FFN fused op, single launch (generated by gen/gen8.py)\n"
if KN == "pf_kernel":
    hdr += f"; @launch kernel=pf_kernel grid=(512,1,1) block=(256,1,1) lds={LDS}\n"
else:
    hdr += f"; @launch grid=(512,1,1) block=(256,1,1) lds={LDS}\n"
hdr += '.amdgcn_target "amdgcn-amd-amdhsa--gfx950"\n.text\n'
txt = hdr + "\n".join(L) + "\n" + '.section .rodata,"a"\n'
txt += kd(KN, 256, 102, 256)
open(OUT, "w").write(txt)
print("wrote", OUT, len(txt))
```

```python
import struct, sys, os

OUT = sys.argv[1] if len(sys.argv) > 1 else "recurrent_scan__ssm_conv_s4d__dense_activation_gelu__prompt.s"
SPLIT = os.environ.get("SPLIT", "") != ""
STAMP = os.environ.get("STAMP", "") != ""
DUMPK = os.environ.get("DUMPK", "") != ""

L = []
def e(s=""):
    L.append("    " + s)
def lab(s):
    L.append(s + ":")
def f2u(x):
    return "0x%08x" % struct.unpack("<I", struct.pack("<f", x))[0]

XNF_OFF = 0x0;        XNF_SZ = 0x200000
XNB_OFF = 0x200000;   XNB_SZ = 0x200000
W2F_OFF = 0x400000;   W2F_SZ = 8 * 16 * 14336
HF_OFF  = 0x600000;   HF_SZ = 32 * 16 * 14336
ST_OFF  = 0xD80000;   ST_SZ = 512 * 4096
FL_OFF  = 0xF80000;   FL_SZ = 0x14000
LNF, HFL, SFL, RFL, EPO, HINT = 0, 1024, 3072, 4096, 5120, 6144
HF2, LN2F = 0x4000, 0xC000
SLP = int(os.environ.get('SLP', '2'))
W1F_OFF = 0x1400000;  W1F_SZ = 1792 * 1024
KP_OFF  = 0x1000000;  KP_SZ = 512 * 5120
DBG_OFF = 0x1800000

LOG2E = 1.4426950408889634
LOG2E_HI = struct.unpack("<f", struct.pack("<f", LOG2E))[0]
LOG2E_LO = LOG2E - LOG2E_HI
LN2 = 0.6931471805599453
INV2PI = 0.15915494309189535
GC1 = 2 * 0.7978845608028654 * LOG2E
GC2 = GC1 * 0.044715
SPIN_MAX = 1 << 20
FINE = os.environ.get("FINE")
LSC = " sc1" if os.environ.get("LSC") else ""

P_X, P_LAR, P_AIM, P_CR, P_CI, P_LDT, P_DSK = 4, 6, 8, 10, 12, 14, 16
P_W1, P_B1, P_W2, P_B2, P_OUT, P_DBG, P_WS = 20, 22, 24, 26, 28, 30, 32

def srd(dst, ptr, size, off=0):
    if off:
        e(f"s_add_u32 s{dst}, s{ptr}, 0x{off:x}")
        e(f"s_addc_u32 s{dst+1}, s{ptr+1}, 0")
    else:
        e(f"s_mov_b32 s{dst}, s{ptr}")
        e(f"s_mov_b32 s{dst+1}, s{ptr+1}")
    e(f"s_mov_b32 s{dst+2}, 0x{size:x}")
    e(f"s_mov_b32 s{dst+3}, 0x00020000")

_st = [0]
KIDX = [0]
def stamp(reset=False):
    if not STAMP: return
    if reset:
        _st[0] = 0
        e("s_memrealtime s[78:79]")
    k = _st[0]; _st[0] += 1
    assert k < 28
    e("s_memtime s[100:101]")
    e("s_waitcnt lgkmcnt(0)")
    if k < 20:
        e(f"s_mov_b32 s{80+k}, s100")
    else:
        e(f"v_mov_b32 v{250+k-20}, s100")
def stamp_flush():
    if not STAMP: return
    stamp()
    e("s_mov_b64 exec, 1")
    e("s_memrealtime s[100:101]")
    srd(36, P_WS, 0x80000, DBG_OFF + KIDX[0] * 0x80000)
    e("v_readfirstlane_b32 s40, v0")
    e("s_lshr_b32 s40, s40, 6")
    e("s_lshl_b32 s41, s2, 2")
    e("s_add_u32 s40, s40, s41")
    e("s_lshl_b32 s40, s40, 7")
    e("v_mov_b32 v1, 0")
    e("s_waitcnt lgkmcnt(0)")
    e("v_mov_b32 v2, s100")
    e("v_mov_b32 v3, s78")
    e(f"v_mov_b32 v4, {_st[0]}")
    e("buffer_store_dwordx3 v[2:4], v1, s[36:39], s40 offen")
    for k in range(_st[0]):
        e(f"v_mov_b32 v5, s{80+k}" if k < 20 else f"v_mov_b32 v5, v{250+k-20}")
        e(f"buffer_store_dword v5, v1, s[36:39], s40 offen offset:{16+4*k}")
        e("s_nop 1")
    e("s_mov_b64 exec, -1")

def kernel_begin(name):
    L.append(f".globl {name}")
    L.append(".p2align 8")
    L.append(f".type {name},@function")
    lab(name)

def kd(name, vgpr, sgpr, accum):
    return f""".p2align 6
.amdhsa_kernel {name}
  .amdhsa_next_free_vgpr {vgpr}
  .amdhsa_next_free_sgpr {sgpr}
  .amdhsa_accum_offset {accum}
  .amdhsa_group_segment_fixed_size 0
  .amdhsa_kernarg_size 120
  .amdhsa_user_sgpr_count 2
  .amdhsa_user_sgpr_kernarg_segment_ptr 1
  .amdhsa_system_sgpr_workgroup_id_x 1
.end_amdhsa_kernel
"""

def cmul(d, x, y, t):
    e(f"v_pk_mul_f32 v[{t}:{t+1}], v[{x}:{x+1}], v[{y}:{y+1}] op_sel:[0,0] op_sel_hi:[0,1]")
    e(f"v_pk_fma_f32 v[{d}:{d+1}], v[{x}:{x+1}], v[{y}:{y+1}], v[{t}:{t+1}] op_sel:[1,1,0] op_sel_hi:[1,0,1] neg_lo:[1,0,0]")

_uid = [0]
def poll(srd_r, voff, soff, nlanes, vt, tag, ndw=1, sleep=4):
    _uid[0] += 1
    lb = f"POLL_{tag}_{_uid[0]}"
    e(f"s_mov_b32 s76, {SPIN_MAX}")
    if nlanes < 64:
        e(f"s_mov_b32 s74, 0x{(1 << nlanes) - 1:x}")
        e("s_mov_b32 s75, 0")
    else:
        e("s_mov_b64 s[74:75], -1")
    lab(lb)
    for k in range(ndw):
        e(f"buffer_load_dword v{vt+k}, v{voff}, s[{srd_r}:{srd_r+3}], {soff} offen offset:{256*k} sc1")
    e("s_waitcnt vmcnt(0)")
    for k in range(1, ndw):
        e(f"v_xor_b32 v{vt+k}, s34, v{vt+k}")
    e(f"v_xor_b32 v{vt}, s34, v{vt}")
    for k in range(1, ndw):
        e(f"v_or_b32 v{vt}, v{vt}, v{vt+k}")
    e(f"v_cmp_ne_u32 vcc, 0, v{vt}")
    e("s_and_b64 vcc, vcc, s[74:75]")
    e(f"s_cbranch_scc0 {lb}_D")
    e(f"s_sleep {sleep}")
    e("s_sub_u32 s76, s76, 1")
    e("s_cmp_lg_u32 s76, 0")
    e(f"s_cbranch_scc1 {lb}")
    lab(lb + "_D")

def nonce():
    e("s_mul_i32 s34, s35, 0x9E3779B1")
    e("s_xor_b32 s34, s34, 0x85EBCA6B")

def publish(px, tag, soff_code, vt, second=None):
    e("s_cmp_eq_u32 s60, 0")
    e(f"s_cbranch_scc0 {px}_{tag}")
    soff_code()
    e(f"v_mov_b32 v{vt}, 0")
    e(f"v_mov_b32 v{vt+1}, s34")
    e("s_mov_b64 exec, 1")
    e(f"buffer_store_dword v{vt+1}, v{vt}, s[52:55], s70 offen sc1")
    if second:
        second()
        e(f"buffer_store_dword v{vt+1}, v{vt}, s[52:55], s70 offen sc1")
    e("s_mov_b64 exec, -1")

def dpp_reduce(regs, op):
    steps = ["quad_perm:[1,0,3,2] row_mask:0xf bank_mask:0xf", "quad_perm:[2,3,0,1] row_mask:0xf bank_mask:0xf",
             "row_half_mirror row_mask:0xf bank_mask:0xf", "row_mirror row_mask:0xf bank_mask:0xf",
             "row_bcast:15 row_mask:0xa bank_mask:0xf", "row_bcast:31 row_mask:0xc bank_mask:0xf"]
    for st in steps:
        e(f"s_nop {1 if len(regs) < 2 else 0}" if len(regs) < 3 else "s_nop 0")
        for r in regs:
            e(f"{op}_dpp v{r}, v{r}, v{r} {st}")
    e("s_nop 0")

class VM:
    def __init__(self): self.ops = []
    def add(self, tag, n=1): self.ops += [tag] * n
    def wait(self, *tags):
        idx = [i for i, o in enumerate(self.ops) if o in tags]
        if not idx: return
        n = len(self.ops) - 1 - max(idx)
        assert n < 64
        e(f"s_waitcnt vmcnt({n})")
    def drained(self): self.ops = []

def gen_G(px):
    vm = VM()
    stamp(True)
    e("s_setprio 2")
    e("s_and_b32 s61, s2, 7")
    e("s_lshr_b32 s62, s2, 3")
    e("s_lshr_b32 s63, s61, 1")
    e("s_lshl_b32 s63, s63, 2")
    e("s_lshr_b32 s67, s62, 3")
    e("s_add_u32 s63, s63, s67")
    e("s_and_b32 s64, s61, 1")
    e("s_lshl_b32 s64, s64, 3")
    e("s_and_b32 s66, s62, 7")
    e("s_add_u32 s64, s64, s66")
    e("s_lshl_b32 s65, s61, 2")
    e("s_add_u32 s65, s65, s67")
    SB = 14336
    srd(36, P_X, 0x200000)
    e("s_lshl_b32 s67, s2, 13")
    e("s_lshl_b32 s68, s60, 11")
    e("s_add_u32 s67, s67, s68")
    e("buffer_load_dwordx4 v[64:67], v2, s[36:39], s67 offen")
    e("buffer_load_dwordx4 v[68:71], v2, s[36:39], s67 offen offset:1024")
    vm.add("x", 2)
    srd(40, P_W1, 512 * 1792 * 2)
    srd(44, P_WS, XNF_SZ, XNF_OFF)
    srd(48, P_WS, XNB_SZ, XNB_OFF)
    srd(52, P_WS, FL_SZ, FL_OFF)
    srd(56, P_B2, 1024)
    e("s_mul_i32 s70, s60, 224")
    e("s_mov_b32 s72, 4682")
    for q in range(4):
        e(f"v_add_u32 v{60+q}, s70, v1")
        if q:
            e(f"v_add_u32 v{60+q}, {64*q}, v{60+q}")
        e(f"v_mul_lo_u32 v230, v{60+q}, s72")
        e("v_lshrrev_b32 v230, 16, v230")
        e("v_mul_u32_u24 v231, 14, v230")
        e(f"v_sub_u32 v231, v{60+q}, v231")
        e("v_mul_u32_u24 v230, 3584, v230")
        e(f"v_lshl_add_u32 v{60+q}, v231, 4, v230")
    e("s_mul_i32 s61, s64, 224")
    e("s_mul_i32 s62, s60, 3584")
    e("s_mov_b32 s72, 0xffff0000")
    ROT = os.environ.get("ROT")
    def dma(s, buf):
        if ROT:
            e(f"s_add_u32 s68, s66, {s}")
            e("s_and_b32 s68, s68, 7")
            e(f"s_mul_i32 s68, s68, {64*3584}")
            e("s_add_u32 s68, s68, s61")
        else:
            e(f"s_add_u32 s68, s61, {s*64*3584}")
        for q in range(4):
            e(f"s_add_u32 s70, s62, {buf*SB + q*1024}")
            e("s_mov_b32 m0, s70")
            if q == 3:
                e("s_mov_b32 exec_hi, 0")
            else:
                e("s_nop 0")
            e(f"buffer_load_dwordx4 v{60+q}, s[40:43], s68 offen lds")
        e("s_mov_b64 exec, -1")
        vm.add(("D", s), 4)
    def bload(s):
        R = 64 + 16 * (s % 6)
        if ROT:
            e(f"s_add_u32 s70, s66, {s}")
            e("s_and_b32 s70, s70, 7")
            e("s_lshl_b32 s70, s70, 11")
            e("s_add_u32 s70, s70, s73")
            e("s_add_u32 s71, s70, 16384")
        else:
            e(f"s_add_u32 s70, s73, {s*2048}")
            e(f"s_add_u32 s71, s73, {s*2048 + 16384}")
        for j in range(2):
            for k in range(2):
                r = R + 8 * j + 4 * k
                e(f"buffer_load_dwordx4 v[{r}:{r+3}], v2, s[44:47], s{70 if j == 0 else 71} offen offset:{1024*k}{LSC}")
        vm.add(("B", s), 4)
    ED = int(os.environ.get("ED", "2"))
    for s in range(ED):
        dma(s, s)
    srd(36, P_B1, 1792 * 2)
    e("v_lshrrev_b32 v235, 4, v1")
    e("v_lshlrev_b32 v235, 3, v235")
    for i in range(7):
        e(f"buffer_load_dwordx2 v[{216+2*i}:{217+2*i}], v235, s[36:39], s61 offen offset:{32*i}")
    vm.add("b1", 7)
    LT = 4 * SB; LP = 1040; T2 = LT + 8 * LP
    e(f"s_mov_b32 s73, {f2u(1.0/512)}")
    stamp()
    vm.wait("x")
    stamp()
    for i in range(2):
        for j in range(4):
            e(f"v_lshlrev_b32 v{72+8*i+2*j}, 16, v{64+4*i+j}")
            e(f"v_and_b32 v{73+8*i+2*j}, s72, v{64+4*i+j}")
    for i in range(2):
        b = 72 + 8 * i; t = 88 + 4 * i
        e(f"v_pk_add_f32 v[{t}:{t+1}], v[{b}:{b+1}], v[{b+2}:{b+3}]")
        e(f"v_pk_add_f32 v[{t+2}:{t+3}], v[{b+4}:{b+5}], v[{b+6}:{b+7}]")
    for i in range(2):
        t = 88 + 4 * i
        e(f"v_pk_add_f32 v[{t}:{t+1}], v[{t}:{t+1}], v[{t+2}:{t+3}]")
    for i in range(2):
        t = 88 + 4 * i
        e(f"v_add_f32 v{t}, v{t}, v{t+1}")
    dpp_reduce([88, 92], "v_add_f32")
    e("v_readlane_b32 s70, v88, 63")
    e("v_readlane_b32 s71, v92, 63")
    e("v_mov_b32 v90, s73")
    e("s_nop 0")
    e("v_mul_f32 v89, s70, v90")
    e("v_mul_f32 v93, s71, v90")
    e("v_mov_b32 v88, v89")
    e("v_mov_b32 v92, v93")
    for i in range(2):
        b = 72 + 8 * i; m = 88 + 4 * i; d = 96 + 8 * i
        for j in range(4):
            e(f"v_pk_add_f32 v[{d+2*j}:{d+2*j+1}], v[{b+2*j}:{b+2*j+1}], v[{m}:{m+1}] neg_lo:[0,1] neg_hi:[0,1]")
    for i in range(2):
        d = 96 + 8 * i; t = 112 + 2 * i
        e(f"v_pk_mul_f32 v[{t}:{t+1}], v[{d}:{d+1}], v[{d}:{d+1}]")
    for j in range(1, 4):
        for i in range(2):
            d = 96 + 8 * i; t = 112 + 2 * i
            e(f"v_pk_fma_f32 v[{t}:{t+1}], v[{d+2*j}:{d+2*j+1}], v[{d+2*j}:{d+2*j+1}], v[{t}:{t+1}]")
    e("v_add_f32 v112, v112, v113")
    e("v_add_f32 v114, v114, v115")
    dpp_reduce([112, 114], "v_add_f32")
    e("v_readlane_b32 s70, v112, 63")
    e("v_readlane_b32 s71, v114, 63")
    e(f"s_mov_b32 s73, {f2u(1e-5)}")
    e("v_cvt_pk_bf16_f32 v116, v89, v93")
    e("v_mul_f32 v112, s70, v90")
    e("v_mul_f32 v113, s71, v90")
    e("v_lshlrev_b32 v89, 16, v116")
    e("v_and_b32 v93, s72, v116")
    e("v_lshlrev_b32 v88, 16, v116")
    e("v_and_b32 v92, s72, v116")
    def rnd2(a, b):
        e(f"v_cvt_pk_bf16_f32 v116, v{a}, v{b}")
        e(f"v_lshlrev_b32 v{a}, 16, v116")
        e(f"v_and_b32 v{b}, s72, v116")
    rnd2(112, 113)
    e("v_add_f32 v112, s73, v112")
    e("v_add_f32 v113, s73, v113")
    rnd2(112, 113)
    e("v_sqrt_f32 v112, v112")
    e("v_sqrt_f32 v113, v113")
    e("s_nop 0")
    rnd2(112, 113)
    e("v_rcp_f32 v91, v112")
    e("v_rcp_f32 v95, v113")
    e("s_nop 0")
    e("v_fma_f32 v114, -v112, v91, 1.0")
    e("v_fma_f32 v115, -v113, v95, 1.0")
    e("v_fmac_f32 v91, v91, v114")
    e("v_fmac_f32 v95, v95, v115")
    e("v_mov_b32 v90, v91")
    e("v_mov_b32 v94, v95")
    for i in range(2):
        b = 72 + 8 * i; m = 88 + 4 * i; d = 96 + 8 * i; P = 64 + 4 * i; H = 120 + 4 * i
        for j in range(4):
            e(f"v_pk_add_f32 v[{d+2*j}:{d+2*j+1}], v[{b+2*j}:{b+2*j+1}], v[{m}:{m+1}] neg_lo:[0,1] neg_hi:[0,1]")
        for j in range(4):
            e(f"v_cvt_pk_bf16_f32 v{P+j}, v{d+2*j}, v{d+2*j+1}")
        for j in range(4):
            e(f"v_lshlrev_b32 v{d+2*j}, 16, v{P+j}")
            e(f"v_and_b32 v{d+2*j+1}, s72, v{P+j}")
        for j in range(4):
            e(f"v_pk_mul_f32 v[{d+2*j}:{d+2*j+1}], v[{d+2*j}:{d+2*j+1}], v[{m+2}:{m+3}]")
        for j in range(4):
            e(f"v_cvt_pk_bf16_f32 v{P+j}, v{d+2*j}, v{d+2*j+1}")
        for j in range(4):
            e(f"v_lshlrev_b32 v{d+2*j}, 16, v{P+j}")
            e(f"v_and_b32 v{d+2*j+1}, s72, v{P+j}")
        for j in range(4):
            e(f"v_cvt_pk_f16_f32 v{H+j}, v{d+2*j}, v{d+2*j+1}")
    e(f"s_mul_i32 s70, s60, {2*LP}")
    e(f"s_add_u32 s70, s70, {LT}")
    e("v_add_u32 v230, s70, v2")
    for i in range(2):
        e(f"ds_write_b128 v230, v[{64+4*i}:{67+4*i}] offset:{LP*i}")
        e(f"ds_write_b128 v230, v[{120+4*i}:{123+4*i}] offset:{T2 - LT + LP*i}")
    stamp()
    e("s_waitcnt lgkmcnt(0)")
    nonce()
    e("s_barrier")
    e("s_cmp_ge_u32 s60, 2")
    e(f"s_cbranch_scc1 {px}_LNB")
    e("v_and_b32 v230, 7, v1")
    e("v_lshrrev_b32 v231, 5, v1")
    e("v_bfe_u32 v232, v1, 3, 2")
    e(f"v_mul_u32_u24 v233, {LP}, v230")
    e("v_lshl_add_u32 v233, v231, 6, v233")
    e("v_lshl_add_u32 v233, v232, 3, v233")
    e("s_lshl_b32 s70, s60, 9")
    e("v_add_u32 v233, s70, v233")
    e("v_lshlrev_b32 v234, 10, v231")
    e("v_lshl_add_u32 v234, v232, 8, v234")
    e("v_lshl_add_u32 v234, v230, 4, v234")
    for q in range(4):
        e(f"ds_read_b64 v[{64+4*q}:{65+4*q}], v233 offset:{LT + 128*q}")
        e(f"ds_read_b64 v[{66+4*q}:{67+4*q}], v233 offset:{LT + 128*q + 32}")
    e("s_lshr_b32 s70, s2, 1")
    e("s_lshl_b32 s70, s70, 14")
    e("s_and_b32 s71, s2, 1")
    e("s_lshl_b32 s71, s71, 7")
    e("s_add_u32 s70, s70, s71")
    e("s_lshl_b32 s71, s60, 13")
    e("s_add_u32 s70, s70, s71")
    for q in range(4):
        e(f"s_waitcnt lgkmcnt({6-2*q})")
        if q == 2:
            e("s_add_u32 s70, s70, 4096")
        e(f"buffer_store_dwordx4 v[{64+4*q}:{67+4*q}], v234, s[44:47], s70 offen offset:{2048*(q&1)} sc1")
    e(f"s_branch {px}_LNJ")
    lab(f"{px}_LNB")
    e("v_lshrrev_b32 v230, 4, v1")
    e("v_bfe_u32 v231, v1, 2, 2")
    e("v_and_b32 v232, 3, v1")
    e("v_sub_u32 v231, 3, v231")
    e(f"v_mul_u32_u24 v233, {LP}, v231")
    e("v_lshl_add_u32 v233, v230, 5, v233")
    e("v_lshl_add_u32 v233, v232, 3, v233")
    e("s_sub_u32 s71, s60, 2")
    e("s_lshl_b32 s70, s71, 9")
    e(f"s_add_u32 s70, s70, {T2}")
    e("v_add_u32 v233, s70, v233")
    for q in range(4):
        e(f"ds_read_b64_tr_b16 v[{64+4*q}:{65+4*q}], v233 offset:{4*LP + 128*q}")
        e(f"ds_read_b64_tr_b16 v[{66+4*q}:{67+4*q}], v233 offset:{128*q}")
    e("s_lshl_b32 s70, s2, 13")
    e("s_lshl_b32 s71, s71, 12")
    e("s_add_u32 s70, s70, s71")
    for q in range(4):
        e(f"s_waitcnt lgkmcnt({6-2*q})")
        e(f"buffer_store_dwordx4 v[{64+4*q}:{67+4*q}], v2, s[48:51], s70 offen offset:{1024*q} sc1")
    lab(f"{px}_LNJ")
    stamp()
    e("s_waitcnt vmcnt(0)")
    vm.drained()
    e("s_barrier")
    stamp()
    def c_():
        e("s_lshl_b32 s70, s2, 7")
        e(f"s_add_u32 s70, s70, {LN2F}")
    def c2_():
        e("s_lshl_b32 s70, s2, 2")
    publish(px, "LNF", c_, 230, c2_)
    lab(f"{px}_LNF")
    for s in range(ED, 5):
        dma(s, s)
    for i in range(7):
        for j in range(2):
            a = 4 + 8 * i + 4 * j
            e(f"v_lshlrev_b32 v{a}, 16, v{216+2*i}")
            e(f"v_and_b32 v{a+1}, s72, v{216+2*i}")
            e(f"v_lshlrev_b32 v{a+2}, 16, v{217+2*i}")
            e(f"v_and_b32 v{a+3}, s72, v{217+2*i}")
    e("v_lshrrev_b32 v230, 2, v1")
    e("v_mul_u32_u24 v3, 224, v230")
    e("v_and_b32 v230, 3, v1")
    e("v_lshl_add_u32 v3, v230, 3, v3")
    e("v_add_u32 v248, 0x8000, v3")
    e("v_lshlrev_b32 v245, 2, v1")
    e("s_lshl_b32 s67, s63, 3")
    e("s_lshl_b32 s70, s60, 1")
    e("s_add_u32 s67, s67, s70")
    e("s_lshl_b32 s73, s67, 14")
    srd(48, P_X, 0x200000)
    stamp()
    e("s_lshl_b32 s70, s63, 11")
    e("s_lshl_b32 s71, s60, 9")
    e("s_add_u32 s70, s70, s71")
    e(f"s_add_u32 s70, s70, {LN2F}")
    e("v_and_b32 v244, 3, v1")
    e("v_lshlrev_b32 v244, 7, v244")
    poll(52, 244, "s70", 4, 230, px, sleep=SLP)
    vm.drained()
    stamp()
    for s in range(4):
        bload(s)
    def xloads():
        e("v_lshrrev_b32 v231, 3, v1")
        e("v_and_b32 v232, 7, v1")
        e("v_lshlrev_b32 v233, 10, v231")
        e("v_lshl_add_u32 v233, v232, 4, v233")
        e("v_lshlrev_b32 v249, 12, v231")
        e("v_lshl_add_u32 v249, v232, 4, v249")
        e("s_lshl_b32 s70, s65, 16")
        e("s_lshl_b32 s71, s60, 14")
        e("s_add_u32 s70, s70, s71")
        e("s_lshl_b32 s71, s66, 7")
        e("s_add_u32 s70, s70, s71")
        e("s_lshl_b32 s71, s60, 11")
        e(f"s_add_u32 s71, s71, 73728")
        for q in range(2):
            e("s_mov_b32 m0, s71")
            e("s_nop 0")
            e("buffer_load_dwordx4 v233, s[48:51], s70 offen lds")
            if q == 0:
                e("s_add_u32 s70, s70, 8192")
                e("s_add_u32 s71, s71, 1024")
        vm.add("xt", 2)
        e("s_lshl_b32 s70, s66, 7")
        for i in range(4):
            e(f"buffer_load_dwordx2 v[{236+2*i}:{237+2*i}], v235, s[56:59], s70 offen offset:{32*i}")
        vm.add("b2", 4)
    AR = [160, 188]
    def lds_a_list(u):
        s, ksl = u >> 1, u & 1
        dst = AR[u & 1]
        out = []
        for i in range(7):
            for e2 in range(2):
                off = (s % 5)*SB + (32*ksl+16*e2)*224 + 32*i
                if off >= 0x8000:
                    out.append(f"ds_read_b64_tr_b16 v[{dst+4*i+2*e2}:{dst+4*i+2*e2+1}], v248 offset:{off - 0x8000}")
                else:
                    out.append(f"ds_read_b64_tr_b16 v[{dst+4*i+2*e2}:{dst+4*i+2*e2+1}], v3 offset:{off}")
        return out
    vm.wait(("D", 0), ("B", 0))
    e("s_barrier")
    stamp()
    for x in lds_a_list(0): e(x)
    for u in range(16):
        nxt = []
        if u + 1 < 16:
            if (u + 1) % 2 == 0:
                sn = (u + 1) >> 1
                if FINE and sn in (3, 5): stamp()
                vm.wait(("D", sn), ("B", sn))
                if FINE and sn in (3, 5): stamp()
                e("s_barrier")
                if sn == 4 or (FINE and sn in (3, 5)): stamp()
            nxt = lds_a_list(u + 1)
        e("s_waitcnt lgkmcnt(0)")
        s, ksl = u >> 1, u & 1
        R = 64 + 16 * (s % 6)
        A = AR[u & 1]
        for i in range(7):
            for j in range(2):
                a = 4 + 8 * i + 4 * j
                b = R + 8 * j + 4 * ksl
                e(f"v_mfma_f32_16x16x32_bf16 v[{a}:{a+3}], v[{A+4*i}:{A+4*i+3}], v[{b}:{b+3}], v[{a}:{a+3}]")
                if nxt: e(nxt.pop(0))
        if u % 2 == 1:
            sn = (u + 1) >> 1
            if sn >= 2 and sn + 3 < 8:
                dma(sn + 3, (sn + 3) % 5)
            if sn + 3 < 8:
                bload(sn + 3)
            if sn == 5:
                xloads()
    vm.drained()
    stamp()
    if os.environ.get("DEFER"):
        def c_():
            e("s_lshl_b32 s70, s2, 2")
            e(f"s_add_u32 s70, s70, {HINT}")
        publish(px, "HN", c_, 230)
        lab(f"{px}_HN")
    srd(36, P_WS, W2F_SZ, W2F_OFF)
    srd(40, P_WS, HF_SZ, HF_OFF)
    srd(44, P_WS, ST_SZ, ST_OFF)
    srd(48, P_OUT, 0x200000)
    NA, NB = 6, 4
    AREG = [68 + 16 * k for k in range(NA)]
    BREG = [164 + 16 * k for k in range(NB)]
    LA0, LA1 = NA, NA + 4
    def g2load(kind, k):
        fbl, q = k >> 2, k & 3
        R = (AREG[k % NA] if kind == "A" else BREG[k % NB])
        sr = 36 if kind == "A" else 40
        base = 68 if kind == "A" else 69
        sc = LSC
        e(f"s_add_u32 s70, s{base}, {fbl*14336 + q*4096}")
        for i in range(4):
            if q < 3:
                e(f"buffer_load_dwordx4 v[{R+4*i}:{R+4*i+3}], v2, s[{sr}:{sr+3}], s70 offen offset:{1024*i}{sc}")
            else:
                e(f"buffer_load_dwordx2 v[{R+4*i}:{R+4*i+1}], v244, s[{sr}:{sr+3}], s70 offen offset:{512*i}{sc}")
        vm.add((kind, k), 4)
    def g2dma(k):
        fbl, q = k >> 2, k & 3
        e(f"s_add_u32 s70, s68, {fbl*14336 + q*4096}")
        e(f"s_add_u32 s71, s35, {(k-LA0)*4096}")
        e("s_mov_b32 m0, s71")
        e("s_nop 0")
        n = 4 if q < 3 else 2
        for i in range(n):
            e(f"buffer_load_dwordx4 v2, s[36:39], s70 offen offset:{1024*i}{LSC} lds")
        vm.add(("L", k), n)
    def g2ldsread(k):
        q = k & 3
        R = AREG[k % NA]
        for i in range(4):
            if q < 3:
                e(f"ds_read_b128 v[{R+4*i}:{R+4*i+3}], v246 offset:{(k-LA0)*4096 + 1024*i}")
            else:
                e(f"ds_read_b64 v[{R+4*i}:{R+4*i+1}], v247 offset:{(k-LA0)*4096 + 512*i}")
    e("v_lshlrev_b32 v244, 3, v1")
    e("v_lshlrev_b32 v245, 2, v1")
    e("s_lshl_b32 s70, s66, 4")
    e("s_lshl_b32 s71, s60, 2")
    e("s_add_u32 s70, s70, s71")
    e("s_mul_i32 s68, s70, 14336")
    e("s_lshl_b32 s70, s65, 4")
    e("s_add_u32 s70, s70, s71")
    e("s_mul_i32 s69, s70, 14336")
    e("s_lshl_b32 s77, s66, 7")
    e(f"s_add_u32 s77, s77, {RFL}")
    e("buffer_load_dword v228, v245, s[52:55], s77 offen sc1")
    e(f"s_mov_b32 s74, {f2u(-GC2)}")
    e(f"s_mov_b32 s75, {f2u(-GC2)}")
    e(f"v_mov_b32 v246, {f2u(-GC1)}")
    e(f"v_mov_b32 v247, {f2u(-GC1)}")
    e("s_lshr_b32 s70, s67, 2")
    e("s_lshl_b32 s70, s70, 4")
    e("s_add_u32 s70, s70, s64")
    e("s_mul_i32 s70, s70, 14336")
    e("s_and_b32 s71, s67, 3")
    e("s_lshl_b32 s73, s71, 9")
    e("s_add_u32 s73, s73, s70")
    e("s_add_u32 s73, s73, 12288")
    e("s_lshl_b32 s71, s71, 10")
    e("s_add_u32 s70, s70, s71")
    def gelu_pairs(pairs, outs):
        T = [164 + 2 * k for k in range(len(pairs))]
        for a, t in zip(pairs, T):
            e(f"v_pk_mul_f32 v[{t}:{t+1}], v[{a}:{a+1}], v[{a}:{a+1}]")
        for a, t in zip(pairs, T):
            e(f"v_pk_fma_f32 v[{t}:{t+1}], v[{t}:{t+1}], s[74:75], v[246:247]")
        for a, t in zip(pairs, T):
            e(f"v_pk_mul_f32 v[{t}:{t+1}], v[{a}:{a+1}], v[{t}:{t+1}]")
        for t in T:
            e(f"v_exp_f32 v{t}, v{t}")
            e(f"v_exp_f32 v{t+1}, v{t+1}")
        e("s_nop 0")
        for t in T:
            e(f"v_pk_add_f32 v[{t}:{t+1}], v[{t}:{t+1}], 1.0 op_sel_hi:[1,0]")
        for t in T:
            e(f"v_rcp_f32 v{t}, v{t}")
            e(f"v_rcp_f32 v{t+1}, v{t+1}")
        e("s_nop 0")
        for a, t in zip(pairs, T):
            e(f"v_pk_mul_f32 v[{t}:{t+1}], v[{a}:{a+1}], v[{t}:{t+1}]")
        for t, o in zip(T, outs):
            e(f"v_cvt_pk_bf16_f32 v{o}, v{t}, v{t+1}")
    cnt = 0
    for q in range(3):
        for j in range(2):
            a0 = 4 + 8 * (2 * q) + 4 * j; a1 = 4 + 8 * (2 * q + 1) + 4 * j
            O = 176 + 4 * (cnt % 8); cnt += 1
            gelu_pairs([a0, a0 + 2, a1, a1 + 2], [O, O + 1, O + 2, O + 3])
            e(f"buffer_store_dwordx4 v[{O}:{O+3}], v2, s[40:43], s70 offen offset:{1024*j} sc1")
        if q < 2:
            e("s_add_u32 s70, s70, 4096")
    a0 = 4 + 48; a1 = 4 + 48 + 4
    O = 176 + 4 * (cnt % 8)
    gelu_pairs([a0, a0 + 2, a1, a1 + 2], [O, O + 1, O + 2, O + 3])
    e(f"buffer_store_dwordx2 v[{O}:{O+1}], v244, s[40:43], s73 offen sc1")
    e(f"buffer_store_dwordx2 v[{O+2}:{O+3}], v244, s[40:43], s73 offen offset:512 sc1")
    stamp()
    e("s_waitcnt vmcnt(0)")
    e("s_barrier")
    stamp()
    def c_():
        e("s_lshl_b32 s70, s63, 5")
        e("s_add_u32 s70, s70, s64")
        e("s_lshl_b32 s70, s70, 2")
        e(f"s_add_u32 s70, s70, {HFL}")
    def c0_():
        e("s_lshl_b32 s70, s63, 4")
        e("s_add_u32 s70, s70, s64")
        e("s_lshl_b32 s70, s70, 7")
        e(f"s_add_u32 s70, s70, {HF2}")
    publish(px, "HF", c0_, 230, c_)
    lab(f"{px}_HF")
    e("v_cmp_ne_u32 vcc, s34, v228")
    e("s_cmp_eq_u32 vcc_lo, 0")
    e(f"s_cbranch_scc1 {px}_RFOK")
    e("s_mov_b32 s70, s77")
    poll(52, 245, "s70", 32, 230, px)
    lab(f"{px}_RFOK")
    e("s_lshl_b32 s35, s60, 14")
    e("v_add_u32 v246, s35, v2")
    e("v_add_u32 v247, s35, v244")
    e("s_lshr_b32 s3, s65, 1")
    e("s_lshl_b32 s3, s3, 11")
    e("s_lshl_b32 s70, s60, 9")
    e("s_add_u32 s3, s3, s70")
    e(f"s_add_u32 s3, s3, {HF2}")
    e("v_and_b32 v248, 3, v1")
    e("v_lshlrev_b32 v248, 7, v248")
    e("s_mov_b32 s61, 0")
    def hwait(j):
        _uid[0] += 1
        lb = f"{px}_HW{_uid[0]}"
        e(f"s_bitcmp1_b32 s61, {j}")
        e(f"s_cbranch_scc1 {lb}_D")
        e(f"s_mov_b32 s76, {SPIN_MAX}")
        lab(lb)
        e("buffer_load_dword v230, v248, s[52:55], s3 offen sc1")
        e("s_waitcnt vmcnt(0)")
        e("v_cmp_eq_u32 vcc, s34, v230")
        e("s_and_b32 s61, vcc_lo, 15")
        e(f"s_bitcmp1_b32 s61, {j}")
        e(f"s_cbranch_scc1 {lb}_D")
        e(f"s_sleep {SLP}")
        e("s_sub_u32 s76, s76, 1")
        e("s_cmp_lg_u32 s76, 0")
        e(f"s_cbranch_scc1 {lb}")
        lab(lb + "_D")
    for k in range(3):
        g2load("A", k)
    e("buffer_load_dword v228, v248, s[52:55], s3 offen sc1")
    vm.add("hf")
    for k in range(3, NA):
        g2load("A", k)
    for i in range(64):
        e(f"v_mov_b32 v{4+i}, 0")
    vm.wait("hf")
    e("v_cmp_eq_u32 vcc, s34, v228")
    e("s_and_b32 s61, vcc_lo, 15")
    hwait(0)
    stamp()
    for k in range(NB):
        g2load("B", k)
    for k in range(LA0, LA1):
        g2dma(k)
    def sdma(real):
        if real:
            e("s_lshl_b32 s70, s66, 18")
            e("s_lshl_b32 s71, s60, 16")
            e("s_add_u32 s70, s70, s71")
            e("s_lshl_b32 s71, s65, 7")
            e("s_add_u32 s70, s70, s71")
            e("s_lshl_b32 s71, s60, 11")
            e("s_add_u32 s71, s71, 65536")
            for q in range(2):
                e("s_mov_b32 m0, s71")
                e("s_nop 0")
                e(f"buffer_load_dwordx4 v249, s[44:47], s70 offen{LSC} lds")
                if q == 0:
                    e("s_add_u32 s70, s70, 32768")
                    e("s_add_u32 s71, s71, 1024")
        else:
            for q in range(2):
                e("buffer_load_dword v229, v245, s[56:59], 0 offen")
    for k in range(16):
        vm.wait(("A", k), ("B", k))
        if LA0 <= k < LA1:
            e("s_waitcnt lgkmcnt(0)")
        if k in (0, 8): stamp()
        q = k & 3
        A = AREG[k % NA]; B = BREG[k % NB]
        for i in range(4):
            for j in range(4):
                a = 4 + 16 * j + 4 * i
                if q < 3:
                    e(f"v_mfma_f32_16x16x32_bf16 v[{a}:{a+3}], v[{A+4*i}:{A+4*i+3}], v[{B+4*j}:{B+4*j+3}], v[{a}:{a+3}]")
                else:
                    e(f"v_mfma_f32_16x16x16_bf16 v[{a}:{a+3}], v[{A+4*i}:{A+4*i+1}], v[{B+4*j}:{B+4*j+1}], v[{a}:{a+3}]")
        if k + NB < 16:
            if (k + NB) % 4 == 0:
                hwait((k + NB) // 4)
            g2load("B", k + NB)
        if k + NA < 16 and not (LA0 <= k + NA < LA1):
            g2load("A", k + NA)
        if LA0 <= k + 2 < LA1:
            vm.wait(("L", k + 2))
            g2ldsread(k + 2)
        if k == 10:
            e("s_lshl_b32 s77, s66, 7")
            e(f"s_add_u32 s77, s77, {SFL}")
            e("buffer_load_dword v228, v245, s[52:55], s77 offen sc1")
            vm.add("sf")
        if k == 12:
            vm.wait("sf")
            e("v_cmp_ne_u32 vcc, s34, v228")
            e("s_mov_b32 s62, vcc_lo")
            e("s_cmp_eq_u32 s62, 0")
            e(f"s_cbranch_scc0 {px}_SN")
            sdma(True)
            e(f"s_branch {px}_SJ")
            lab(f"{px}_SN")
            sdma(False)
            lab(f"{px}_SJ")
            vm.add("sd", 2)
    vm.drained()
    stamp()
    e("s_cmp_eq_u32 s62, 0")
    e(f"s_cbranch_scc1 {px}_SW")
    e("s_mov_b32 s70, s77")
    poll(52, 245, "s70", 32, 230, px)
    sdma(True)
    lab(f"{px}_SW")
    for j in range(4):
        for i in range(4):
            a = 4 + 16 * j + 4 * i
            e(f"ds_write_b128 v246, v[{a}:{a+3}] offset:{(4*j+i)*1024}")
    e("v_and_b32 v230, 15, v1")
    e("v_lshrrev_b32 v231, 4, v1")
    e("s_lshl_b32 s71, s60, 4")
    e("v_add_u32 v232, s71, v230")
    e("v_lshlrev_b32 v234, 7, v232")
    e("v_lshl_add_u32 v234, v231, 3, v234")
    e("v_add_u32 v234, 0x12000, v234")
    e("v_lshlrev_b32 v235, 9, v231")
    e("v_lshl_add_u32 v235, v232, 1, v235")
    e("v_add_u32 v235, 0x10000, v235")
    e("s_lshl_b32 s70, s65, 6")
    e("v_add_u32 v232, s70, v232")
    e("v_lshlrev_b32 v233, 10, v232")
    e("v_lshl_add_u32 v233, v231, 3, v233")
    e("s_lshl_b32 s73, s66, 7")
    e("s_lshl_b32 s70, s60, 12")
    e("v_add_u32 v246, s70, v2")
    e(f"s_mov_b32 s74, {f2u(-LOG2E)}")
    e("s_waitcnt vmcnt(0) lgkmcnt(0)")
    e("s_barrier")
    stamp()
    for ww in range(4):
        for i in range(4):
            r = 68 + 16 * ww + 4 * i
            e(f"ds_read_b128 v[{r}:{r+3}], v246 offset:{ww*16384 + i*1024}")
    e("s_waitcnt lgkmcnt(8)")
    for i in range(4):
        e(f"ds_read_b64 v[{132+2*i}:{133+2*i}], v234 offset:{32*i}")
    for q in range(8):
        e(f"v_pk_add_f32 v[{68+2*q}:{69+2*q}], v[{68+2*q}:{69+2*q}], v[{84+2*q}:{85+2*q}]")
    e("s_waitcnt lgkmcnt(4)")
    for i in range(4):
        for r in range(4):
            if i < 2:
                e(f"ds_read_u16 v{148+4*i+r}, v235 offset:{(16*i+r)*128}")
    for q in range(8):
        e(f"v_pk_add_f32 v[{100+2*q}:{101+2*q}], v[{100+2*q}:{101+2*q}], v[{116+2*q}:{117+2*q}]")
    for q in range(8):
        e(f"v_pk_add_f32 v[{68+2*q}:{69+2*q}], v[{68+2*q}:{69+2*q}], v[{100+2*q}:{101+2*q}]")
    e("s_waitcnt lgkmcnt(4)")
    for i in range(2, 4):
        for r in range(4):
            e(f"ds_read_u16 v{148+4*i+r}, v235 offset:{(16*i+r)*128}")
    def rnd(a, n, T):
        for k in range(n // 2):
            e(f"v_cvt_pk_bf16_f32 v{T+k}, v{a+2*k}, v{a+2*k+1}")
        for k in range(n // 2):
            e(f"v_lshlrev_b32 v{a+2*k}, 16, v{T+k}")
            e(f"v_and_b32 v{a+2*k+1}, s72, v{T+k}")
    def unp(dst, src, n):
        for k in range(n // 2):
            e(f"v_lshlrev_b32 v{dst+2*k}, 16, v{src+k}")
            e(f"v_and_b32 v{dst+2*k+1}, s72, v{src+k}")
    a = 68
    rnd(a, 16, 4)
    unp(16, 236, 16)
    for k in range(8):
        e(f"v_pk_add_f32 v[{a+2*k}:{a+2*k+1}], v[{a+2*k}:{a+2*k+1}], v[{16+2*k}:{17+2*k}]")
    rnd(a, 16, 4)
    for r in range(16):
        e(f"v_mul_f32 v{16+r}, s74, v{a+r}")
    for r in range(16):
        e(f"v_exp_f32 v{16+r}, v{16+r}")
    for k in range(8):
        e(f"v_pk_add_f32 v[{16+2*k}:{17+2*k}], v[{16+2*k}:{17+2*k}], 1.0 op_sel_hi:[1,0]")
    for r in range(16):
        e(f"v_rcp_f32 v{16+r}, v{16+r}")
    for k in range(8):
        e(f"v_pk_mul_f32 v[{a+2*k}:{a+2*k+1}], v[{a+2*k}:{a+2*k+1}], v[{16+2*k}:{17+2*k}]")
    rnd(a, 16, 4)
    e("s_waitcnt lgkmcnt(0)")
    for r in range(16):
        e(f"v_lshlrev_b32 v{16+r}, 16, v{148+r}")
    for k in range(8):
        e(f"v_pk_mul_f32 v[{a+2*k}:{a+2*k+1}], v[{a+2*k}:{a+2*k+1}], v[{16+2*k}:{17+2*k}]")
    rnd(a, 16, 4)
    unp(16, 132, 16)
    for k in range(8):
        e(f"v_pk_add_f32 v[{a+2*k}:{a+2*k+1}], v[{a+2*k}:{a+2*k+1}], v[{16+2*k}:{17+2*k}]")
    for k in range(8):
        e(f"v_cvt_pk_bf16_f32 v{32+k}, v{a+2*k}, v{a+2*k+1}")
    for i in range(4):
        e(f"buffer_store_dwordx2 v[{32+2*i}:{33+2*i}], v233, s[48:51], s73 offen offset:{32*i}")
    if STAMP:
        stamp()
        e("s_waitcnt vmcnt(0)")
    stamp_flush()
    e("s_endpgm")


def gen_C(px, rep=True, kc=True, waits='LH'):
    CH = 38400; CS = 4160; KB = 8 * CS
    SL = " sc1" if "L" in waits else ""
    SH = " sc1" if "H" in waits else ""
    stamp(True)
    e("s_sub_u32 s61, s2, 256")
    e("s_and_b32 s62, s61, 7")
    e("s_lshr_b32 s61, s61, 3")
    e("s_lshl_b32 s62, s62, 5")
    e("s_add_u32 s61, s61, s62")
    e("s_lshr_b32 s62, s60, 1")
    e("s_and_b32 s63, s60, 1")
    e("s_lshl_b32 s64, s61, 1")
    e("s_add_u32 s64, s64, s62")
    e(f"s_mul_i32 s65, s62, {CH}")
    e("v_and_b32 v6, 15, v1")
    e("v_lshrrev_b32 v7, 4, v1")
    srd(36, P_W2, 512 * 1792 * 2)
    srd(40, P_WS, W2F_SZ, W2F_OFF)
    srd(44, P_WS, XNB_SZ, XNB_OFF)
    srd(48, P_WS, ST_SZ, ST_OFF)
    srd(52, P_WS, FL_SZ, FL_OFF)
    e("s_mov_b32 s72, 0xffff0000")
    def uloads():
        e("s_lshl_b32 s70, s63, 7")
        e("v_add_u32 v34, s70, v1")
        e("v_sub_u32 v35, 255, v34")
        e("v_lshlrev_b32 v35, 13, v35")
        e("s_lshl_b32 s70, s64, 4")
        e("v_add_u32 v35, s70, v35")
        e("v_subrev_u32 v36, 0x2000, v35")
        e("v_subrev_u32 v37, 0x80000, v35")
        e("v_subrev_u32 v38, 0x82000, v35")
        e(f"buffer_load_dwordx4 v[168:171], v35, s[44:47], 0 offen{LSC}")
        e(f"buffer_load_dwordx4 v[172:175], v36, s[44:47], 0 offen{LSC}")
        e(f"buffer_load_dwordx4 v[176:179], v37, s[44:47], 0 offen{LSC}")
        e(f"buffer_load_dwordx4 v[180:183], v38, s[44:47], 0 offen{LSC}")
    if kc:
        e("s_lshl_b32 s66, s64, 8")
        e("s_lshl_b32 s67, s63, 7")
        e("s_add_u32 s66, s66, s67")
        e("v_lshl_add_u32 v8, v1, 1, s66")
        e("s_lshl_b32 s67, s64, 1")
        e("v_mov_b32 v9, s67")
        e(f"global_load_ushort v10, v8, s[{P_LAR}:{P_LAR+1}]")
        e(f"global_load_ushort v11, v8, s[{P_AIM}:{P_AIM+1}]")
        e(f"global_load_ushort v12, v8, s[{P_CR}:{P_CR+1}]")
        e(f"global_load_ushort v13, v8, s[{P_CI}:{P_CI+1}]")
        e(f"global_load_ushort v14, v9, s[{P_LDT}:{P_LDT+1}]")
        e(f"global_load_ushort v15, v9, s[{P_DSK}:{P_DSK+1}]")
        if "L" not in waits:
            uloads()
    def rep_loads():
        e("s_lshr_b32 s66, s64, 4")
        e("s_and_b32 s67, s64, 15")
        e("v_lshlrev_b32 v16, 12, v7")
        e("v_lshl_add_u32 v16, v6, 1, v16")
        e(f"s_mul_i32 s68, s67, {112*1024}")
        e("s_lshl_b32 s69, s66, 5")
        e("s_add_u32 s68, s68, s69")
        e("s_lshl_b32 s69, s63, 16")
        e("s_add_u32 s68, s68, s69")
        for k in range(4):
            e(f"s_add_u32 s{73}, s68, {k*16384}")
            for el in range(4):
                e(f"buffer_load_ushort v{200+4*k+el}, v16, s[36:39], s73 offen offset:{1024*el}")
    if rep and not kc:
        e("s_sub_u32 s35, s2, 256")
        e("s_lshl_b32 s35, s35, 2")
        e("s_add_u32 s35, s35, s60")
        e("s_cmp_ge_u32 s35, 896")
        e(f"s_cbranch_scc1 {px}_W1L")
        srd(44, P_W1, 512 * 1792 * 2)
        e(f"v_mul_u32_u24 v18, {4*3584}, v7")
        e("v_lshl_add_u32 v18, v6, 1, v18")
        for k in range(2):
            e("s_lshl_b32 s67, s35, 1")
            if k: e("s_add_u32 s67, s67, 1")
            e("s_mul_i32 s68, s67, 9363")
            e("s_lshr_b32 s68, s68, 16")
            e("s_mul_i32 s69, s68, 7")
            e("s_sub_u32 s69, s67, s69")
            e("s_lshr_b32 s70, s68, 4")
            e("s_and_b32 s68, s68, 15")
            e("s_mul_i32 s70, s70, 7")
            e("s_add_u32 s70, s70, s69")
            e("s_lshl_b32 s70, s70, 5")
            e(f"s_mul_i32 s68, s68, {32*3584}")
            e("s_add_u32 s70, s70, s68")
            for ee in range(8):
                e(f"s_add_u32 s71, s70, {(16*(ee>>2) + (ee&3))*3584}")
                e(f"buffer_load_ushort v{100+8*k+ee}, v18, s[44:47], s71 offen")
        lab(f"{px}_W1L")
    if kc:
        for i in range(8):
            d = 230 + i
            e("v_lshlrev_b32 v17, 3, v0")
            if i:
                e(f"v_add_u32 v17, {i}, v17")
            e("v_cvt_f32_u32 v17, v17")
            e("v_cvt_pk_bf16_f32 v17, v17, v17")
            e("v_lshlrev_b32 v17, 16, v17")
            e("v_cvt_u32_f32 v18, v17")
            e("v_lshrrev_b32 v17, 23, v17")
            e("v_subrev_u32 v17, 134, v17")
            e("v_med3_i32 v17, v17, 0, 3")
            e("v_lshrrev_b32 v19, 7, v18")
            e("v_and_b32 v20, 7, v18")
            e("v_lshl_add_u32 v19, v19, 3, v20")
            e("v_lshrrev_b32 v19, v17, v19")
            e("v_lshl_add_u32 v19, v17, 3, v19")
            e("v_bfe_u32 v20, v18, 3, 4")
            e("v_lshrrev_b32 v21, 4, v19")
            e("v_and_b32 v19, 15, v19")
            e("v_lshl_add_u32 v20, v21, 4, v20")
            e("v_lshl_add_u32 v19, v20, 4, v19")
            e(f"v_lshlrev_b32 v{d}, 1, v19")
    def rep_store():
        e("s_lshr_b32 s66, s64, 4")
        e("s_and_b32 s67, s64, 15")
        for k in range(4):
            e(f"v_lshl_or_b32 v{216+2*k}, v{201+4*k}, 16, v{200+4*k}")
            e(f"v_lshl_or_b32 v{217+2*k}, v{203+4*k}, 16, v{202+4*k}")
        e("s_lshr_b32 s68, s66, 2")
        e("s_lshl_b32 s68, s68, 4")
        e("s_add_u32 s68, s68, s67")
        e("s_mul_i32 s68, s68, 14336")
        e("s_and_b32 s69, s66, 3")
        e("s_lshl_b32 s70, s69, 10")
        e("s_add_u32 s70, s70, s68")
        e("s_lshl_b32 s71, s63, 13")
        e("s_add_u32 s70, s70, s71")
        e(f"buffer_store_dwordx4 v[216:219], v2, s[40:43], s70 offen{SL}")
        e("s_cmp_eq_u32 s63, 0")
        e(f"s_cbranch_scc0 {px}_RP1")
        e("s_add_u32 s70, s70, 4096")
        e(f"buffer_store_dwordx4 v[220:223], v2, s[40:43], s70 offen{SL}")
        e(f"s_branch {px}_RPJ")
        lab(f"{px}_RP1")
        e("s_lshl_b32 s70, s69, 9")
        e("s_add_u32 s70, s70, s68")
        e("s_add_u32 s70, s70, 12288")
        e("v_lshlrev_b32 v17, 3, v1")
        e(f"buffer_store_dwordx2 v[220:221], v17, s[40:43], s70 offen{SL}")
        lab(f"{px}_RPJ")
    stamp()
    e("s_waitcnt vmcnt(0)")
    stamp()
    if rep and not kc:
        rep_store()
        e("s_cmp_ge_u32 s35, 896")
        e(f"s_cbranch_scc1 {px}_W1E")
        srd(40, P_WS, W1F_SZ, W1F_OFF)
        e("s_lshl_b32 s67, s35, 11")
        for k in range(2):
            for j in range(4):
                e(f"v_lshl_or_b32 v{120+4*k+j}, v{101+8*k+2*j}, 16, v{100+8*k+2*j}")
            e(f"buffer_store_dwordx4 v[{120+4*k}:{123+4*k}], v2, s[40:43], s67 offen offset:{1024*k}")
        lab(f"{px}_W1E")
    if not kc:
        if not waits:
            pass
        stamp_flush()
        e("s_endpgm")
        return
    e(f"s_mov_b32 s66, {f2u(LOG2E_HI)}")
    e(f"s_mov_b32 s67, {f2u(LOG2E_LO)}")
    e(f"s_mov_b32 s68, {f2u(LN2)}")
    e(f"s_mov_b32 s69, {f2u(INV2PI)}")
    for r in (10, 11, 12, 13, 14, 15):
        e(f"v_lshlrev_b32 v{r}, 16, v{r}")
    def exp_acc(dst, x, t1, t2):
        e(f"v_mul_f32 v{t1}, s66, v{x}")
        e(f"v_fma_f32 v{t2}, v{x}, s66, -v{t1}")
        e(f"v_fmac_f32 v{t2}, s67, v{x}")
        e(f"v_exp_f32 v{dst}, v{t1}")
        e(f"v_mul_f32 v{t2}, s68, v{t2}")
        e(f"v_fmac_f32 v{dst}, v{dst}, v{t2}")
    exp_acc(16, 14, 17, 18)
    exp_acc(19, 10, 20, 21)
    e("v_cvt_pk_bf16_f32 v17, v16, v19")
    e("v_lshlrev_b32 v16, 16, v17")
    e("v_and_b32 v19, s72, v17")
    e("v_mul_f32 v19, v19, v16")
    e("v_mul_f32 v19, s66, v19")
    e("v_mul_f32 v20, v11, v16")
    e("v_mul_f32 v20, s69, v20")
    e("v_mul_f32 v22, v12, v16")
    e("v_mul_f32 v23, v13, v16")
    e("v_max_f32 v24, |v22|, |v23|")
    dpp_reduce([24], "v_max_f32")
    e("v_readlane_b32 s70, v24, 63")
    for k, (m, d) in enumerate(((1.0, 26), (8.0, 28), (128.0, 30))):
        e(f"v_mul_f32 v{32+k}, {f2u(-m)}, v19")
        e(f"v_mul_f32 v{36+k}, {f2u(m)}, v20")
    e("v_frexp_exp_i32_f32 v24, s70")
    for k in range(3):
        e(f"v_exp_f32 v{32+k}, v{32+k}")
        e(f"v_fract_f32 v{36+k}, v{36+k}")
    e("v_sub_u32 v25, 0, v24")
    for k in range(3):
        e(f"v_cos_f32 v{40+k}, v{36+k}")
        e(f"v_sin_f32 v{44+k}, v{36+k}")
    e("v_ldexp_f32 v22, v22, v25")
    e("v_ldexp_f32 v23, v23, v25")
    for k, d in enumerate((26, 28, 30)):
        e(f"v_mul_f32 v{d}, v{32+k}, v{40+k}")
        e(f"v_mul_f32 v{d+1}, v{32+k}, v{44+k}")
    e(f"s_mul_i32 s70, s63, 9216")
    e("s_add_u32 s70, s70, s65")
    e("v_lshlrev_b32 v32, 2, v1")
    e("v_add_u32 v32, s70, v32")
    e("v_mul_u32_u24 v33, 288, v6")
    e("v_lshl_add_u32 v33, v7, 4, v33")
    e("v_add_u32 v33, s70, v33")
    AT = 4608
    cur = 22
    for j in range(16):
        if j:
            nxt = 34 if cur != 34 else 36
            cmul(nxt, cur, 28, nxt)
            cur = nxt
        e(f"v_cvt_pk_f16_f32 v38, v{cur}, -v{cur+1}")
        e(f"ds_write_b32 v32, v38 offset:{288*j}")
    for ks in range(4):
        e(f"ds_read_b128 v[{120+4*ks}:{123+4*ks}], v33 offset:{64*ks}")
    e("v_mov_b32 v40, 1.0")
    e("v_mov_b32 v41, 0")
    e("v_mov_b32 v42, v26")
    e("v_mov_b32 v43, v27")
    for r in range(2, 8):
        cmul(40 + 2 * r, 40 + 2 * (r - 1), 26, 40 + 2 * r)
    e("v_mov_b32 v58, v30")
    e("v_mov_b32 v59, v31")
    for i in range(2, 17):
        cmul(56 + 2 * i, 56 + 2 * (i - 1), 30, 56 + 2 * i)
    def Rr(r): return 40 + 2 * r
    def Gi(i): return 56 + 2 * i
    tiles = [
        [(None, r) for r in range(8)] + [(1, r) for r in range(8)],
        [(2, 2 * r) for r in range(4)] + [(3, 2 * r) for r in range(4)] + [(4 + i, 4 * r) for i in range(4) for r in range(2)],
        [(8 + i, 0) for i in range(9)],
    ]
    for i in range(12):
        e(f"v_mov_b32 v{100+i}, 0")
    for T, rows in enumerate(tiles):
        for row, (gi, r) in enumerate(rows):
            tp = 92 + 2 * (row & 3)
            if gi is None:
                src = Rr(r)
            elif r == 0:
                src = Gi(gi)
            else:
                cmul(tp, Gi(gi), Rr(r), tp)
                src = tp
            e(f"v_cvt_pk_f16_f32 v{112 + (row & 3)}, v{src}, v{src+1}")
            e(f"ds_write_b32 v32, v{112 + (row & 3)} offset:{AT + 288*row}")
        for ks in range(4):
            e(f"ds_read_b128 v[{136+16*(T&1)+4*ks}:{139+16*(T&1)+4*ks}], v33 offset:{AT + 64*ks}")
        e("s_waitcnt lgkmcnt(0)")
        a = 100 + 4 * T
        for ks in range(4):
            A = 136 + 16 * (T & 1) + 4 * ks
            e(f"v_mfma_f32_16x16x32_f16 v[{a}:{a+3}], v[{A}:{A+3}], v[{120+4*ks}:{123+4*ks}], v[{a}:{a+3}]")
    stamp()
    rep_loads()
    e("s_mul_i32 s70, s63, 3072")
    e("s_add_u32 s70, s70, s65")
    e("v_lshlrev_b32 v34, 6, v6")
    e("v_lshl_add_u32 v34, v7, 4, v34")
    e("v_add_u32 v34, s70, v34")
    e("s_lshl_b32 s70, s63, 2")
    e("s_add_u32 s70, s70, s65")
    e("v_mov_b32 v35, s70")
    e("s_nop 3")
    for T in range(3):
        e(f"ds_write_b128 v34, v[{100+4*T}:{103+4*T}] offset:{18432 + 1024*T}")
    e(f"ds_write_b32 v35, v24 offset:{26112}")
    e("s_waitcnt lgkmcnt(0)")
    nonce()
    e("s_barrier")
    e("v_lshlrev_b32 v34, 4, v0")
    e("v_min_u32 v34, 3056, v34")
    e("v_mov_b32 v35, 0")
    for c in range(2):
        e(f"ds_read_b128 v[{40+16*c}:{43+16*c}], v34 offset:{c*CH + 18432}")
        e(f"ds_read_b128 v[{44+16*c}:{47+16*c}], v34 offset:{c*CH + 18432 + 3072}")
        e(f"ds_read_b64 v[{48+16*c}:{49+16*c}], v35 offset:{c*CH + 26112}")
    e("v_lshrrev_b32 v36, 1, v34")
    e("s_waitcnt lgkmcnt(0)")
    for c in range(2):
        b = 40 + 16 * c
        e(f"v_max_i32 v{b+10}, v{b+8}, v{b+9}")
        e(f"v_sub_u32 v{b+8}, v{b+8}, v{b+10}")
        e(f"v_sub_u32 v{b+9}, v{b+9}, v{b+10}")
        for j in range(4):
            e(f"v_ldexp_f32 v{b+j}, v{b+j}, v{b+8}")
            e(f"v_ldexp_f32 v{b+4+j}, v{b+4+j}, v{b+9}")
        for j in range(4):
            e(f"v_add_f32 v{b+j}, v{b+j}, v{b+4+j}")
        e(f"v_cvt_pk_f16_f32 v{b+12}, v{b}, v{b+1}")
        e(f"v_cvt_pk_f16_f32 v{b+13}, v{b+2}, v{b+3}")
        e(f"ds_write_b64 v36, v[{b+12}:{b+13}] offset:{c*CH + 24576}")
    e("s_cmp_eq_u32 s62, 0")
    e("s_cselect_b64 vcc, -1, 0")
    e("s_nop 1")
    e("v_cndmask_b32 v25, v66, v50, vcc")
    e("v_add_u32 v25, 1, v25")
    e("s_waitcnt lgkmcnt(0)")
    e("s_barrier")
    for c in range(2):
        for i in range(8):
            e(f"ds_read_u16 v{40+8*c+i}, v{230+i} offset:{c*CH + 24576}")
    e("v_lshrrev_b32 v34, 2, v0")
    e("v_lshlrev_b32 v34, 5, v34")
    e("v_bfe_u32 v35, v0, 1, 1")
    e("v_mul_u32_u24 v35, 2560, v35")
    e("v_and_b32 v36, 1, v0")
    e("v_lshl_add_u32 v34, v36, 4, v34")
    e("v_add_u32 v34, v34, v35")
    e("v_bfe_u32 v35, v0, 5, 1")
    e("v_mul_u32_u24 v35, 2560, v35")
    e("v_and_b32 v36, 31, v0")
    e("v_lshl_add_u32 v35, v36, 4, v35")
    e("v_bfe_u32 v36, v0, 6, 1")
    e(f"v_mul_u32_u24 v36, {CH}, v36")
    e("v_add_u32 v35, v35, v36")
    for j in range(4):
        e(f"v_mov_b32 v{64+j}, 0")
    e(f"ds_write_b128 v35, v[64:67] offset:{KB}")
    e("s_waitcnt lgkmcnt(1)")
    for c in range(2):
        for j in range(4):
            e(f"v_lshl_or_b32 v{56+4*c+j}, v{41+8*c+2*j}, 16, v{40+8*c+2*j}")
        if c == 1:
            e(f"v_add_u32 v37, {CH}, v34")
        e(f"ds_write_b128 v{34 if c == 0 else 37}, v[{56+4*c}:{59+4*c}] offset:{KB + 512}")
    if DUMPK:
        srd(36, P_WS, KP_SZ, KP_OFF)
        e("s_mul_i32 s70, s61, 10240")
        e("buffer_store_dwordx4 v[56:59], v34, s[36:39], s70 offen offset:512")
        e("s_add_u32 s70, s70, 5120")
        e("buffer_store_dwordx4 v[60:63], v34, s[36:39], s70 offen offset:512")
        e("s_lshl_b32 s70, s64, 2")
        e(f"s_add_u32 s70, s70, {KP_SZ - 4096}")
        e("v_mov_b32 v36, 0")
        e("buffer_store_dword v25, v36, s[36:39], s70 offen")
    stamp()
    e("s_waitcnt vmcnt(0) lgkmcnt(0)")
    rep_store()
    e("s_cmp_eq_u32 s60, 0")
    e(f"s_cbranch_scc0 {px}_W1")
    e("v_lshlrev_b32 v34, 2, v1")
    poll(52, 34, "0", 64, 36, px, ndw=4, sleep=8)
    lab(f"{px}_W1")
    e("s_waitcnt vmcnt(0)")
    e("s_barrier")
    stamp()
    def c_():
        e("s_lshl_b32 s70, s61, 2")
        e(f"s_add_u32 s70, s70, {RFL}")
    publish(px, "RF2", c_, 36)
    lab(f"{px}_RF2")
    if "L" in waits:
        uloads()
    e("s_lshl_b32 s70, s63, 7")
    e("v_add_u32 v34, s70, v1")
    e("v_lshlrev_b32 v34, 4, v34")
    e("v_add_u32 v34, s65, v34")
    e("v_lshrrev_b32 v35, 2, v1")
    e(f"v_mul_u32_u24 v35, {CS}, v35")
    e("v_and_b32 v36, 3, v1")
    e("v_lshl_add_u32 v35, v36, 4, v35")
    e(f"s_mul_i32 s70, s63, {4*CS}")
    e("s_add_u32 s70, s70, s65")
    e("v_add_u32 v35, s70, v35")
    for j in range(4):
        e(f"v_mov_b32 v{88+j}, 0")
    e("s_mov_b64 exec, 0xffff")
    e("ds_write_b128 v35, v[88:91] offset:4096")
    e("s_mov_b64 exec, -1")
    e("v_and_b32 v35, 3, v6")
    e("v_sub_u32 v35, 7, v35")
    e(f"v_mul_u32_u24 v35, {CS}, v35")
    e("v_lshrrev_b32 v36, 2, v6")
    e("v_sub_u32 v36, v7, v36")
    e("v_lshl_add_u32 v35, v36, 4, v35")
    e("s_lshl_b32 s70, s63, 6")
    e("s_sub_u32 s70, s65, s70")
    e(f"s_add_u32 s70, s70, {4080 - 64*62}")
    e("v_add_u32 v12, s70, v35")
    e(f"v_subrev_u32 v13, {4*CS}, v12")
    e("v_lshrrev_b32 v35, 1, v7")
    e("v_mul_u32_u24 v35, 2560, v35")
    e("v_lshl_add_u32 v35, v6, 5, v35")
    e("v_and_b32 v36, 1, v7")
    e("v_lshl_add_u32 v35, v36, 4, v35")
    e("s_lshl_b32 s70, s63, 5")
    e("s_sub_u32 s70, s65, s70")
    e(f"s_add_u32 s70, s70, {KB+32}")
    e("v_add_u32 v14, s70, v35")
    for it in range(2):
        I = 168 + 8 * it
        O = 48 + 24 * it
        e(f"s_waitcnt vmcnt({2 - 2*it})")
        for j in range(7):
            e(f"v_alignbit_b32 v{O+j}, v{I+j+1}, v{I+j}, 16")
        off = 1024 * it
        e(f"ds_write_b128 v34, v[{I}:{I+3}] offset:{off}")
        e(f"ds_write_b128 v34, v[{I+2}:{I+5}] offset:{off + 4*CS}")
        e(f"ds_write_b128 v34, v[{O}:{O+3}] offset:{off + 1*CS}")
        e(f"ds_write_b128 v34, v[{O+2}:{O+5}] offset:{off + 5*CS}")
        M = 92 + 16 * it
        for k, (src, s) in enumerate(((I + 1, 2), (I + 3, 6), (O + 1, 3), (O + 3, 7))):
            e(f"v_pk_mov_b32 v[{M+4*k}:{M+4*k+1}], v[{src-1}:{src}], v[{src+1}:{src+2}] op_sel:[1,0]")
            e(f"v_pk_mov_b32 v[{M+4*k+2}:{M+4*k+3}], v[{src+1}:{src+2}], v[{src+3}:{src+4}] op_sel:[1,0]")
            e(f"ds_write_b128 v34, v[{M+4*k}:{M+4*k+3}] offset:{off + s*CS}")
    ACC = 16
    e("v_mov_b32 v10, v25")
    e("v_mov_b32 v11, v15")
    for i in range(32):
        e(f"v_mov_b32 v{ACC+i}, 0")
    stamp()
    e("s_waitcnt vmcnt(0) lgkmcnt(0)")
    e("s_barrier")
    stamp()
    if os.environ.get("L2PF"):
        e("v_lshlrev_b32 v8, 2, v1")
        e(f"s_mov_b32 s70, {RFL}")
        poll(52, 8, "s70", 64, 120, px, ndw=4, sleep=4)
        e("s_sub_u32 s70, s2, 256")
        e("s_lshr_b32 s70, s70, 3")
        e("s_lshl_b32 s70, s70, 2")
        e("s_add_u32 s70, s70, s60")
        e("s_mul_i32 s70, s70, 14336")
        for q in range(14):
            if q and q % 4 == 0:
                e("s_add_u32 s70, s70, 4096")
            e(f"buffer_load_dwordx4 v[124:127], v2, s[40:43], s70 offen offset:{1024*(q%4)}")
    e("s_cmp_eq_u32 s60, 0")
    e(f"s_cbranch_scc0 {px}_RF")
    if os.environ.get("DEFER"):
        e("s_sub_u32 s70, s2, 256")
        e("s_lshl_b32 s70, s70, 2")
        e(f"s_add_u32 s70, s70, {HINT}")
        e("v_mov_b32 v8, 0")
        poll(52, 8, "s70", 1, 9, px, sleep=3)
    lab(f"{px}_RF")
    if os.environ.get("DEFER"):
        e("s_barrier")
    stamp()
    NB = 3
    FR = [48 + 24 * b for b in range(NB)]
    def nI(pp):
        return 4 - (2 * pp) // 16
    def issue_list(pp):
        R = FR[pp % NB]
        out = []
        for h in range(2):
            out.append(f"ds_read_b128 v[{R+4*h}:{R+4*h+3}], v{12+h} offset:{64*(62-2*pp)}")
        for I in range(4 - nI(pp), 4):
            out.append(f"ds_read_b128 v[{R+8+4*I}:{R+11+4*I}], v14 offset:{32*(16*I-2*pp+15)}")
        return out
    cnts = {}
    for pp in range(NB - 1):
        l_ = issue_list(pp); cnts[pp] = len(l_)
        for x in l_: e(x)
    for pp in range(32):
        nxt = issue_list(pp + NB - 1) if pp + NB - 1 < 32 else []
        pend = sum(cnts[k] for k in range(pp + 1, min(32, pp + NB - 1)))
        cnts[pp + NB - 1] = len(nxt)
        e(f"s_waitcnt lgkmcnt({pend})")
        R = FR[pp % NB]
        for I in range(4 - nI(pp), 4):
            for h in range(2):
                a = ACC + 8 * I + 4 * h
                e(f"v_mfma_f32_16x16x32_f16 v[{a}:{a+3}], v[{R+4*h}:{R+4*h+3}], v[{R+8+4*I}:{R+11+4*I}], v[{a}:{a+3}]")
                if nxt: e(nxt.pop(0))
        for x in nxt: e(x)
    e("s_nop 7")
    stamp()
    e("s_barrier")
    e("s_lshl_b32 s70, s63, 12")
    e("s_add_u32 s70, s70, s65")
    e(f"s_add_u32 s70, s70, {CS}")
    e("v_add_u32 v8, s70, v2")
    e("s_xor_b32 s71, s63, 1")
    e("s_lshl_b32 s70, s71, 12")
    e("s_add_u32 s70, s70, s65")
    e(f"s_add_u32 s70, s70, {CS}")
    e("v_add_u32 v9, s70, v2")
    e("s_cmp_eq_u32 s63, 0")
    e(f"s_cbranch_scc1 {px}_P0")
    for t in range(4):
        e(f"ds_write_b128 v8, v[{ACC+4*t}:{ACC+4*t+3}] offset:{1024*t}")
    for i in range(8):
        e(f"v_pk_mov_b32 v[{48+2*i}:{49+2*i}], v[{ACC+16+2*i}:{ACC+17+2*i}], v[{ACC+16+2*i}:{ACC+17+2*i}] op_sel:[0,1]")
    e(f"s_branch {px}_PJ")
    lab(f"{px}_P0")
    for t in range(4):
        e(f"ds_write_b128 v8, v[{ACC+16+4*t}:{ACC+16+4*t+3}] offset:{1024*t}")
    for i in range(8):
        e(f"v_pk_mov_b32 v[{48+2*i}:{49+2*i}], v[{ACC+2*i}:{ACC+1+2*i}], v[{ACC+2*i}:{ACC+1+2*i}] op_sel:[0,1]")
    lab(f"{px}_PJ")
    e("s_waitcnt lgkmcnt(0)")
    e("s_barrier")
    for t in range(4):
        e(f"ds_read_b128 v[{64+4*t}:{67+4*t}], v9 offset:{1024*t}")
    e("v_lshlrev_b32 v5, 6, v6")
    e("v_lshl_add_u32 v5, v7, 4, v5")
    e("s_lshl_b32 s70, s63, 11")
    e("s_sub_u32 s70, s65, s70")
    e(f"s_add_u32 s70, s70, {4080-1024}")
    e("v_sub_u32 v8, s70, v5")
    for Il in range(2):
        e(f"ds_read_b128 v[{80+4*Il}:{83+4*Il}], v8 offset:{1024*(1-Il)}")
    e("s_lshl_b32 s70, s64, 12")
    e("s_lshl_b32 s71, s63, 11")
    e("s_add_u32 s70, s70, s71")
    e("s_waitcnt lgkmcnt(0)")
    for Il in range(2):
        a = 48 + 8 * Il
        for k in range(4):
            e(f"v_pk_add_f32 v[{a+2*k}:{a+2*k+1}], v[{a+2*k}:{a+2*k+1}], v[{64+8*Il+2*k}:{65+8*Il+2*k}]")
        for k in range(8):
            e(f"v_ldexp_f32 v{a+k}, v{a+k}, v10")
        for k in range(4):
            e(f"v_cvt_pk_bf16_f32 v{88+k}, v{a+2*k}, v{a+2*k+1}")
        for k in range(4):
            e(f"v_lshlrev_b32 v{a+2*k}, 16, v{88+k}")
            e(f"v_and_b32 v{a+2*k+1}, s72, v{88+k}")
        U = 80 + 4 * Il
        for k in range(4):
            src = U + 3 - k
            e(f"v_cvt_f32_f16_sdwa v{92+2*k}, v{src} dst_sel:DWORD dst_unused:UNUSED_PAD src0_sel:WORD_1")
            e(f"v_cvt_f32_f16 v{93+2*k}, v{src}")
        for k in range(8):
            e(f"v_mul_f32 v{92+k}, v{92+k}, v11")
        for k in range(4):
            e(f"v_cvt_pk_bf16_f32 v{88+k}, v{92+2*k}, v{93+2*k}")
        for k in range(4):
            e(f"v_lshlrev_b32 v{92+2*k}, 16, v{88+k}")
            e(f"v_and_b32 v{93+2*k}, s72, v{88+k}")
        for k in range(4):
            e(f"v_pk_add_f32 v[{a+2*k}:{a+2*k+1}], v[{a+2*k}:{a+2*k+1}], v[{92+2*k}:{93+2*k}]")
        for k in range(4):
            e(f"v_cvt_pk_bf16_f32 v{100+4*Il+k}, v{a+2*k}, v{a+2*k+1}")
        e(f"buffer_store_dwordx4 v[{100+4*Il}:{103+4*Il}], v5, s[48:51], s70 offen offset:{1024*Il}{SH}")
    stamp()
    e("s_waitcnt vmcnt(0)")
    e("s_barrier")
    def c_():
        e("s_lshl_b32 s70, s61, 2")
        e(f"s_add_u32 s70, s70, {SFL}")
    publish(px, "SF", c_, 36)
    e("s_cmp_eq_u32 s61, 0")
    e(f"s_cbranch_scc0 {px}_SF")
    e("v_lshlrev_b32 v34, 2, v1")
    e(f"s_mov_b32 s70, {RFL}")
    poll(52, 34, "s70", 64, 36, px, ndw=4, sleep=8)
    e("s_add_u32 s35, s35, 1")
    e("v_mov_b32 v34, 0")
    e("v_mov_b32 v35, s35")
    e(f"s_mov_b32 s70, {EPO}")
    e("s_mov_b64 exec, 1")
    e("buffer_store_dword v35, v34, s[52:55], s70 offen sc1")
    e("s_mov_b64 exec, -1")
    lab(f"{px}_SF")
    stamp_flush()
    e("s_endpgm")


def gen_kernel(name, px):
    kernel_begin(name)
    e("s_cmp_ge_u32 s2, 512")
    e(f"s_cbranch_scc1 {px}_END")
    e("s_load_dwordx16 s[4:19], s[0:1], 0")
    e("s_load_dwordx8 s[20:27], s[0:1], 64")
    e("s_load_dwordx4 s[28:31], s[0:1], 96")
    e("s_load_dwordx2 s[32:33], s[0:1], 112")
    e("v_and_b32 v1, 63, v0")
    e("v_readfirstlane_b32 s60, v0")
    e("v_lshlrev_b32 v2, 4, v1")
    e("s_lshr_b32 s60, s60, 6")
    e("s_waitcnt lgkmcnt(0)")
    e(f"s_add_u32 s36, s32, 0x{FL_OFF:x}")
    e("s_addc_u32 s37, s33, 0")
    e(f"s_load_dword s35, s[36:37], {EPO}")
    if os.environ.get("TLBPF"):
        srd(40, P_WS, 0x1000000)
        srd(44, P_OUT, 0x200000)
        e("v_lshlrev_b32 v4, 21, v1")
        e("v_add_u32 v4, 0x1fff80, v4")
        e("s_cmp_eq_u32 s60, 2")
        e(f"s_cbranch_scc0 {px}_TLE")
        e("s_mov_b64 exec, 0xff")
        e("buffer_load_dword v5, v4, s[40:43], 0 offen sc1")
        e("buffer_load_dword v5, v2, s[44:47], 0 offen sc1")
        e("s_mov_b64 exec, -1")
        lab(f"{px}_TLE")
    if os.environ.get("CODEPF"):
        e("s_getpc_b64 s[40:41]")
        lab(f"{px}_PC")
        e("s_lshr_b32 s42, s2, 3")
        e("s_lshl_b32 s42, s42, 10")
        e("v_add_u32 v4, s42, v2")
        e(f"v_min_u32 v4, {px}_END - {px}_PC - 16, v4")
        e("v_and_b32 v4, -4, v4")
        e("s_cmp_eq_u32 s60, 3")
        e(f"s_cbranch_scc0 {px}_PCE")
        e("global_load_dword v5, v4, s[40:41]")
        lab(f"{px}_PCE")
    e("s_cmp_ge_u32 s2, 256")
    e(f"s_cbranch_scc1 {px}_C")
    gen_G(px + "G")
    lab(f"{px}_C")
    gen_C(px + "C")
    lab(f"{px}_END")
    e("s_endpgm")

LDS = 81920
KN = "pf_kernel" if os.environ.get("LIST") or len(sys.argv) > 1 else "recurrent_scan__ssm_conv_s4d__dense_activation_gelu__prompt_kernel"
gen_kernel(KN, "F")
hdr = "; S4D conv + FFN fused op, single launch (generated by gen/gen8.py)\n"
if KN == "pf_kernel":
    hdr += f"; @launch kernel=pf_kernel grid=(512,1,1) block=(256,1,1) lds={LDS}\n"
else:
    hdr += f"; @launch grid=(512,1,1) block=(256,1,1) lds={LDS}\n"
hdr += '.amdgcn_target "amdgcn-amd-amdhsa--gfx950"\n.text\n'
txt = hdr + "\n".join(L) + "\n" + '.section .rodata,"a"\n'
txt += kd(KN, 256, 102, 256)
open(OUT, "w").write(txt)
print("wrote", OUT, len(txt))
```
